```python
import torch

def _softmax(x, axis=-1):
    return torch.softmax(x, dim=axis)
def _gelu(x):
    return torch.nn.functional.gelu(x, approximate="tanh")
def _silu(x):
    return torch.nn.functional.silu(x)
def _sigmoid(x):
    return torch.sigmoid(x)
def _layernorm(x, axis=-1, eps=1e-5):
    m = x.mean(dim=axis, keepdim=True)
    v = x.var(dim=axis, keepdim=True, unbiased=False)
    return (x - m) / torch.sqrt(v + eps)
def _scatter_add(tgt, idx, src, axis=0):
    return tgt.clone().index_add_(axis, idx, src)
def _segment_sum(src, seg, n):
    out = torch.zeros((n,) + src.shape[1:], dtype=src.dtype)
    return out.index_add_(0, seg, src)
def _pad(x, pw):
    flat = tuple(v for pair in reversed(pw) for v in pair)
    return torch.nn.functional.pad(x, flat)

kernel_name = 'interleave_layers__ssm_conv_h3__ssm_conv_s4d__prompt'

def setup_inputs():

    _w = (lambda a: (lambda t: t.to(torch.bfloat16) if t.is_floating_point() else t)(torch.as_tensor(a)))
    def _A_setup():
        B, S, D = 1, 2048, 512
        ks = 4
        return {
            "q": _w((lambda *s: torch.randn(*s, dtype=torch.bfloat16) * 0.05)(B, S, D)),
            "k": _w((lambda *s: torch.randn(*s, dtype=torch.bfloat16) * 0.4)(B, S, D)),
            "v": _w((lambda *s: torch.randn(*s, dtype=torch.bfloat16) * 0.4)(B, S, D)),
            "shift_k": _w((lambda *s: torch.randn(*s, dtype=torch.bfloat16) * 0.4)(D, ks) * 0.5),
            "ssm_k": _w((lambda *s: torch.randn(*s, dtype=torch.bfloat16) * 0.4)(D, S) * (1.0 / S ** 0.5)),
            "ssm_D": _w((lambda *s: torch.randn(*s, dtype=torch.bfloat16) * 0.4)(D)),
        }
    _A_in = _A_setup()

    def _B_setup():
        Bsz, L, D, N = 1, 2048, 512, 128
        return {
            "u": _w((lambda *s: torch.randn(*s, dtype=torch.bfloat16) * 0.05)(Bsz, L, D)),
            "log_A_real": _w((lambda *s: torch.randn(*s, dtype=torch.bfloat16) * 6.4)(D, N) * 0.5),
            "A_imag": _w((lambda *s: torch.randn(*s, dtype=torch.bfloat16) * 0.05)(D, N) * 3.14),
            "C_real": _w((lambda *s: torch.randn(*s, dtype=torch.bfloat16) * 0.1)(D, N) / N ** 0.5),
            "C_imag": _w((lambda *s: torch.randn(*s, dtype=torch.bfloat16) * 0.1)(D, N) / N ** 0.5),
            "log_dt": _w((lambda *s: torch.randn(*s, dtype=torch.bfloat16) * 0.05)(D) * 0.5 - 4.0),
            "D_skip": _w((lambda *s: torch.randn(*s, dtype=torch.bfloat16) * 0.05)(D)),
        }
    _B_in = _B_setup()

    return {
        "A_q": _A_in["q"],
        "A_k": _A_in["k"],
        "A_v": _A_in["v"],
        "A_shift_k": _A_in["shift_k"],
        "A_ssm_k": _A_in["ssm_k"],
        "A_ssm_D": _A_in["ssm_D"],
        "B_u": _B_in["u"],
        "B_log_A_real": _B_in["log_A_real"],
        "B_A_imag": _B_in["A_imag"],
        "B_C_real": _B_in["C_real"],
        "B_C_imag": _B_in["C_imag"],
        "B_log_dt": _B_in["log_dt"],
        "B_D_skip": _B_in["D_skip"],
    }

def reference(A_q, A_k, A_v, A_shift_k, A_ssm_k, A_ssm_D, B_u, B_log_A_real, B_A_imag, B_C_real, B_C_imag, B_log_dt, B_D_skip):
    def _A_ref(q, k, v, shift_k, ssm_k, ssm_D):
        B, S, D = q.shape
        ks = shift_k.shape[-1]
        k_pad = _pad(k, ((0, 0), (ks - 1, 0), (0, 0)))
        k_shift = torch.zeros_like(k)
        for t in range(ks):
            k_shift = k_shift + k_pad[:, t:t + S, :] * shift_k[:, ks - 1 - t][None, None, :]
        kv = k_shift * v
        L = 2 * S
        kv_pad = _pad(kv, ((0, 0), (0, S), (0, 0)))
        kf_pad = _pad(ssm_k, ((0, 0), (0, S)))
        kv_f = (lambda x, axes=(-2,-1): torch.fft.rfft2(x.float(), dim=axes))(kv_pad[:, None, :, :], axes=(1, 2))
        kf_f = (lambda x, axes=(-2,-1): torch.fft.rfft2(x.float(), dim=axes))(kf_pad[:, None, :], axes=(1, 2))
        kf_f = (lambda x, *d: x.permute(*d))(kf_f, 1, 2, 0)
        y_f = kv_f * kf_f[None, :, :, :]
        y = (lambda x, s, axes=(-2,-1): torch.fft.irfft2(x, s=s, dim=axes).to(torch.bfloat16))(y_f, (1, L), axes=(1, 2))[:, 0, :S, :]
        y = y + kv * ssm_D[None, None, :]
        return q * y

    def _B_ref(u, log_A_real, A_imag, C_real, C_imag, log_dt, D_skip):
        L = u.shape[1]
        dt = torch.exp(log_dt)
        A = -torch.exp(log_A_real) + 1j * A_imag
        C = (C_real + 1j * C_imag) * dt[:, None]
        pos = (lambda x, dt: x.to(dt))(torch.arange(L), log_dt.dtype)
        P = torch.exp((A * dt[:, None])[:, :, None] * pos[None, None, :])
        K = 2.0 * torch.einsum("dn,dnl->dl", C, P).real
        L2 = 2 * L
        u_t = (lambda x, *d: x.permute(*d))(u, 0, 2, 1)
        Kf = (lambda x, *a, **k: torch.fft.rfft(x.float(), *a, **k))(K, L2)
        Uf = (lambda x, *a, **k: torch.fft.rfft(x.float(), *a, **k))(u_t, L2)
        y = (lambda x, *a, **k: torch.fft.irfft(x, *a, **k).to(torch.bfloat16))(Uf * Kf[None, :, :], L2)[:, :, :L]
        y = (lambda x, *d: x.permute(*d))(y, 0, 2, 1)
        return y + u * D_skip[None, None, :]

    x = A_q
    x = x + _A_ref(_layernorm(x, axis=-1), A_k, A_v, A_shift_k, A_ssm_k, A_ssm_D)
    x = x + _B_ref(_layernorm(x, axis=-1), B_log_A_real, B_A_imag, B_C_real, B_C_imag, B_log_dt, B_D_skip)
    x = x + _A_ref(_layernorm(x, axis=-1), A_k, A_v, A_shift_k, A_ssm_k, A_ssm_D)
    x = x + _B_ref(_layernorm(x, axis=-1), B_log_A_real, B_A_imag, B_C_real, B_C_imag, B_log_dt, B_D_skip)
    return x
```

```python
import re

TRANS = ("v_exp_f32", "v_log_f32", "v_rcp_f32", "v_rsq_f32", "v_sqrt_f32", "v_sin_f32", "v_cos_f32", "v_rcp_iflag_f32")
REG_RE = re.compile(r"\b([vas])\[(\d+):(\d+)\]|\b([vas])(\d+)\b|\b(vcc|exec|m0)\b")

def regs_of(tok):
    out = []
    for m in REG_RE.finditer(tok):
        if m.group(1):
            out += [(m.group(1), i) for i in range(int(m.group(2)), int(m.group(3)) + 1)]
        elif m.group(4):
            out.append((m.group(4), int(m.group(5))))
        else:
            out.append((m.group(6), 0))
    return out

def split_ops(s):
    ops, depth, cur = [], 0, ""
    for ch in s:
        if ch == "[": depth += 1
        if ch == "]": depth -= 1
        if ch == "," and depth == 0:
            ops.append(cur.strip()); cur = ""
        else:
            cur += ch
    if cur.strip(): ops.append(cur.strip())
    return ops

class Ins:
    def __init__(self, text):
        self.text = text
        t = text.split(";")[0].strip()
        self.label = t.endswith(":")
        self.op = t.split()[0] if t and not self.label else ""
        rest = t[len(self.op):].strip() if not self.label else ""
        self.ops = split_ops(rest)
        op = self.op
        self.is_valu = op.startswith("v_") and not op.startswith("v_mfma")
        self.is_mfma = op.startswith("v_mfma")
        self.is_ds = op.startswith("ds_")
        self.is_vmem = op.startswith("buffer_") or op.startswith("global_")
        self.is_salu = op.startswith("s_")
        self.is_trans = op.replace("_e32", "").replace("_e64", "") in TRANS
        self.is_dpp = any(k in rest for k in ("quad_perm", "row_", "wave_sh", "wave_ro"))
        self.is_permlane = op.startswith("v_permlane")
        self.is_rdlane = op.startswith("v_readlane") or op.startswith("v_readfirstlane")
        self.dst, self.src = [], []
        ops = self.ops
        if self.is_mfma:
            self.dst = regs_of(ops[0]); self.srcA = regs_of(ops[1]); self.srcB = regs_of(ops[2]); self.srcC = regs_of(ops[3])
            self.src = self.srcA + self.srcB + self.srcC
            self.passes = 8 if "32x32x16" in op else (4 if "16x16x32" in op else 16)
        elif self.is_valu:
            if op.startswith("v_cmp"):
                self.dst = regs_of(ops[0]); self.src = sum((regs_of(o) for o in ops[1:]), [])
                if op.startswith("v_cmpx"): self.dst += [("exec", 0)]
            elif self.is_permlane:
                self.dst = regs_of(ops[0]) + regs_of(ops[1]); self.src = list(self.dst)
            elif "_co_" in op:
                self.dst = regs_of(ops[0]) + regs_of(ops[1]); self.src = sum((regs_of(o) for o in ops[2:]), [])
            elif op == "v_nop":
                pass
            else:
                self.dst = regs_of(ops[0]); self.src = sum((regs_of(o) for o in ops[1:]), [])
                if op.startswith("v_fmac") or op.startswith("v_dot2c") or self.is_dpp or op.startswith("v_writelane"):
                    self.src += self.dst
                if op.startswith("v_cndmask") and len(ops) == 3: self.src.append(("vcc", 0))
        elif self.is_ds:
            if op.startswith("ds_read") or op.startswith("ds_bpermute") or op.startswith("ds_swizzle") or op.startswith("ds_permute"):
                self.dst = regs_of(ops[0]); self.src = sum((regs_of(o) for o in ops[1:]), [])
            else:
                self.src = sum((regs_of(o) for o in ops), [])
        elif self.is_vmem:
            if "_load" in op and " lds" not in (" " + rest):
                self.dst = regs_of(ops[0]); self.src = sum((regs_of(o) for o in ops[1:]), [])
            else:
                self.src = sum((regs_of(o) for o in ops), [])
            self.wide_store = ("store_dwordx4" in op or "store_dwordx3" in op)
            self.lds_dma = " lds" in (" " + rest) or "_lds_" in op
        elif self.is_salu:
            if op in ("s_nop", "s_waitcnt", "s_barrier", "s_endpgm", "s_branch", "s_setprio", "s_sleep") or op.startswith("s_cbranch") or op.startswith("s_cmp"):
                self.src = sum((regs_of(o) for o in ops), [])
            else:
                self.dst = regs_of(ops[0]) if ops else []
                self.src = sum((regs_of(o) for o in ops[1:]), [])
                if "saveexec" in op: self.dst += [("exec", 0)]
        self.states = 1
        if op == "s_nop": self.states = int(ops[0]) + 1
        if self.label or not op: self.states = 0

def need(prod, cons):
    n = 0
    pd, cs, cd = set(prod.dst), set(cons.src), set(cons.dst)
    vg = lambda S: {r for r in S if r[0] in "va"}
    sg = lambda S: {r for r in S if r[0] in ("s", "vcc")}
    if prod.is_valu:
        raw = vg(pd) & cs
        if raw:
            if prod.is_trans and cons.is_valu and not cons.is_trans: n = max(n, 1)
            if prod.is_trans and (cons.is_mfma): n = max(n, 2)
            if cons.is_dpp: n = max(n, 2)
            if cons.is_permlane: n = max(n, 2)
            if cons.is_rdlane: n = max(n, 1)
            if cons.is_mfma: n = max(n, 2)
        sraw = sg(pd) & cs
        if sraw:
            if cons.is_valu or cons.is_mfma: n = max(n, 2)
            if cons.is_rdlane or cons.op.startswith("v_writelane"): n = max(n, 4)
            if cons.is_vmem: n = max(n, 5)
            if cons.is_salu: n = max(n, 1)
        if ("exec", 0) in pd:
            if cons.is_dpp: n = max(n, 5)
            if cons.is_rdlane or cons.is_permlane or cons.is_mfma: n = max(n, 4)
    if prod.is_mfma:
        p = prod.passes
        tbl = {4: (8, 6), 8: (12, 10), 16: (20, 18)}[p]
        if cons.is_mfma:
            if pd & (set(cons.srcA) | set(cons.srcB)): n = max(n, tbl[0])
            if pd & set(cons.srcC) and not (set(cons.srcC) == pd and cons.passes == p): n = max(n, tbl[1])
        else:
            if pd & (cs | cd): n = max(n, tbl[0])
        if cons.is_valu and (set(prod.srcC) & cd): n = max(n, {4: 3, 8: 7, 16: 15}[p])
    if prod.is_vmem and getattr(prod, "wide_store", False):
        data = set(regs_of(prod.ops[0])) if prod.op.startswith("buffer_") else set(regs_of(prod.ops[1]))
        if data & cd: n = max(n, 2 if cons.is_valu else 1)
    if prod.is_salu and ("m0", 0) in pd:
        if cons.is_vmem and getattr(cons, "lds_dma", False): n = max(n, 1)
    return n

def pad(lines):
    out = []
    for ln in lines:
        ins = Ins(ln)
        if ins.op and not ins.label:
            req = 0
            dist = 0
            for prev in reversed(out):
                if dist >= 24: break
                if prev.op:
                    nd = need(prev, ins)
                    if nd > dist: req = max(req, nd - dist)
                dist += prev.states
            while req > 0:
                k = min(req, 16)
                out.append(Ins(f"    s_nop {k-1}"))
                req -= k
        out.append(ins)
    return [i.text for i in out]

class Asm:
    def __init__(self):
        self.l = []
    def __call__(self, s):
        for ln in s.strip("\n").split("\n"):
            ln = ln.strip()
            if ln: self.l.append(("" if ln.endswith(":") else "    ") + ln)
    def text(self):
        return "\n".join(pad(self.l))

def kernel_text(name, body, vgpr, sgpr=96, agpr=0):
    acc = (vgpr + 3) // 4 * 4
    code = f""".globl {name}
.p2align 8
.type {name},@function
{name}:
{body}
"""
    kd = f""".p2align 6
.amdhsa_kernel {name}
  .amdhsa_next_free_vgpr {acc + agpr if agpr else vgpr}
  .amdhsa_next_free_sgpr {sgpr}
  .amdhsa_accum_offset {acc}
  .amdhsa_group_segment_fixed_size 0
  .amdhsa_kernarg_size 128
  .amdhsa_user_sgpr_count 2
  .amdhsa_user_sgpr_kernarg_segment_ptr 1
  .amdhsa_system_sgpr_workgroup_id_x 1
  .amdhsa_float_denorm_mode_32 3
  .amdhsa_float_denorm_mode_16_64 3
.end_amdhsa_kernel
"""
    return code, kd

def file_text(header_lines, launches, kernels):
    o = list(header_lines)
    for (n, g, b, lds) in launches:
        o.append(f"; @launch kernel={n} grid=({g},1,1) block=({b},1,1) lds={lds}")
    o.append('.amdgcn_target "amdgcn-amd-amdhsa--gfx950"')
    o.append(".text")
    for c, _ in kernels: o.append(c)
    o.append("L_code_end:")
    o.append("    s_endpgm")
    o.append('.section .rodata,"a"')
    for _, k in kernels: o.append(k)
    return "\n".join(o) + "\n"
```

```python
from asmlib import *

KVT, YA, X1, X2, X3, ST1, ST3, KW = 0x0, 0x200000, 0x400000, 0x600000, 0x800000, 0xA00000, 0xA10000, 0xC00000
WSBYTES = 0x10000000
MB2 = 2097152

def srd(a, d, base, nbytes):
    a(f"""s_mov_b32 s{d}, s{base}
s_and_b32 s{d+1}, s{base+1}, 0xffff
s_mov_b32 s{d+2}, {nbytes}
s_mov_b32 s{d+3}, 0x00020000""")

def lo(a, d, s): a(f"v_lshlrev_b32 v{d}, 16, v{s}")
def hi(a, d, s): a(f"v_and_b32 v{d}, 0xffff0000, v{s}")

def xcd_remap(a, sd, stmp):
    a(f"""s_and_b32 s{sd}, s2, 7
s_lshl_b32 s{sd}, s{sd}, 5
s_lshr_b32 s{stmp}, s2, 3
s_add_u32 s{sd}, s{sd}, s{stmp}""")

def k_kv():
    a = Asm()
    a("""s_cmp_ge_u32 s2, 256
s_cbranch_scc1 L_kv_end
s_load_dwordx4 s[4:7], s[0:1], 8
s_load_dwordx2 s[8:9], s[0:1], 24
s_load_dwordx2 s[10:11], s[0:1], 120""")
    xcd_remap(a, 3, 12)
    a("""v_and_b32 v1, 255, v0
v_lshrrev_b32 v2, 8, v0
s_lshl_b32 s13, s3, 3
v_lshl_add_u32 v3, v2, 2, s13
v_lshlrev_b32 v4, 10, v3
v_lshl_add_u32 v4, v1, 2, v4
v_subrev_u32 v5, 3072, v4
v_subrev_u32 v6, 2048, v4
v_subrev_u32 v7, 1024, v4
v_lshlrev_b32 v8, 4, v1
v_lshlrev_b32 v9, 13, v1
v_lshl_add_u32 v9, v3, 2, v9
s_waitcnt lgkmcnt(0)""")
    srd(a, 16, 4, MB2); srd(a, 20, 6, MB2); srd(a, 24, 8, 4096); srd(a, 28, 10, WSBYTES)
    a("""buffer_load_dwordx4 v[24:27], v8, s[24:27], 0 offen
buffer_load_dword v10, v5, s[16:19], 0 offen
buffer_load_dword v11, v6, s[16:19], 0 offen
buffer_load_dword v12, v7, s[16:19], 0 offen
buffer_load_dword v13, v4, s[16:19], 0 offen
buffer_load_dword v14, v4, s[16:19], 0 offen offset:1024
buffer_load_dword v15, v4, s[16:19], 0 offen offset:2048
buffer_load_dword v16, v4, s[16:19], 0 offen offset:3072
buffer_load_dword v17, v4, s[20:23], 0 offen
buffer_load_dword v18, v4, s[20:23], 0 offen offset:1024
buffer_load_dword v19, v4, s[20:23], 0 offen offset:2048
buffer_load_dword v20, v4, s[20:23], 0 offen offset:3072
s_waitcnt vmcnt(11)""")
    for ch in range(2):
        lo(a, 28 + 4 * ch + 0, 24 + 2 * ch); hi(a, 28 + 4 * ch + 1, 24 + 2 * ch)
        lo(a, 28 + 4 * ch + 2, 25 + 2 * ch); hi(a, 28 + 4 * ch + 3, 25 + 2 * ch)
    a("s_waitcnt vmcnt(4)")
    for i in range(7):
        lo(a, 36 + i, 10 + i); hi(a, 44 + i, 10 + i)
    a("s_waitcnt vmcnt(0)")
    for r in range(4):
        for t in range(4):
            w = 3 - t
            a(f"v_mul_f32 v54, v{36+r+t}, v{28+w}")
            a(f"v_mul_f32 v55, v{44+r+t}, v{32+w}")
            a("v_cvt_pk_bf16_f32 v56, v54, v55")
            if t == 0:
                lo(a, 52, 56); hi(a, 53, 56)
            else:
                lo(a, 54, 56); hi(a, 55, 56)
                a("v_add_f32 v52, v52, v54")
                a("v_add_f32 v53, v53, v55")
                a("v_cvt_pk_bf16_f32 v56, v52, v53")
                lo(a, 52, 56); hi(a, 53, 56)
        lo(a, 54, 17 + r); hi(a, 55, 17 + r)
        a("v_mul_f32 v52, v52, v54")
        a("v_mul_f32 v53, v53, v55")
        a(f"v_cvt_pk_bf16_f32 v{60+r}, v52, v53")
    a(f"""buffer_store_dwordx4 v[60:63], v9, s[28:31], 0 offen
L_kv_end:
s_endpgm""")
    return kernel_text("kv_kernel", a.text(), 64, 40)

XLS = 4160
WL0 = 2 * XLS
WAS = 1152
EX0 = 26880
TS = 1216
WSTR = 8 * TS
CONV_LDS = EX0 + 8 * WSTR

class LdsQ:
    def __init__(self, a):
        self.a = a; self.q = []; self.done = 0
    def issue(self, text, dst):
        self.a(text); self.q.append(set(dst))
    def need(self, regs):
        regs = set(regs)
        idx = -1
        for i, d in enumerate(self.q):
            if d & regs: idx = i
        if idx >= self.done:
            n = len(self.q) - 1 - idx
            n = min(n, 15)
            self.a(f"s_waitcnt lgkmcnt({n})")
            self.done = len(self.q) - n

def k_conv(kind, NP):
    name = {"A": "convA_kernel", "B1": "convB1_kernel", "B2": "convB2_kernel"}[kind]
    if kind == "A": NP = 1
    a = Asm()
    E = f"L_{name}_end"
    a(f"""s_cmp_ge_u32 s2, 256
s_cbranch_scc1 {E}
s_load_dwordx2 s[10:11], s[0:1], 120""")
    if kind == "A":
        a("s_load_dwordx4 s[4:7], s[0:1], 32")
    else:
        a("s_load_dwordx4 s[4:7], s[0:1], 96")
    xcd_remap(a, 3, 12)
    a("""v_lshrrev_b32 v1, 6, v0
v_and_b32 v2, 63, v0
v_lshlrev_b32 v3, 4, v0
s_nop 0
v_readfirstlane_b32 s14, v1
s_lshl_b32 s13, s3, 13
s_lshl_b32 s15, s3, 2
s_waitcnt lgkmcnt(0)""")
    srd(a, 28, 10, WSBYTES)
    src = {"A": KVT, "B1": X1, "B2": X3}[kind]
    a(f"s_add_u32 s32, s13, {src}")
    a("buffer_load_dwordx4 v[4:7], v3, s[28:31], s32 offen")
    if kind == "A":
        srd(a, 16, 4, MB2)
        a("buffer_load_dwordx4 v[48:51], v3, s[16:19], s13 offen")
        a("s_add_u32 s6, s6, s15")
        a("s_addc_u32 s7, s7, 0")
        a("s_load_dword s33, s[6:7], 0")
    else:
        st = {"B1": ST1, "B2": ST3}[kind]
        a(f"s_mov_b32 s34, {st}")
        a("buffer_load_dwordx4 v[48:51], v3, s[28:31], s34 offen")
        a("s_lshl_b32 s35, s3, 14")
        a(f"s_add_u32 s35, s35, {KW}")
        if NP == 2:
            a("v_lshlrev_b32 v60, 5, v0")
            a("buffer_load_dwordx4 v[52:55], v60, s[28:31], s35 offen")
            a("buffer_load_dwordx4 v[56:59], v60, s[28:31], s35 offen offset:16")
        else:
            a("""v_lshrrev_b32 v60, 8, v0
v_lshlrev_b32 v60, 13, v60
v_and_b32 v61, 255, v0
v_lshl_add_u32 v60, v61, 4, v60
buffer_load_dwordx4 v[52:55], v60, s[28:31], s35 offen""")
        a("s_add_u32 s4, s4, s15")
        a("s_addc_u32 s5, s5, 0")
        a("s_load_dword s33, s[4:5], 0")
        if kind == "B2":
            srd(a, 20, 6, MB2)
    na = 8 * NP
    a(f"""v_mov_b32 v64, 0
v_mov_b32 v65, 0
v_mov_b32 v66, 0
v_mov_b32 v67, 0
v_lshrrev_b32 v61, 3, v0
v_mul_u32_u24 v61, {WAS}, v61
v_and_b32 v62, 7, v0
v_lshl_add_u32 v61, v62, 4, v61
v_add_u32 v61, {WL0}, v61
v_cmp_gt_u32 vcc, {na*8}, v0
s_and_saveexec_b64 s[36:37], vcc
ds_write_b128 v61, v[64:67]
s_mov_b64 exec, s[36:37]
v_lshrrev_b32 v61, 1, v0
v_mul_u32_u24 v61, {XLS}, v61
v_and_b32 v62, 1, v0
v_lshl_add_u32 v61, v62, 4, v61
v_cmp_gt_u32 vcc, 4, v0
s_and_saveexec_b64 s[36:37], vcc
ds_write_b128 v61, v[64:67]
s_mov_b64 exec, s[36:37]
v_mul_u32_u24 v61, {WSTR}, v1
v_add_u32 v61, {EX0 + 16*16}, v61
v_cmp_eq_u32 vcc, 0, v2
s_and_saveexec_b64 s[36:37], vcc
ds_write_b128 v61, v[64:67]
s_mov_b64 exec, s[36:37]
s_mov_b32 s38, 0x05040100
s_mov_b32 s39, 0x07060302""")
    a(f"""s_lshr_b32 s40, s14, 2
s_and_b32 s41, s14, 3
s_mul_i32 s42, s40, {XLS}
s_mul_i32 s43, s40, {NP*4*WAS}
s_mul_i32 s44, s41, {WAS}
s_add_u32 s43, s43, s44
s_add_u32 s43, s43, {WL0 + 56}
s_add_u32 s42, s42, 32
v_lshrrev_b32 v70, 4, v2
v_and_b32 v71, 3, v2
v_bfe_u32 v72, v2, 2, 2
v_sub_u32 v71, v71, v72
v_lshlrev_b32 v71, 3, v71
v_lshl_add_u32 v71, v70, 6, v71
v_add_u32 v12, s42, v71
v_and_b32 v71, 15, v2
v_lshlrev_b32 v71, 3, v71
v_lshlrev_b32 v72, 4, v70
v_sub_u32 v71, v71, v72
v_add_u32 v13, s43, v71""")
    VXA, VWB, ACC = 12, 13, 16
    for i in range(32): a(f"v_mov_b32 v{ACC+i}, 0")
    if kind == "A":
        a("s_waitcnt vmcnt(0)")
        XS = 4
        a(f"""v_perm_b32 v64, v50, v48, s38
v_perm_b32 v65, v50, v48, s39
v_perm_b32 v66, v51, v49, s38
v_perm_b32 v67, v51, v49, s39
v_lshrrev_b32 v61, 8, v0
v_mul_u32_u24 v61, {4*WAS}, v61
v_and_b32 v62, 255, v0
v_lshl_add_u32 v61, v62, 2, v61
ds_write_b32 v61, v64 offset:{WL0+128}
ds_write_b32 v61, v65 offset:{WL0+128+WAS}
ds_write_b32 v61, v66 offset:{WL0+128+2*WAS}
ds_write_b32 v61, v67 offset:{WL0+128+3*WAS}""")
    else:
        if NP == 2:
            a(f"""v_lshrrev_b32 v61, 5, v0
v_mul_u32_u24 v61, {WAS}, v61
v_and_b32 v62, 31, v0
v_lshl_add_u32 v61, v62, 5, v61
s_waitcnt vmcnt(2)""")
        else:
            a(f"""v_lshrrev_b32 v61, 6, v0
v_mul_u32_u24 v61, {WAS}, v61
v_lshl_add_u32 v61, v2, 4, v61
s_waitcnt vmcnt(1)""")
        for r in range(4):
            lo(a, 72, 48 + r); hi(a, 73, 48 + r)
            a("v_rcp_f32 v74, v73")
            lo(a, 75, 4 + r); hi(a, 76, 4 + r)
            a("v_sub_f32 v75, v75, v72")
            a("v_sub_f32 v76, v76, v72")
            a("v_cvt_pk_bf16_f32 v77, v75, v76")
            lo(a, 75, 77); hi(a, 76, 77)
            for x in (75, 76):
                a(f"v_mul_f32 v78, v{x}, v74")
                a(f"v_fma_f32 v79, -v78, v73, v{x}")
                a(f"v_fma_f32 v{x}, v79, v74, v78")
            a(f"v_cvt_pk_bf16_f32 v{8+r}, v75, v76")
        XS = 8
        a(f"""s_waitcnt vmcnt(0)
ds_write_b128 v61, v[52:55] offset:{WL0+128}""")
        if NP == 2:
            a(f"ds_write_b128 v61, v[56:59] offset:{WL0+128+16}")
    a(f"""v_perm_b32 v64, v{XS+1}, v{XS}, s38
v_perm_b32 v65, v{XS+3}, v{XS+2}, s38
v_perm_b32 v66, v{XS+1}, v{XS}, s39
v_perm_b32 v67, v{XS+3}, v{XS+2}, s39
v_lshlrev_b32 v61, 3, v0
ds_write_b64 v61, v[64:65] offset:32
ds_write_b64 v61, v[66:67] offset:{XLS+32}
s_waitcnt lgkmcnt(0)
s_barrier""")
    F0 = 48
    FA = [F0, F0 + 32 + 32 * NP]
    FB = [F0 + 32, F0 + 32 + 32 * NP + 32]
    q = LdsQ(a)
    def rdA(rho, aa):
        out = []
        for hh in range(2):
            d = FA[rho] + 4 * aa + 2 * hh
            out.append((f"ds_read_b64_tr_b16 v[{d}:{d+1}], v{VXA} offset:{512*aa + 256*rho + 32*hh}", [d, d + 1]))
        return out
    def rdB(rho, e, p):
        out = []
        for hh in range(2):
            d = FB[rho] + 32 * p + 4 * e + 2 * hh
            out.append((f"ds_read_b64 v[{d}:{d+1}], v{VWB} offset:{128*e + 64*(1-rho) + 8*(1-hh) + p*4*WAS}", [d, d + 1]))
        return out
    def reads(rho):
        r = rdA(rho, 0)
        for e in range(8):
            for p in range(NP): r += rdB(rho, e, p)
        for aa in range(1, 8): r += rdA(rho, aa)
        return r
    def mfmas(rho):
        m = []
        for aa in range(8):
            for e in range(8 - aa):
                for p in range(NP):
                    c = aa + e
                    A = FA[rho] + 4 * aa; B = FB[rho] + 32 * p + 4 * e; D = ACC + 4 * c
                    m.append((f"v_mfma_f32_16x16x32_bf16 v[{D}:{D+3}], v[{A}:{A+3}], v[{B}:{B+3}], v[{D}:{D+3}]", list(range(A, A + 4)) + list(range(B, B + 4))))
        return m
    for t, d in reads(0): q.issue(t, d)
    r1 = reads(1)
    for t, d in mfmas(0):
        q.need(d); a(t)
        for _ in range(2):
            if r1:
                tt, dd = r1.pop(0); q.issue(tt, dd)
    for tt, dd in r1: q.issue(tt, dd)
    for t, d in mfmas(1):
        q.need(d); a(t)
    a(f"""v_and_b32 v48, 15, v2
v_lshrrev_b32 v49, 4, v2
v_mul_u32_u24 v49, 20, v49
v_add_u32 v48, v48, v49
v_lshlrev_b32 v48, 4, v48
s_mul_i32 s44, s14, {WSTR}
v_add_u32 v48, s44, v48""")
    for c in range(8):
        a(f"ds_write_b128 v48, v[{ACC+4*c}:{ACC+4*c+3}] offset:{EX0 + c*TS}")
    a(f"""v_lshrrev_b32 v50, 2, v2
v_and_b32 v51, 3, v2
v_mul_u32_u24 v51, 20, v51
v_add_u32 v50, v50, v51
v_lshlrev_b32 v50, 4, v50
s_mul_i32 s44, s14, {TS}
v_add_u32 v50, s44, v50
v_subrev_u32 v52, 1, v2
v_lshrrev_b32 v51, 2, v52
v_and_b32 v52, 3, v52
v_mul_u32_u24 v52, 20, v52
v_add_u32 v51, v51, v52
v_lshlrev_b32 v51, 4, v51
v_add_u32 v51, s44, v51
s_sub_u32 s45, s44, {TS - 75*16}
s_cmp_eq_u32 s14, 0
s_cselect_b32 s45, {16*16}, s45
v_mov_b32 v52, s45
v_cmp_eq_u32 vcc, 0, v2
v_cndmask_b32 v51, v51, v52, vcc
v_add_u32 v50, {EX0}, v50
v_add_u32 v51, {EX0}, v51
v_add_u32 v52, {4*WSTR}, v50
v_add_u32 v53, {4*WSTR}, v51
s_waitcnt lgkmcnt(0)
s_barrier""")
    for w in range(8):
        b = 50 if w < 4 else 52
        a(f"ds_read_b128 v[{80+4*w}:{83+4*w}], v{b} offset:{(w&3)*WSTR}")
    for w in range(8):
        if w & 3 == 0: continue
        b = 51 if w < 4 else 53
        a(f"ds_read_b128 v[{112+4*w}:{115+4*w}], v{b} offset:{(w&3)*WSTR}")
    a("s_waitcnt lgkmcnt(0)")
    for ch in range(2):
        cur = lambda d, i: 80 + 4 * (4 * ch + d) + i
        prv = lambda d, i: 112 + 4 * (4 * ch + d) + i
        for r in range(4):
            t = [cur(0, r)]
            for d in range(1, 4):
                t.append(cur(d, r - d) if r - d >= 0 else prv(d, 4 + r - d))
            y = 48 + 4 * ch + r
            a(f"v_add_f32 v{y}, v{t[0]}, v{t[1]}")
            a(f"v_add_f32 v60, v{t[2]}, v{t[3]}")
            a(f"v_add_f32 v{y}, v{y}, v60")
    a("""s_lshl_b32 s46, s33, 16
s_and_b32 s47, s33, 0xffff0000""")
    for r in range(4):
        a(f"v_cvt_pk_bf16_f32 v60, v{48+r}, v{52+r}")
        lo(a, 61, 60); hi(a, 62, 60)
        lo(a, 63, XS + r); hi(a, 64, XS + r)
        a("v_mul_f32 v63, s46, v63")
        a("v_mul_f32 v64, s47, v64")
        a("v_cvt_pk_bf16_f32 v60, v63, v64")
        lo(a, 63, 60); hi(a, 64, 60)
        a("v_add_f32 v61, v61, v63")
        a("v_add_f32 v62, v62, v64")
        if kind == "A":
            a(f"v_cvt_pk_bf16_f32 v{68+r}, v61, v62")
        else:
            a("v_cvt_pk_bf16_f32 v60, v61, v62")
            lo(a, 61, 60); hi(a, 62, 60)
            lo(a, 63, 4 + r); hi(a, 64, 4 + r)
            a("v_add_f32 v61, v61, v63")
            a("v_add_f32 v62, v62, v64")
            a(f"v_cvt_pk_bf16_f32 v{68+r}, v61, v62")
    if kind in ("A", "B1"):
        dst = YA if kind == "A" else X2
        a(f"s_add_u32 s32, s13, {dst}")
        a("buffer_store_dwordx4 v[68:71], v3, s[28:31], s32 offen")
    else:
        a("v_lshlrev_b32 v60, 12, v0")
        for r in range(4):
            a(f"buffer_store_dword v{68+r}, v60, s[20:23], s15 offen offset:{1024*r}")
    a(f"""{E}:
s_endpgm""")
    nv = max(F0 + 2 * (32 + 32 * NP), 144)
    return kernel_text(name, a.text(), nv, 64)

def reduce8(a, V, tmpaddr, ldsoff):
    for i in range(4):
        a(f"v_permlane32_swap_b32 v{V+i}, v{V+i+4}")
        a(f"v_add_f32 v{V+i}, v{V+i}, v{V+i+4}")
    for i in range(2):
        a(f"v_permlane16_swap_b32 v{V+i}, v{V+i+2}")
        a(f"v_add_f32 v{V+i}, v{V+i}, v{V+i+2}")
    for sh in (8, 4, 2, 1):
        for i in range(2):
            a(f"v_add_f32_dpp v{V+i}, v{V+i}, v{V+i} row_ror:{sh} row_mask:0xf bank_mask:0xf")
    a(f"""s_mov_b64 exec, s[48:49]
ds_write_b64 v{tmpaddr}, v[{V}:{V+1}] offset:{ldsoff}
s_mov_b64 exec, -1
s_waitcnt lgkmcnt(0)
s_barrier""")

def stats_from_lds(a, rdaddr, ldsoff, piv, T, out_mean_f32, out_m, out_den):
    for w in range(4):
        a(f"ds_read2_b32 v[{T+2*w}:{T+2*w+1}], v{rdaddr} offset0:{(ldsoff + 32*w)//4} offset1:{(ldsoff + 32*w)//4 + 4}")
    a(f"""s_waitcnt lgkmcnt(0)
v_add_f32 v{T}, v{T}, v{T+2}
v_add_f32 v{T+4}, v{T+4}, v{T+6}
v_add_f32 v{T+1}, v{T+1}, v{T+3}
v_add_f32 v{T+5}, v{T+5}, v{T+7}
v_add_f32 v{T}, v{T}, v{T+4}
v_add_f32 v{T+1}, v{T+1}, v{T+5}
v_mul_f32 v{T}, 0x3b000000, v{T}
v_mul_f32 v{T+1}, 0x3b000000, v{T+1}
v_add_f32 v{out_mean_f32}, v{piv}, v{T}
v_fma_f32 v{T+1}, -v{T}, v{T}, v{T+1}
v_max_f32 v{T+1}, 0, v{T+1}
v_cvt_pk_bf16_f32 v{T+2}, v{out_mean_f32}, v{T+1}
v_lshlrev_b32 v{out_m}, 16, v{T+2}
v_and_b32 v{T+1}, 0xffff0000, v{T+2}
v_add_f32 v{T+1}, 0x3727c5ac, v{T+1}
v_cvt_pk_bf16_f32 v{T+1}, v{T+1}, v{T+1}
v_and_b32 v{T+1}, 0xffff0000, v{T+1}
v_sqrt_f32 v{T+1}, v{T+1}
v_cvt_pk_bf16_f32 v{T+1}, v{T+1}, v{T+1}
v_and_b32 v{out_den}, 0xffff0000, v{T+1}""")

def bcast_quad(a, dst, src, r):
    a(f"v_mov_b32_dpp v{dst}, v{src} quad_perm:[{r},{r},{r},{r}] row_mask:0xf bank_mask:0xf")

def k_row(kind):
    name = {"R1": "row1_kernel", "R2": "row2_kernel"}[kind]
    E = f"L_{name}_end"
    a = Asm()
    a(f"""s_cmp_ge_u32 s2, 256
s_cbranch_scc1 {E}
s_load_dwordx2 s[10:11], s[0:1], 120
s_load_dwordx2 s[4:5], s[0:1], 0""")
    xcd_remap(a, 3, 12)
    a("""v_and_b32 v1, 255, v0
v_lshrrev_b32 v2, 8, v0
s_lshl_b32 s13, s3, 3
v_lshl_add_u32 v3, v2, 2, s13
v_lshlrev_b32 v9, 13, v1
v_lshl_add_u32 v9, v3, 2, v9
v_and_b32 v5, 3, v0
v_add_u32 v6, v3, v5
s_waitcnt lgkmcnt(0)""")
    srd(a, 28, 10, WSBYTES)
    a(f"s_mov_b32 s32, {YA}")
    a("buffer_load_dwordx4 v[12:15], v9, s[28:31], s32 offen")
    if kind == "R1":
        srd(a, 16, 4, MB2)
        a("""v_lshlrev_b32 v4, 10, v3
v_lshl_add_u32 v4, v1, 2, v4
buffer_load_dword v16, v4, s[16:19], 0 offen
buffer_load_dword v17, v4, s[16:19], 0 offen offset:1024
buffer_load_dword v18, v4, s[16:19], 0 offen offset:2048
buffer_load_dword v19, v4, s[16:19], 0 offen offset:3072
v_lshlrev_b32 v7, 10, v6
buffer_load_dword v20, v7, s[16:19], 0 offen""")
    else:
        a(f"""s_mov_b32 s33, {X2}
buffer_load_dwordx4 v[16:19], v9, s[28:31], s33 offen
v_lshlrev_b32 v7, 2, v6
buffer_load_dword v20, v7, s[28:31], s33 offen""")
    a("""s_mov_b32 s48, 0x00010001
s_mov_b32 s49, 0x00010001
v_lshrrev_b32 v10, 4, v0
v_lshlrev_b32 v10, 3, v10
v_lshlrev_b32 v11, 7, v2
v_lshl_add_u32 v11, v5, 2, v11
s_waitcnt vmcnt(0)
v_lshlrev_b32 v20, 16, v20""")
    for r in range(4): bcast_quad(a, 24 + r, 20, r)
    for r in range(4):
        lo(a, 28 + r, 16 + r); hi(a, 32 + r, 16 + r)
    def partial(P):
        for r in range(4):
            a(f"v_sub_f32 v48, v{28+r}, v{P+r}")
            a(f"v_sub_f32 v49, v{32+r}, v{P+r}")
            a(f"v_add_f32 v{40+r}, v48, v49")
            a(f"v_mul_f32 v{44+r}, v48, v48")
            a(f"v_fmac_f32 v{44+r}, v49, v49")
    partial(24)
    reduce8(a, 40, 10, 0)
    stats_from_lds(a, 11, 0, 20, 48, 21, 22, 23)
    a("v_rcp_f32 v36, v23")
    for r in range(4):
        bcast_quad(a, 24 + r, 21, r)
    for r in range(4):
        bcast_quad(a, 48, 22, r); bcast_quad(a, 49, 23, r); bcast_quad(a, 50, 36, r)
        a(f"v_sub_f32 v51, v{28+r}, v48")
        a(f"v_sub_f32 v52, v{32+r}, v48")
        a("v_cvt_pk_bf16_f32 v53, v51, v52")
        lo(a, 51, 53); hi(a, 52, 53)
        for x in (51, 52):
            a(f"v_mul_f32 v54, v{x}, v50")
            a(f"v_fma_f32 v55, -v54, v49, v{x}")
            a(f"v_fma_f32 v{x}, v55, v50, v54")
        a("v_cvt_pk_bf16_f32 v53, v51, v52")
        lo(a, 51, 53); hi(a, 52, 53)
        lo(a, 54, 12 + r); hi(a, 55, 12 + r)
        a("v_mul_f32 v51, v51, v54")
        a("v_mul_f32 v52, v52, v55")
        a("v_cvt_pk_bf16_f32 v53, v51, v52")
        lo(a, 51, 53); hi(a, 52, 53)
        a(f"v_add_f32 v51, v51, v{28+r}")
        a(f"v_add_f32 v52, v52, v{32+r}")
        a(f"v_cvt_pk_bf16_f32 v{56+r}, v51, v52")
        lo(a, 28 + r, 56 + r); hi(a, 32 + r, 56 + r)
    dst = X1 if kind == "R1" else X3
    a(f"s_mov_b32 s34, {dst}")
    a("buffer_store_dwordx4 v[56:59], v9, s[28:31], s34 offen")
    partial(24)
    reduce8(a, 40, 10, 256)
    stats_from_lds(a, 11, 256, 21, 48, 60, 61, 62)
    st = ST1 if kind == "R1" else ST3
    a(f"""v_lshrrev_b32 v61, 16, v61
v_or_b32 v61, v61, v62
v_lshlrev_b32 v7, 2, v6
s_mov_b32 s35, {st}
v_cmp_gt_u32 vcc, 4, v1
s_and_saveexec_b64 s[36:37], vcc
s_cbranch_execz {E}
buffer_store_dword v61, v7, s[28:31], s35 offen
{E}:
s_endpgm""")
    return kernel_text(name, a.text(), 64, 56)

KTAB = 2176 * 4
KGEN_LDS = 4 * KTAB
def exp_acc(a, dst, x, t1, t2):
    a(f"""v_mul_f32 v{t1}, s50, v{x}
v_fma_f32 v{t2}, v{x}, s50, -v{t1}
v_fmac_f32 v{t2}, s51, v{x}
v_exp_f32 v{t1}, v{t1}
v_fma_f32 v{t2}, v{t2}, s52, 1.0
v_mul_f32 v{dst}, v{t1}, v{t2}""")

def k_kgen(first_wg=0):
    name = "kgen_kernel"
    E = f"L_{name}_end"
    a = Asm()
    a(f"""s_cmp_ge_u32 s2, 512
s_cbranch_scc1 {E}
s_load_dwordx8 s[4:11], s[0:1], 56
s_load_dwordx2 s[12:13], s[0:1], 88
s_load_dwordx2 s[14:15], s[0:1], 120
v_and_b32 v1, 15, v0
v_bfe_u32 v2, v0, 4, 2
v_lshrrev_b32 v3, 6, v0
s_lshl_b32 s3, s2, 8
v_lshlrev_b32 v4, 6, v3
v_lshl_add_u32 v4, v2, 3, v4
s_mov_b32 s50, 0x3fb8aa3b
s_mov_b32 s51, 0x32a57060
s_mov_b32 s52, 0x3f317218
s_mov_b32 s53, 0x3e22f983
s_waitcnt lgkmcnt(0)""")
    for i in range(4): srd(a, 16 + 4 * i, 4 + 2 * i, 131072)
    srd(a, 32, 14, WSBYTES)
    for i in range(4):
        for kk in range(2):
            d = 8 + 4 * i + 2 * kk
            a(f"buffer_load_dwordx2 v[{d}:{d+1}], v4, s[{16+4*i}:{19+4*i}], s3 offen offset:{32*kk}")
    a("""s_lshr_b32 s36, s2, 1
s_lshl_b32 s36, s36, 2
s_add_u32 s12, s12, s36
s_addc_u32 s13, s13, 0
s_load_dword s37, s[12:13], 0""")
    a("""v_lshrrev_b32 v28, 3, v1
v_lshlrev_b32 v28, 7, v28
v_and_b32 v29, 7, v1
v_or_b32 v24, v28, v29
v_lshrrev_b32 v28, 2, v1
v_lshlrev_b32 v28, 7, v28
v_and_b32 v29, 3, v1
v_lshl_add_u32 v28, v29, 1, v28
v_add_u32 v28, 256, v28
v_bfe_u32 v29, v1, 1, 2
v_lshlrev_b32 v29, 7, v29
v_and_b32 v30, 1, v1
v_lshl_add_u32 v29, v30, 2, v29
v_add_u32 v29, 512, v29
v_cmp_gt_u32 vcc, 8, v1
v_cndmask_b32 v25, v29, v28, vcc
v_lshlrev_b32 v28, 7, v1
v_add_u32 v28, 1024, v28
v_min_u32 v26, 2048, v28
v_lshlrev_b32 v27, 3, v1
v_cvt_f32_u32 v24, v24
v_cvt_f32_u32 v25, v25
v_cvt_f32_u32 v26, v26
v_cvt_f32_u32 v27, v27
s_waitcnt lgkmcnt(0)
s_lshl_b32 s38, s37, 16
s_and_b32 s39, s37, 0xffff0000
s_bitcmp1_b32 s2, 0
s_cselect_b32 s38, s39, s38
v_mov_b32 v28, s38""")
    exp_acc(a, 29, 28, 30, 31)
    a("""v_cvt_pk_bf16_f32 v29, v29, v29
v_and_b32 v29, 0xffff0000, v29""")
    for i in range(12): a(f"v_mov_b32 v{32+i}, 0")
    a("s_waitcnt vmcnt(0)")
    for kk in range(2):
        for m in range(4):
            un = lo if m % 2 == 0 else hi
            src = lambda i: 8 + 4 * i + 2 * kk + m // 2
            un(a, 76, src(0))
            exp_acc(a, 77, 76, 78, 79)
            a("v_cvt_pk_bf16_f32 v77, v77, v77")
            a("v_and_b32 v77, 0xffff0000, v77")
            a("v_mul_f32 v77, v77, v29")
            a("v_mul_f32 v77, s50, v77")
            un(a, 78, src(1))
            a("v_mul_f32 v78, v78, v29")
            a("v_mul_f32 v78, s53, v78")
            un(a, 79, src(2)); un(a, 80, src(3))
            a("v_mul_f32 v79, v79, v29")
            a("v_mul_f32 v80, v80, v29")
            a("v_add_f32 v79, v79, v79")
            a("v_add_f32 v80, v80, v80")
            for T in range(4):
                P = 24 + T
                a(f"v_mul_f32 v81, -v77, v{P}")
                a(f"v_mul_f32 v82, v78, v{P}")
                a("v_exp_f32 v81, v81")
                a("v_fract_f32 v82, v82")
                a("v_cos_f32 v83, v82")
                a("v_sin_f32 v84, v82")
                if T < 3:
                    a("v_mul_f32 v83, v83, v81")
                    a("v_mul_f32 v84, v84, v81")
                    H, L = 44 + 4 * T + m, 56 + 4 * T + m
                else:
                    a("v_mul_f32 v85, v79, v81")
                    a("v_mul_f32 v86, v80, v81")
                    a("v_mul_f32 v87, v86, v84")
                    a("v_mul_f32 v88, v86, v83")
                    a("v_fma_f32 v83, v85, v83, -v87")
                    a("v_fma_f32 v84, -v85, v84, -v88")
                    H, L = 68 + m, 72 + m
                a(f"v_cvt_pk_bf16_f32 v{H}, v83, v84")
                lo(a, 85, H); hi(a, 86, H)
                a("v_sub_f32 v83, v83, v85")
                a("v_sub_f32 v84, v84, v86")
                a(f"v_cvt_pk_bf16_f32 v{L}, v83, v84")
        for T in range(3):
            D = 32 + 4 * T
            a(f"v_mfma_f32_16x16x32_bf16 v[{D}:{D+3}], v[{56+4*T}:{59+4*T}], v[68:71], v[{D}:{D+3}]")
            a(f"v_mfma_f32_16x16x32_bf16 v[{D}:{D+3}], v[{44+4*T}:{47+4*T}], v[72:75], v[{D}:{D+3}]")
            a(f"v_mfma_f32_16x16x32_bf16 v[{D}:{D+3}], v[{44+4*T}:{47+4*T}], v[68:71], v[{D}:{D+3}]")
    a(f"""v_mul_u32_u24 v76, {KTAB}, v3
v_lshl_add_u32 v76, v1, 5, v76
v_lshrrev_b32 v77, 1, v2
v_lshlrev_b32 v77, 9, v77
v_and_b32 v78, 1, v2
v_lshl_add_u32 v77, v78, 4, v77
v_add_u32 v77, v76, v77
ds_write_b128 v77, v[32:35]""")
    a("""v_lshlrev_b32 v77, 9, v2
v_add_u32 v77, 1024, v77
v_lshlrev_b32 v78, 10, v2
v_cmp_gt_u32 vcc, 2, v2
v_cndmask_b32 v77, v78, v77, vcc
v_add_u32 v77, v76, v77
ds_write_b32 v77, v36
v_mov_b32 v79, 16
v_cndmask_b32 v78, v79, 8, vcc
v_add_u32 v78, v77, v78
ds_write_b32 v78, v37
v_mov_b32 v79, 512
v_cndmask_b32 v78, v79, 16, vcc
v_add_u32 v78, v77, v78
ds_write_b32 v78, v38
v_mov_b32 v79, 528
v_cndmask_b32 v78, v79, 24, vcc
v_add_u32 v78, v77, v78
ds_write_b32 v78, v39""")
    a("""v_lshlrev_b32 v77, 11, v2
v_add_u32 v77, v76, v77
v_cmp_gt_u32 vcc, 3, v2
s_and_saveexec_b64 s[40:41], vcc
ds_write_b32 v77, v40 offset:4096
s_mov_b64 exec, s[40:41]
v_cmp_gt_u32 vcc, 2, v2
s_and_saveexec_b64 s[40:41], vcc
ds_write_b32 v77, v41 offset:4608
ds_write_b32 v77, v42 offset:5120
ds_write_b32 v77, v43 offset:5632
s_mov_b64 exec, s[40:41]
s_waitcnt lgkmcnt(0)
s_barrier""")
    a("v_lshlrev_b32 v4, 3, v0")
    for k in range(8):
        a(f"v_add_u32 v{8+k}, {k}, v4")
        a(f"v_cvt_f32_u32 v{8+k}, v{8+k}")
    for k in range(0, 8, 2):
        a(f"v_cvt_pk_bf16_f32 v16, v{8+k}, v{9+k}")
        lo(a, 8 + k, 16); hi(a, 9 + k, 16)
    for k in range(8):
        a(f"v_cvt_u32_f32 v{8+k}, v{8+k}")
        a(f"v_lshlrev_b32 v{8+k}, 2, v{8+k}")
    for k in range(8):
        for w in range(4):
            a(f"ds_read_b32 v{16+4*k+w}, v{8+k} offset:{w*KTAB}")
        if k % 2 == 1 and k < 7: pass
    a("s_waitcnt lgkmcnt(0)")
    for k in range(8):
        b = 16 + 4 * k
        a(f"v_add_f32 v{b}, v{b}, v{b+1}")
        a(f"v_add_f32 v{b+2}, v{b+2}, v{b+3}")
        a(f"v_add_f32 v{8+k}, v{b}, v{b+2}")
    a(f"""s_lshl_b32 s42, s2, 13
s_add_u32 s42, s42, {KW}
v_lshlrev_b32 v4, 2, v0""")
    for f in range(4):
        a(f"v_cvt_pk_bf16_f32 v{16+f}, v{8+f}, v{12+f}")
        lo(a, 24, 16 + f); hi(a, 25, 16 + f)
        a(f"v_sub_f32 v24, v{8+f}, v24")
        a(f"v_sub_f32 v25, v{12+f}, v25")
        a(f"v_cvt_pk_bf16_f32 v{20+f}, v24, v25")
        a(f"buffer_store_dword v{16+f}, v4, s[32:35], s42 offen offset:{1024*f}")
    a("s_add_u32 s42, s42, 4096")
    for f in range(4):
        a(f"buffer_store_dword v{20+f}, v4, s[32:35], s42 offen offset:{1024*f}")
    a(f"""{E}:
s_endpgm""")
    return kernel_text(name, a.text(), 96, 64)
```

```python
from kern import *
import sys
def build(path, sel=None, NP=2, extra_trivial=0):
    hdr = [l.rstrip("\n") for l in open("header.txt") if "Override launch" not in l and "grid=ceil" not in l]
    allk = {"kv": (k_kv, ("kv_kernel", 256, 512, 0)), "kgen": (k_kgen, ("kgen_kernel", 512, 256, KGEN_LDS)),
            "convA": (lambda: k_conv("A", 1), ("convA_kernel", 256, 512, CONV_LDS)),
            "row1": (lambda: k_row("R1"), ("row1_kernel", 256, 512, 512)),
            "convB1": (lambda: k_conv("B1", NP), ("convB1_kernel", 256, 512, CONV_LDS)),
            "row2": (lambda: k_row("R2"), ("row2_kernel", 256, 512, 512)),
            "convB2": (lambda: k_conv("B2", NP), ("convB2_kernel", 256, 512, CONV_LDS))}
    order = sel or ["kv", "kgen", "convA", "row1", "convB1", "row2", "convB2"]
    ks = [allk[n][0]() for n in dict.fromkeys(order)]
    launches = [allk[n][1] for n in order]
    if extra_trivial:
        ks.append(kernel_text("triv_kernel", "    s_endpgm", 8, 16))
        launches += [("triv_kernel", 256, 256, 0)] * extra_trivial
    open(path, "w").write(file_text(hdr, launches, ks))
if __name__ == "__main__":
    build("interleave_layers__ssm_conv_h3__ssm_conv_s4d__prompt.s")
    build("full_x4.s", extra_trivial=4)
    for n in ["kv", "kgen", "convA", "row1", "convB1", "row2", "convB2"]:
        build(f"only_{n}.s", [n])
```

```python
from asmlib import *

KVT, YA, X1, X2, X3, ST1, ST3, KW = 0x0, 0x200000, 0x400000, 0x600000, 0x800000, 0xA00000, 0xA10000, 0xC00000
WSBYTES = 0x10000000
MB2 = 2097152

def srd(a, d, base, nbytes):
    a(f"""s_mov_b32 s{d}, s{base}
s_and_b32 s{d+1}, s{base+1}, 0xffff
s_mov_b32 s{d+2}, {nbytes}
s_mov_b32 s{d+3}, 0x00020000""")

def lo(a, d, s): a(f"v_lshlrev_b32 v{d}, 16, v{s}")
def hi(a, d, s): a(f"v_and_b32 v{d}, 0xffff0000, v{s}")

def xcd_remap(a, sd, stmp):
    a(f"""s_and_b32 s{sd}, s2, 7
s_lshl_b32 s{sd}, s{sd}, 5
s_lshr_b32 s{stmp}, s2, 3
s_add_u32 s{sd}, s{sd}, s{stmp}""")

DIAG = False
DIAGBASE = 0x1000000
class Stamps:
    def __init__(self, a, kid):
        self.a = a; self.kid = kid; self.n = 0
        if DIAG: a("s_memrealtime s[64:65]")
    def __call__(self):
        if DIAG:
            self.a(f"s_memtime s[{68+2*self.n}:{69+2*self.n}]"); self.a("s_waitcnt lgkmcnt(0)"); self.n += 1
    def finish(self, ws_srd):
        if not DIAG: return
        a = self.a
        a("s_waitcnt vmcnt(0)")
        self()
        a("s_memrealtime s[66:67]")
        a("s_waitcnt lgkmcnt(0)")
        a("s_mov_b64 exec, 1")
        a(f"s_lshl_b32 s62, s2, 7")
        a(f"s_add_u32 s62, s62, {DIAGBASE + self.kid * 0x20000}")
        a("v_lshrrev_b32 v1, 6, v0")
        a("v_lshlrev_b32 v1, 24, v1")
        a("v_lshlrev_b32 v1, 4, v1")
        regs = [64, 66] + [68 + 2 * i for i in range(self.n)]
        for i, r in enumerate(regs):
            a(f"v_mov_b32 v2, s{r}")
            a(f"buffer_store_dword v2, v1, s[{ws_srd}:{ws_srd+3}], s62 offen offset:{4*i}")

def k_kv():
    a = Asm()
    a("""s_cmp_ge_u32 s2, 256
s_cbranch_scc1 L_kv_end
s_load_dwordx4 s[4:7], s[0:1], 8
s_load_dwordx2 s[8:9], s[0:1], 24
s_load_dwordx2 s[10:11], s[0:1], 120""")
    st = Stamps(a, 0); st()
    xcd_remap(a, 3, 12)
    a("""v_and_b32 v1, 255, v0
v_lshrrev_b32 v2, 8, v0
s_lshl_b32 s13, s3, 3
v_lshl_add_u32 v3, v2, 2, s13
v_lshlrev_b32 v4, 10, v3
v_lshl_add_u32 v4, v1, 2, v4
v_subrev_u32 v5, 3072, v4
v_subrev_u32 v6, 2048, v4
v_subrev_u32 v7, 1024, v4
v_lshlrev_b32 v8, 4, v1
v_lshlrev_b32 v9, 13, v1
v_lshl_add_u32 v9, v3, 2, v9
s_waitcnt lgkmcnt(0)""")
    srd(a, 16, 4, MB2); srd(a, 20, 6, MB2); srd(a, 24, 8, 4096); srd(a, 28, 10, WSBYTES)
    a("""buffer_load_dwordx4 v[24:27], v8, s[24:27], 0 offen
buffer_load_dword v10, v5, s[16:19], 0 offen
buffer_load_dword v11, v6, s[16:19], 0 offen
buffer_load_dword v12, v7, s[16:19], 0 offen
buffer_load_dword v13, v4, s[16:19], 0 offen
buffer_load_dword v14, v4, s[16:19], 0 offen offset:1024
buffer_load_dword v15, v4, s[16:19], 0 offen offset:2048
buffer_load_dword v16, v4, s[16:19], 0 offen offset:3072
buffer_load_dword v17, v4, s[20:23], 0 offen
buffer_load_dword v18, v4, s[20:23], 0 offen offset:1024
buffer_load_dword v19, v4, s[20:23], 0 offen offset:2048
buffer_load_dword v20, v4, s[20:23], 0 offen offset:3072
s_waitcnt vmcnt(11)""")
    for ch in range(2):
        lo(a, 28 + 4 * ch + 0, 24 + 2 * ch); hi(a, 28 + 4 * ch + 1, 24 + 2 * ch)
        lo(a, 28 + 4 * ch + 2, 25 + 2 * ch); hi(a, 28 + 4 * ch + 3, 25 + 2 * ch)
    a("s_waitcnt vmcnt(4)")
    for i in range(7):
        lo(a, 36 + i, 10 + i); hi(a, 44 + i, 10 + i)
    a("s_waitcnt vmcnt(0)")
    st()
    for r in range(4):
        for t in range(4):
            w = 3 - t
            a(f"v_mul_f32 v54, v{36+r+t}, v{28+w}")
            a(f"v_mul_f32 v55, v{44+r+t}, v{32+w}")
            a("v_cvt_pk_bf16_f32 v56, v54, v55")
            if t == 0:
                lo(a, 52, 56); hi(a, 53, 56)
            else:
                lo(a, 54, 56); hi(a, 55, 56)
                a("v_add_f32 v52, v52, v54")
                a("v_add_f32 v53, v53, v55")
                a("v_cvt_pk_bf16_f32 v56, v52, v53")
                lo(a, 52, 56); hi(a, 53, 56)
        lo(a, 54, 17 + r); hi(a, 55, 17 + r)
        a("v_mul_f32 v52, v52, v54")
        a("v_mul_f32 v53, v53, v55")
        a(f"v_cvt_pk_bf16_f32 v{60+r}, v52, v53")
    st()
    a("buffer_store_dwordx4 v[60:63], v9, s[28:31], 0 offen")
    st.finish(28)
    a("""L_kv_end:
s_endpgm""")
    return kernel_text("kv_kernel", a.text(), 64, 100 if DIAG else 40)

XLS = 4160
WL0 = 2 * XLS
WAS = 1152
EX0 = 26880
TS = 1216
WSTR = 8 * TS
CONV_LDS = EX0 + 8 * WSTR

class LdsQ:
    def __init__(self, a):
        self.a = a; self.q = []; self.done = 0
    def issue(self, text, dst):
        self.a(text); self.q.append(set(dst))
    def need(self, regs):
        regs = set(regs)
        idx = -1
        for i, d in enumerate(self.q):
            if d & regs: idx = i
        if idx >= self.done:
            n = len(self.q) - 1 - idx
            n = min(n, 15)
            self.a(f"s_waitcnt lgkmcnt({n})")
            self.done = len(self.q) - n

def k_conv(kind, NP):
    name = {"A": "convA_kernel", "B1": "convB1_kernel", "B2": "convB2_kernel"}[kind]
    if kind == "A": NP = 1
    a = Asm()
    E = f"L_{name}_end"
    a(f"""s_cmp_ge_u32 s2, 256
s_cbranch_scc1 {E}
s_load_dwordx2 s[10:11], s[0:1], 120""")
    if kind == "A":
        a("s_load_dwordx4 s[4:7], s[0:1], 32")
    else:
        a("s_load_dwordx4 s[4:7], s[0:1], 96")
    st = Stamps(a, {"A": 2, "B1": 4, "B2": 6}[kind]); st()
    xcd_remap(a, 3, 12)
    a("""v_lshrrev_b32 v1, 6, v0
v_and_b32 v2, 63, v0
v_lshlrev_b32 v3, 4, v0
s_nop 0
v_readfirstlane_b32 s14, v1
s_lshl_b32 s13, s3, 13
s_lshl_b32 s15, s3, 2
s_waitcnt lgkmcnt(0)""")
    srd(a, 28, 10, WSBYTES)
    src = {"A": KVT, "B1": X1, "B2": X3}[kind]
    a(f"s_add_u32 s32, s13, {src}")
    a("buffer_load_dwordx4 v[4:7], v3, s[28:31], s32 offen")
    if kind == "A":
        srd(a, 16, 4, MB2)
        a("buffer_load_dwordx4 v[48:51], v3, s[16:19], s13 offen")
        a("s_add_u32 s6, s6, s15")
        a("s_addc_u32 s7, s7, 0")
        a("s_load_dword s33, s[6:7], 0")
    else:
        stt = {"B1": ST1, "B2": ST3}[kind]
        a(f"s_mov_b32 s34, {stt}")
        a("buffer_load_dwordx4 v[48:51], v3, s[28:31], s34 offen")
        a("s_lshl_b32 s35, s3, 14")
        a(f"s_add_u32 s35, s35, {KW}")
        if NP == 2:
            a("v_lshlrev_b32 v60, 5, v0")
            a("buffer_load_dwordx4 v[52:55], v60, s[28:31], s35 offen")
            a("buffer_load_dwordx4 v[56:59], v60, s[28:31], s35 offen offset:16")
        else:
            a("""v_lshrrev_b32 v60, 8, v0
v_lshlrev_b32 v60, 13, v60
v_and_b32 v61, 255, v0
v_lshl_add_u32 v60, v61, 4, v60
buffer_load_dwordx4 v[52:55], v60, s[28:31], s35 offen""")
        a("s_add_u32 s4, s4, s15")
        a("s_addc_u32 s5, s5, 0")
        a("s_load_dword s33, s[4:5], 0")
        if kind == "B2":
            srd(a, 20, 6, MB2)
    na = 8 * NP
    a(f"""v_mov_b32 v64, 0
v_mov_b32 v65, 0
v_mov_b32 v66, 0
v_mov_b32 v67, 0
v_lshrrev_b32 v61, 3, v0
v_mul_u32_u24 v61, {WAS}, v61
v_and_b32 v62, 7, v0
v_lshl_add_u32 v61, v62, 4, v61
v_add_u32 v61, {WL0}, v61
v_cmp_gt_u32 vcc, {na*8}, v0
s_and_saveexec_b64 s[36:37], vcc
ds_write_b128 v61, v[64:67]
s_mov_b64 exec, s[36:37]
v_lshrrev_b32 v61, 1, v0
v_mul_u32_u24 v61, {XLS}, v61
v_and_b32 v62, 1, v0
v_lshl_add_u32 v61, v62, 4, v61
v_cmp_gt_u32 vcc, 4, v0
s_and_saveexec_b64 s[36:37], vcc
ds_write_b128 v61, v[64:67]
s_mov_b64 exec, s[36:37]
v_mul_u32_u24 v61, {WSTR}, v1
v_add_u32 v61, {EX0 + 16*16}, v61
v_cmp_eq_u32 vcc, 0, v2
s_and_saveexec_b64 s[36:37], vcc
ds_write_b128 v61, v[64:67]
s_mov_b64 exec, s[36:37]
s_mov_b32 s38, 0x05040100
s_mov_b32 s39, 0x07060302""")
    a(f"""s_lshr_b32 s40, s14, 2
s_and_b32 s41, s14, 3
s_mul_i32 s42, s40, {XLS}
s_mul_i32 s43, s40, {NP*4*WAS}
s_mul_i32 s44, s41, {WAS}
s_add_u32 s43, s43, s44
s_add_u32 s43, s43, {WL0 + 56}
s_add_u32 s42, s42, 32
v_lshrrev_b32 v70, 4, v2
v_and_b32 v71, 3, v2
v_bfe_u32 v72, v2, 2, 2
v_sub_u32 v71, v71, v72
v_lshlrev_b32 v71, 3, v71
v_lshl_add_u32 v71, v70, 6, v71
v_add_u32 v12, s42, v71
v_and_b32 v71, 15, v2
v_lshlrev_b32 v71, 3, v71
v_lshlrev_b32 v72, 4, v70
v_sub_u32 v71, v71, v72
v_add_u32 v13, s43, v71""")
    VXA, VWB, ACC = 12, 13, 16
    for i in range(32): a(f"v_mov_b32 v{ACC+i}, 0")
    if kind == "A":
        a("s_waitcnt vmcnt(0)")
        st()
        XS = 4
        a(f"""v_perm_b32 v64, v50, v48, s38
v_perm_b32 v65, v50, v48, s39
v_perm_b32 v66, v51, v49, s38
v_perm_b32 v67, v51, v49, s39
v_lshrrev_b32 v61, 8, v0
v_mul_u32_u24 v61, {4*WAS}, v61
v_and_b32 v62, 255, v0
v_lshl_add_u32 v61, v62, 2, v61
ds_write_b32 v61, v64 offset:{WL0+128}
ds_write_b32 v61, v65 offset:{WL0+128+WAS}
ds_write_b32 v61, v66 offset:{WL0+128+2*WAS}
ds_write_b32 v61, v67 offset:{WL0+128+3*WAS}""")
    else:
        if NP == 2:
            a(f"""v_lshrrev_b32 v61, 5, v0
v_mul_u32_u24 v61, {WAS}, v61
v_and_b32 v62, 31, v0
v_lshl_add_u32 v61, v62, 5, v61
s_waitcnt vmcnt(2)""")
        else:
            a(f"""v_lshrrev_b32 v61, 6, v0
v_mul_u32_u24 v61, {WAS}, v61
v_lshl_add_u32 v61, v2, 4, v61
s_waitcnt vmcnt(1)""")
        st()
        for r in range(4):
            lo(a, 72, 48 + r); hi(a, 73, 48 + r)
            a("v_rcp_f32 v74, v73")
            lo(a, 75, 4 + r); hi(a, 76, 4 + r)
            a("v_sub_f32 v75, v75, v72")
            a("v_sub_f32 v76, v76, v72")
            a("v_cvt_pk_bf16_f32 v77, v75, v76")
            lo(a, 75, 77); hi(a, 76, 77)
            for x in (75, 76):
                a(f"v_mul_f32 v78, v{x}, v74")
                a(f"v_fma_f32 v79, -v78, v73, v{x}")
                a(f"v_fma_f32 v{x}, v79, v74, v78")
            a(f"v_cvt_pk_bf16_f32 v{8+r}, v75, v76")
        XS = 8
        a(f"""s_waitcnt vmcnt(0)
ds_write_b128 v61, v[52:55] offset:{WL0+128}""")
        if NP == 2:
            a(f"ds_write_b128 v61, v[56:59] offset:{WL0+128+16}")
    a(f"""v_perm_b32 v64, v{XS+1}, v{XS}, s38
v_perm_b32 v65, v{XS+3}, v{XS+2}, s38
v_perm_b32 v66, v{XS+1}, v{XS}, s39
v_perm_b32 v67, v{XS+3}, v{XS+2}, s39
v_lshlrev_b32 v61, 3, v0
ds_write_b64 v61, v[64:65] offset:32
ds_write_b64 v61, v[66:67] offset:{XLS+32}
s_waitcnt lgkmcnt(0)
s_barrier""")
    st()
    F0 = 48
    FA = [F0, F0 + 32 + 32 * NP]
    FB = [F0 + 32, F0 + 32 + 32 * NP + 32]
    q = LdsQ(a)
    def rdA(rho, aa):
        out = []
        for hh in range(2):
            d = FA[rho] + 4 * aa + 2 * hh
            out.append((f"ds_read_b64_tr_b16 v[{d}:{d+1}], v{VXA} offset:{512*aa + 256*rho + 32*hh}", [d, d + 1]))
        return out
    def rdB(rho, e, p):
        out = []
        for hh in range(2):
            d = FB[rho] + 32 * p + 4 * e + 2 * hh
            out.append((f"ds_read_b64 v[{d}:{d+1}], v{VWB} offset:{128*e + 64*(1-rho) + 8*(1-hh) + p*4*WAS}", [d, d + 1]))
        return out
    def reads(rho):
        r = rdA(rho, 0)
        for e in range(8):
            for p in range(NP): r += rdB(rho, e, p)
        for aa in range(1, 8): r += rdA(rho, aa)
        return r
    def mfmas(rho):
        m = []
        for aa in range(8):
            for e in range(8 - aa):
                for p in range(NP):
                    c = aa + e
                    A = FA[rho] + 4 * aa; B = FB[rho] + 32 * p + 4 * e; D = ACC + 4 * c
                    m.append((f"v_mfma_f32_16x16x32_bf16 v[{D}:{D+3}], v[{A}:{A+3}], v[{B}:{B+3}], v[{D}:{D+3}]", list(range(A, A + 4)) + list(range(B, B + 4))))
        return m
    for t, d in reads(0): q.issue(t, d)
    r1 = reads(1)
    for t, d in mfmas(0):
        q.need(d); a(t)
        for _ in range(2):
            if r1:
                tt, dd = r1.pop(0); q.issue(tt, dd)
    for tt, dd in r1: q.issue(tt, dd)
    for t, d in mfmas(1):
        q.need(d); a(t)
    st()
    a(f"""v_and_b32 v48, 15, v2
v_lshrrev_b32 v49, 4, v2
v_mul_u32_u24 v49, 20, v49
v_add_u32 v48, v48, v49
v_lshlrev_b32 v48, 4, v48
s_mul_i32 s44, s14, {WSTR}
v_add_u32 v48, s44, v48""")
    for c in range(8):
        a(f"ds_write_b128 v48, v[{ACC+4*c}:{ACC+4*c+3}] offset:{EX0 + c*TS}")
    a(f"""v_lshrrev_b32 v50, 2, v2
v_and_b32 v51, 3, v2
v_mul_u32_u24 v51, 20, v51
v_add_u32 v50, v50, v51
v_lshlrev_b32 v50, 4, v50
s_mul_i32 s44, s14, {TS}
v_add_u32 v50, s44, v50
v_subrev_u32 v52, 1, v2
v_lshrrev_b32 v51, 2, v52
v_and_b32 v52, 3, v52
v_mul_u32_u24 v52, 20, v52
v_add_u32 v51, v51, v52
v_lshlrev_b32 v51, 4, v51
v_add_u32 v51, s44, v51
s_sub_u32 s45, s44, {TS - 75*16}
s_cmp_eq_u32 s14, 0
s_cselect_b32 s45, {16*16}, s45
v_mov_b32 v52, s45
v_cmp_eq_u32 vcc, 0, v2
v_cndmask_b32 v51, v51, v52, vcc
v_add_u32 v50, {EX0}, v50
v_add_u32 v51, {EX0}, v51
v_add_u32 v52, {4*WSTR}, v50
v_add_u32 v53, {4*WSTR}, v51
s_waitcnt lgkmcnt(0)
s_barrier""")
    st()
    for w in range(8):
        b = 50 if w < 4 else 52
        a(f"ds_read_b128 v[{80+4*w}:{83+4*w}], v{b} offset:{(w&3)*WSTR}")
    for w in range(8):
        if w & 3 == 0: continue
        b = 51 if w < 4 else 53
        a(f"ds_read_b128 v[{112+4*w}:{115+4*w}], v{b} offset:{(w&3)*WSTR}")
    a("s_waitcnt lgkmcnt(0)")
    for ch in range(2):
        cur = lambda d, i: 80 + 4 * (4 * ch + d) + i
        prv = lambda d, i: 112 + 4 * (4 * ch + d) + i
        for r in range(4):
            t = [cur(0, r)]
            for d in range(1, 4):
                t.append(cur(d, r - d) if r - d >= 0 else prv(d, 4 + r - d))
            y = 48 + 4 * ch + r
            a(f"v_add_f32 v{y}, v{t[0]}, v{t[1]}")
            a(f"v_add_f32 v60, v{t[2]}, v{t[3]}")
            a(f"v_add_f32 v{y}, v{y}, v60")
    a("""s_lshl_b32 s46, s33, 16
s_and_b32 s47, s33, 0xffff0000""")
    for r in range(4):
        a(f"v_cvt_pk_bf16_f32 v60, v{48+r}, v{52+r}")
        lo(a, 61, 60); hi(a, 62, 60)
        lo(a, 63, XS + r); hi(a, 64, XS + r)
        a("v_mul_f32 v63, s46, v63")
        a("v_mul_f32 v64, s47, v64")
        a("v_cvt_pk_bf16_f32 v60, v63, v64")
        lo(a, 63, 60); hi(a, 64, 60)
        a("v_add_f32 v61, v61, v63")
        a("v_add_f32 v62, v62, v64")
        if kind == "A":
            a(f"v_cvt_pk_bf16_f32 v{68+r}, v61, v62")
        else:
            a("v_cvt_pk_bf16_f32 v60, v61, v62")
            lo(a, 61, 60); hi(a, 62, 60)
            lo(a, 63, 4 + r); hi(a, 64, 4 + r)
            a("v_add_f32 v61, v61, v63")
            a("v_add_f32 v62, v62, v64")
            a(f"v_cvt_pk_bf16_f32 v{68+r}, v61, v62")
    st()
    if kind in ("A", "B1"):
        dst = YA if kind == "A" else X2
        a(f"s_add_u32 s32, s13, {dst}")
        a("buffer_store_dwordx4 v[68:71], v3, s[28:31], s32 offen")
    else:
        a("v_lshlrev_b32 v60, 12, v0")
        for r in range(4):
            a(f"buffer_store_dword v{68+r}, v60, s[20:23], s15 offen offset:{1024*r}")
    st.finish(28)
    a(f"""{E}:
s_endpgm""")
    nv = max(F0 + 2 * (32 + 32 * NP), 144)
    return kernel_text(name, a.text(), nv, 100 if DIAG else 64)

def reduce8(a, V, tmpaddr, ldsoff):
    for i in range(4):
        a(f"v_permlane32_swap_b32 v{V+i}, v{V+i+4}")
        a(f"v_add_f32 v{V+i}, v{V+i}, v{V+i+4}")
    for i in range(2):
        a(f"v_permlane16_swap_b32 v{V+i}, v{V+i+2}")
        a(f"v_add_f32 v{V+i}, v{V+i}, v{V+i+2}")
    for sh in (8, 4, 2, 1):
        for i in range(2):
            a(f"v_add_f32_dpp v{V+i}, v{V+i}, v{V+i} row_ror:{sh} row_mask:0xf bank_mask:0xf")
    a(f"""s_mov_b64 exec, s[48:49]
ds_write_b64 v{tmpaddr}, v[{V}:{V+1}] offset:{ldsoff}
s_mov_b64 exec, -1
s_waitcnt lgkmcnt(0)
s_barrier""")

def stats_from_lds(a, rdaddr, ldsoff, piv, T, out_mean_f32, out_m, out_den):
    for w in range(4):
        a(f"ds_read2_b32 v[{T+2*w}:{T+2*w+1}], v{rdaddr} offset0:{(ldsoff + 32*w)//4} offset1:{(ldsoff + 32*w)//4 + 4}")
    a(f"""s_waitcnt lgkmcnt(0)
v_add_f32 v{T}, v{T}, v{T+2}
v_add_f32 v{T+4}, v{T+4}, v{T+6}
v_add_f32 v{T+1}, v{T+1}, v{T+3}
v_add_f32 v{T+5}, v{T+5}, v{T+7}
v_add_f32 v{T}, v{T}, v{T+4}
v_add_f32 v{T+1}, v{T+1}, v{T+5}
v_mul_f32 v{T}, 0x3b000000, v{T}
v_mul_f32 v{T+1}, 0x3b000000, v{T+1}
v_add_f32 v{out_mean_f32}, v{piv}, v{T}
v_fma_f32 v{T+1}, -v{T}, v{T}, v{T+1}
v_max_f32 v{T+1}, 0, v{T+1}
v_cvt_pk_bf16_f32 v{T+2}, v{out_mean_f32}, v{T+1}
v_lshlrev_b32 v{out_m}, 16, v{T+2}
v_and_b32 v{T+1}, 0xffff0000, v{T+2}
v_add_f32 v{T+1}, 0x3727c5ac, v{T+1}
v_cvt_pk_bf16_f32 v{T+1}, v{T+1}, v{T+1}
v_and_b32 v{T+1}, 0xffff0000, v{T+1}
v_sqrt_f32 v{T+1}, v{T+1}
v_cvt_pk_bf16_f32 v{T+1}, v{T+1}, v{T+1}
v_and_b32 v{out_den}, 0xffff0000, v{T+1}""")

def bcast_quad(a, dst, src, r):
    a(f"v_mov_b32_dpp v{dst}, v{src} quad_perm:[{r},{r},{r},{r}] row_mask:0xf bank_mask:0xf")

def k_row(kind):
    name = {"R1": "row1_kernel", "R2": "row2_kernel"}[kind]
    E = f"L_{name}_end"
    a = Asm()
    a(f"""s_cmp_ge_u32 s2, 256
s_cbranch_scc1 {E}
s_load_dwordx2 s[10:11], s[0:1], 120
s_load_dwordx2 s[4:5], s[0:1], 0""")
    st = Stamps(a, {"R1": 3, "R2": 5}[kind]); st()
    xcd_remap(a, 3, 12)
    a("""v_and_b32 v1, 255, v0
v_lshrrev_b32 v2, 8, v0
s_lshl_b32 s13, s3, 3
v_lshl_add_u32 v3, v2, 2, s13
v_lshlrev_b32 v9, 13, v1
v_lshl_add_u32 v9, v3, 2, v9
v_and_b32 v5, 3, v0
v_add_u32 v6, v3, v5
s_waitcnt lgkmcnt(0)""")
    srd(a, 28, 10, WSBYTES)
    a(f"s_mov_b32 s32, {YA}")
    a("buffer_load_dwordx4 v[12:15], v9, s[28:31], s32 offen")
    if kind == "R1":
        srd(a, 16, 4, MB2)
        a("""v_lshlrev_b32 v4, 10, v3
v_lshl_add_u32 v4, v1, 2, v4
buffer_load_dword v16, v4, s[16:19], 0 offen
buffer_load_dword v17, v4, s[16:19], 0 offen offset:1024
buffer_load_dword v18, v4, s[16:19], 0 offen offset:2048
buffer_load_dword v19, v4, s[16:19], 0 offen offset:3072
v_lshlrev_b32 v7, 10, v6
buffer_load_dword v20, v7, s[16:19], 0 offen""")
    else:
        a(f"""s_mov_b32 s33, {X2}
buffer_load_dwordx4 v[16:19], v9, s[28:31], s33 offen
v_lshlrev_b32 v7, 2, v6
buffer_load_dword v20, v7, s[28:31], s33 offen""")
    a("""s_mov_b32 s48, 0x00010001
s_mov_b32 s49, 0x00010001
v_lshrrev_b32 v10, 4, v0
v_lshlrev_b32 v10, 3, v10
v_lshlrev_b32 v11, 7, v2
v_lshl_add_u32 v11, v5, 2, v11
s_waitcnt vmcnt(0)
v_lshlrev_b32 v20, 16, v20""")
    st()
    for r in range(4): bcast_quad(a, 24 + r, 20, r)
    for r in range(4):
        lo(a, 28 + r, 16 + r); hi(a, 32 + r, 16 + r)
    def partial(P):
        for r in range(4):
            a(f"v_sub_f32 v48, v{28+r}, v{P+r}")
            a(f"v_sub_f32 v49, v{32+r}, v{P+r}")
            a(f"v_add_f32 v{40+r}, v48, v49")
            a(f"v_mul_f32 v{44+r}, v48, v48")
            a(f"v_fmac_f32 v{44+r}, v49, v49")
    partial(24)
    reduce8(a, 40, 10, 0)
    stats_from_lds(a, 11, 0, 20, 48, 21, 22, 23)
    st()
    a("v_rcp_f32 v36, v23")
    for r in range(4):
        bcast_quad(a, 24 + r, 21, r)
    for r in range(4):
        bcast_quad(a, 48, 22, r); bcast_quad(a, 49, 23, r); bcast_quad(a, 50, 36, r)
        a(f"v_sub_f32 v51, v{28+r}, v48")
        a(f"v_sub_f32 v52, v{32+r}, v48")
        a("v_cvt_pk_bf16_f32 v53, v51, v52")
        lo(a, 51, 53); hi(a, 52, 53)
        for x in (51, 52):
            a(f"v_mul_f32 v54, v{x}, v50")
            a(f"v_fma_f32 v55, -v54, v49, v{x}")
            a(f"v_fma_f32 v{x}, v55, v50, v54")
        a("v_cvt_pk_bf16_f32 v53, v51, v52")
        lo(a, 51, 53); hi(a, 52, 53)
        lo(a, 54, 12 + r); hi(a, 55, 12 + r)
        a("v_mul_f32 v51, v51, v54")
        a("v_mul_f32 v52, v52, v55")
        a("v_cvt_pk_bf16_f32 v53, v51, v52")
        lo(a, 51, 53); hi(a, 52, 53)
        a(f"v_add_f32 v51, v51, v{28+r}")
        a(f"v_add_f32 v52, v52, v{32+r}")
        a(f"v_cvt_pk_bf16_f32 v{56+r}, v51, v52")
        lo(a, 28 + r, 56 + r); hi(a, 32 + r, 56 + r)
    dst = X1 if kind == "R1" else X3
    a(f"s_mov_b32 s34, {dst}")
    a("buffer_store_dwordx4 v[56:59], v9, s[28:31], s34 offen")
    st()
    partial(24)
    reduce8(a, 40, 10, 256)
    stats_from_lds(a, 11, 256, 21, 48, 60, 61, 62)
    stt = ST1 if kind == "R1" else ST3
    a(f"""v_lshrrev_b32 v61, 16, v61
v_or_b32 v61, v61, v62
v_lshlrev_b32 v7, 2, v6
s_mov_b32 s35, {stt}
v_cmp_gt_u32 vcc, 4, v1
s_and_saveexec_b64 s[36:37], vcc
s_cbranch_execz {E}
buffer_store_dword v61, v7, s[28:31], s35 offen""")
    st.finish(28)
    a(f"""{E}:
s_endpgm""")
    return kernel_text(name, a.text(), 64, 100 if DIAG else 56)

KTAB = 2176 * 4
KGEN_LDS = 4 * KTAB
def exp_acc(a, dst, x, t1, t2):
    a(f"""v_mul_f32 v{t1}, s50, v{x}
v_fma_f32 v{t2}, v{x}, s50, -v{t1}
v_fmac_f32 v{t2}, s51, v{x}
v_exp_f32 v{t1}, v{t1}
v_fma_f32 v{t2}, v{t2}, s52, 1.0
v_mul_f32 v{dst}, v{t1}, v{t2}""")

def k_kgen(first_wg=0):
    name = "kgen_kernel"
    E = f"L_{name}_end"
    a = Asm()
    a(f"""s_cmp_ge_u32 s2, 512
s_cbranch_scc1 {E}
s_load_dwordx8 s[4:11], s[0:1], 56
s_load_dwordx2 s[12:13], s[0:1], 88
s_load_dwordx2 s[14:15], s[0:1], 120
v_and_b32 v1, 15, v0
v_bfe_u32 v2, v0, 4, 2
v_lshrrev_b32 v3, 6, v0
s_lshl_b32 s3, s2, 8
v_lshlrev_b32 v4, 6, v3
v_lshl_add_u32 v4, v2, 3, v4
s_mov_b32 s50, 0x3fb8aa3b
s_mov_b32 s51, 0x32a57060
s_mov_b32 s52, 0x3f317218
s_mov_b32 s53, 0x3e22f983
s_waitcnt lgkmcnt(0)""")
    st = Stamps(a, 1); st()
    for i in range(4): srd(a, 16 + 4 * i, 4 + 2 * i, 131072)
    srd(a, 32, 14, WSBYTES)
    for i in range(4):
        for kk in range(2):
            d = 8 + 4 * i + 2 * kk
            a(f"buffer_load_dwordx2 v[{d}:{d+1}], v4, s[{16+4*i}:{19+4*i}], s3 offen offset:{32*kk}")
    a("""s_lshr_b32 s36, s2, 1
s_lshl_b32 s36, s36, 2
s_add_u32 s12, s12, s36
s_addc_u32 s13, s13, 0
s_load_dword s37, s[12:13], 0""")
    a("""v_lshrrev_b32 v28, 3, v1
v_lshlrev_b32 v28, 7, v28
v_and_b32 v29, 7, v1
v_or_b32 v24, v28, v29
v_lshrrev_b32 v28, 2, v1
v_lshlrev_b32 v28, 7, v28
v_and_b32 v29, 3, v1
v_lshl_add_u32 v28, v29, 1, v28
v_add_u32 v28, 256, v28
v_bfe_u32 v29, v1, 1, 2
v_lshlrev_b32 v29, 7, v29
v_and_b32 v30, 1, v1
v_lshl_add_u32 v29, v30, 2, v29
v_add_u32 v29, 512, v29
v_cmp_gt_u32 vcc, 8, v1
v_cndmask_b32 v25, v29, v28, vcc
v_lshlrev_b32 v28, 7, v1
v_add_u32 v28, 1024, v28
v_min_u32 v26, 2048, v28
v_lshlrev_b32 v27, 3, v1
v_cvt_f32_u32 v24, v24
v_cvt_f32_u32 v25, v25
v_cvt_f32_u32 v26, v26
v_cvt_f32_u32 v27, v27
s_waitcnt lgkmcnt(0)
s_lshl_b32 s38, s37, 16
s_and_b32 s39, s37, 0xffff0000
s_bitcmp1_b32 s2, 0
s_cselect_b32 s38, s39, s38
v_mov_b32 v28, s38""")
    exp_acc(a, 29, 28, 30, 31)
    a("""v_cvt_pk_bf16_f32 v29, v29, v29
v_and_b32 v29, 0xffff0000, v29""")
    for i in range(12): a(f"v_mov_b32 v{32+i}, 0")
    a("s_waitcnt vmcnt(0)")
    st()
    for kk in range(2):
        for m in range(4):
            un = lo if m % 2 == 0 else hi
            src = lambda i: 8 + 4 * i + 2 * kk + m // 2
            un(a, 76, src(0))
            exp_acc(a, 77, 76, 78, 79)
            a("v_cvt_pk_bf16_f32 v77, v77, v77")
            a("v_and_b32 v77, 0xffff0000, v77")
            a("v_mul_f32 v77, v77, v29")
            a("v_mul_f32 v77, s50, v77")
            un(a, 78, src(1))
            a("v_mul_f32 v78, v78, v29")
            a("v_mul_f32 v78, s53, v78")
            un(a, 79, src(2)); un(a, 80, src(3))
            a("v_mul_f32 v79, v79, v29")
            a("v_mul_f32 v80, v80, v29")
            a("v_add_f32 v79, v79, v79")
            a("v_add_f32 v80, v80, v80")
            for T in range(4):
                P = 24 + T
                a(f"v_mul_f32 v81, -v77, v{P}")
                a(f"v_mul_f32 v82, v78, v{P}")
                a("v_exp_f32 v81, v81")
                a("v_fract_f32 v82, v82")
                a("v_cos_f32 v83, v82")
                a("v_sin_f32 v84, v82")
                if T < 3:
                    a("v_mul_f32 v83, v83, v81")
                    a("v_mul_f32 v84, v84, v81")
                    H, L = 44 + 4 * T + m, 56 + 4 * T + m
                else:
                    a("v_mul_f32 v85, v79, v81")
                    a("v_mul_f32 v86, v80, v81")
                    a("v_mul_f32 v87, v86, v84")
                    a("v_mul_f32 v88, v86, v83")
                    a("v_fma_f32 v83, v85, v83, -v87")
                    a("v_fma_f32 v84, -v85, v84, -v88")
                    H, L = 68 + m, 72 + m
                a(f"v_cvt_pk_bf16_f32 v{H}, v83, v84")
                lo(a, 85, H); hi(a, 86, H)
                a("v_sub_f32 v83, v83, v85")
                a("v_sub_f32 v84, v84, v86")
                a(f"v_cvt_pk_bf16_f32 v{L}, v83, v84")
        for T in range(3):
            D = 32 + 4 * T
            a(f"v_mfma_f32_16x16x32_bf16 v[{D}:{D+3}], v[{56+4*T}:{59+4*T}], v[68:71], v[{D}:{D+3}]")
            a(f"v_mfma_f32_16x16x32_bf16 v[{D}:{D+3}], v[{44+4*T}:{47+4*T}], v[72:75], v[{D}:{D+3}]")
            a(f"v_mfma_f32_16x16x32_bf16 v[{D}:{D+3}], v[{44+4*T}:{47+4*T}], v[68:71], v[{D}:{D+3}]")
    st()
    a(f"""v_mul_u32_u24 v76, {KTAB}, v3
v_lshl_add_u32 v76, v1, 5, v76
v_lshrrev_b32 v77, 1, v2
v_lshlrev_b32 v77, 9, v77
v_and_b32 v78, 1, v2
v_lshl_add_u32 v77, v78, 4, v77
v_add_u32 v77, v76, v77
ds_write_b128 v77, v[32:35]""")
    a("""v_lshlrev_b32 v77, 9, v2
v_add_u32 v77, 1024, v77
v_lshlrev_b32 v78, 10, v2
v_cmp_gt_u32 vcc, 2, v2
v_cndmask_b32 v77, v78, v77, vcc
v_add_u32 v77, v76, v77
ds_write_b32 v77, v36
v_mov_b32 v79, 16
v_cndmask_b32 v78, v79, 8, vcc
v_add_u32 v78, v77, v78
ds_write_b32 v78, v37
v_mov_b32 v79, 512
v_cndmask_b32 v78, v79, 16, vcc
v_add_u32 v78, v77, v78
ds_write_b32 v78, v38
v_mov_b32 v79, 528
v_cndmask_b32 v78, v79, 24, vcc
v_add_u32 v78, v77, v78
ds_write_b32 v78, v39""")
    a("""v_lshlrev_b32 v77, 11, v2
v_add_u32 v77, v76, v77
v_cmp_gt_u32 vcc, 3, v2
s_and_saveexec_b64 s[40:41], vcc
ds_write_b32 v77, v40 offset:4096
s_mov_b64 exec, s[40:41]
v_cmp_gt_u32 vcc, 2, v2
s_and_saveexec_b64 s[40:41], vcc
ds_write_b32 v77, v41 offset:4608
ds_write_b32 v77, v42 offset:5120
ds_write_b32 v77, v43 offset:5632
s_mov_b64 exec, s[40:41]
s_waitcnt lgkmcnt(0)
s_barrier""")
    st()
    a("v_lshlrev_b32 v4, 3, v0")
    for k in range(8):
        a(f"v_add_u32 v{8+k}, {k}, v4")
        a(f"v_cvt_f32_u32 v{8+k}, v{8+k}")
    for k in range(0, 8, 2):
        a(f"v_cvt_pk_bf16_f32 v16, v{8+k}, v{9+k}")
        lo(a, 8 + k, 16); hi(a, 9 + k, 16)
    for k in range(8):
        a(f"v_cvt_u32_f32 v{8+k}, v{8+k}")
        a(f"v_lshlrev_b32 v{8+k}, 2, v{8+k}")
    for k in range(8):
        for w in range(4):
            a(f"ds_read_b32 v{16+4*k+w}, v{8+k} offset:{w*KTAB}")
        if k % 2 == 1 and k < 7: pass
    a("s_waitcnt lgkmcnt(0)")
    for k in range(8):
        b = 16 + 4 * k
        a(f"v_add_f32 v{b}, v{b}, v{b+1}")
        a(f"v_add_f32 v{b+2}, v{b+2}, v{b+3}")
        a(f"v_add_f32 v{8+k}, v{b}, v{b+2}")
    a(f"""s_lshl_b32 s42, s2, 13
s_add_u32 s42, s42, {KW}
v_lshlrev_b32 v4, 2, v0""")
    for f in range(4):
        a(f"v_cvt_pk_bf16_f32 v{16+f}, v{8+f}, v{12+f}")
        lo(a, 24, 16 + f); hi(a, 25, 16 + f)
        a(f"v_sub_f32 v24, v{8+f}, v24")
        a(f"v_sub_f32 v25, v{12+f}, v25")
        a(f"v_cvt_pk_bf16_f32 v{20+f}, v24, v25")
        a(f"buffer_store_dword v{16+f}, v4, s[32:35], s42 offen offset:{1024*f}")
    a("s_add_u32 s42, s42, 4096")
    for f in range(4):
        a(f"buffer_store_dword v{20+f}, v4, s[32:35], s42 offen offset:{1024*f}")
    st.finish(32)
    a(f"""{E}:
s_endpgm""")
    return kernel_text(name, a.text(), 96, 100 if DIAG else 64)
```

```python
from asmlib import *
import kern
from kern import srd, lo, hi, xcd_remap, Stamps, LdsQ, exp_acc, MB2, WSBYTES

KVT, YA, X1, X2, X3, ST1, ST3, KW = 0x0, 0x200000, 0x400000, 0x600000, 0x800000, 0xA00000, 0xA10000, 0xC00000
ROW_OUT_T2 = True
_LBL = 0
KV_T2 = False
def SG(n): return 100 if kern.DIAG else n

KV_PRIO = True
CODE_PREFETCH = 0
def k_kv(NP=1, nk=0, kfirst=False):
    a = Asm()
    if CODE_PREFETCH:
        a(f"""s_cmp_ge_u32 s2, 8
s_cbranch_scc1 L_kv_nopf
s_getpc_b64 s[58:59]
v_lshlrev_b32 v1, 7, v0
v_cmp_gt_u32 vcc, {CODE_PREFETCH}, v1
s_and_saveexec_b64 s[60:61], vcc
s_cbranch_execz L_kv_pfdone
global_load_dword v2, v1, s[58:59]
L_kv_pfdone:
s_mov_b64 exec, s[60:61]
L_kv_nopf:""")
    if kfirst and nk:
        a(f"""s_add_u32 s60, s2, 256
s_sub_u32 s61, s2, {nk}
s_cmp_lt_u32 s2, {nk}
s_cselect_b32 s61, s60, s61
s_cmp_lt_u32 s2, {nk+256}
s_cselect_b32 s2, s61, s2""")
    a("""s_cmp_ge_u32 s2, 256
s_cbranch_scc1 L_kv_kgen
""" + ("s_setprio 3" if KV_PRIO else "") + """
s_load_dwordx4 s[4:7], s[0:1], 8
s_load_dwordx2 s[8:9], s[0:1], 24
s_load_dwordx2 s[10:11], s[0:1], 120""")
    st = Stamps(a, 0); st()
    xcd_remap(a, 3, 12)
    a("""v_and_b32 v1, 255, v0
v_lshrrev_b32 v2, 8, v0
s_lshl_b32 s13, s3, 3
v_lshl_add_u32 v3, v2, 2, s13
v_lshlrev_b32 v4, 10, v3
v_lshl_add_u32 v4, v1, 2, v4
v_subrev_u32 v5, 3072, v4
v_subrev_u32 v6, 2048, v4
v_subrev_u32 v7, 1024, v4
v_lshlrev_b32 v8, 4, v1
v_lshrrev_b32 v9, 2, v1
v_lshlrev_b32 v9, 15, v9
v_lshl_add_u32 v9, v3, 4, v9
v_and_b32 v21, 3, v1
v_lshl_add_u32 v9, v21, 2, v9
s_waitcnt lgkmcnt(0)""")
    srd(a, 16, 4, MB2); srd(a, 20, 6, MB2); srd(a, 24, 8, 4096); srd(a, 28, 10, WSBYTES)
    a("""buffer_load_dwordx4 v[24:27], v8, s[24:27], 0 offen
buffer_load_dword v10, v5, s[16:19], 0 offen
buffer_load_dword v11, v6, s[16:19], 0 offen
buffer_load_dword v12, v7, s[16:19], 0 offen
buffer_load_dword v13, v4, s[16:19], 0 offen
buffer_load_dword v14, v4, s[16:19], 0 offen offset:1024
buffer_load_dword v15, v4, s[16:19], 0 offen offset:2048
buffer_load_dword v16, v4, s[16:19], 0 offen offset:3072
buffer_load_dword v17, v4, s[20:23], 0 offen
buffer_load_dword v18, v4, s[20:23], 0 offen offset:1024
buffer_load_dword v19, v4, s[20:23], 0 offen offset:2048
buffer_load_dword v20, v4, s[20:23], 0 offen offset:3072
s_waitcnt vmcnt(11)""")
    for ch in range(2):
        lo(a, 28 + 4 * ch + 0, 24 + 2 * ch); hi(a, 28 + 4 * ch + 1, 24 + 2 * ch)
        lo(a, 28 + 4 * ch + 2, 25 + 2 * ch); hi(a, 28 + 4 * ch + 3, 25 + 2 * ch)
    a("s_waitcnt vmcnt(4)")
    for i in range(7):
        lo(a, 36 + i, 10 + i); hi(a, 44 + i, 10 + i)
    a("s_waitcnt vmcnt(0)")
    st()
    for r in range(4):
        for t in range(4):
            w = 3 - t
            a(f"v_mul_f32 v54, v{36+r+t}, v{28+w}")
            a(f"v_mul_f32 v55, v{44+r+t}, v{32+w}")
            a("v_cvt_pk_bf16_f32 v56, v54, v55")
            if t == 0:
                lo(a, 52, 56); hi(a, 53, 56)
            else:
                lo(a, 54, 56); hi(a, 55, 56)
                a("v_add_f32 v52, v52, v54")
                a("v_add_f32 v53, v53, v55")
                a("v_cvt_pk_bf16_f32 v56, v52, v53")
                lo(a, 52, 56); hi(a, 53, 56)
        lo(a, 54, 17 + r); hi(a, 55, 17 + r)
        a("v_mul_f32 v52, v52, v54")
        a("v_mul_f32 v53, v53, v55")
        a(f"v_cvt_pk_bf16_f32 v{60+r}, v52, v53")
        if not KV_T2: a(f"buffer_store_dword v{60+r}, v9, s[28:31], 0 offen offset:{16*r}")
    if KV_T2:
        a("""v_lshlrev_b32 v9, 13, v1
v_lshl_add_u32 v9, v3, 2, v9
buffer_store_dwordx4 v[60:63], v9, s[28:31], 0 offen""")
    st.finish(28)
    a(f"""s_endpgm
L_kv_kgen:
s_cmp_ge_u32 s2, {256+nk}
s_cbranch_scc1 L_kv_end""")
    nv = 64
    if nk:
        a("s_sub_u32 s55, s2, 256")
        st2 = Stamps(a, 0)
        nv = kgen_body(a, NP, st2, 55)
    a("""L_kv_end:
s_endpgm""")
    return kernel_text("kv_kernel", a.text(), nv, SG(64))

XLS = 4160
WL0 = 8 * XLS
WAS = 1152
def EX0(NP): return WL0 + 8 * NP * WAS
def CONV_LDS(NP): return EX0(NP) + 32768
SSETS = [[7, 4, 3, 0], [6, 5, 2, 1]]

def conv_body(a, kind, NP, st, E, dbuf):
    ex0 = EX0(NP)
    if kind == "A":
        a("s_load_dwordx4 s[4:7], s[0:1], 32")
    else:
        a("s_load_dwordx4 s[4:7], s[0:1], 96")
    st()
    xcd_remap(a, 3, 12)
    a("""v_lshrrev_b32 v1, 6, v0
v_and_b32 v2, 63, v0
v_lshlrev_b32 v3, 6, v0
v_lshlrev_b32 v14, 4, v0
v_readfirstlane_b32 s14, v1
s_lshr_b32 s13, s3, 2
s_lshl_b32 s13, s13, 15
s_and_b32 s12, s3, 3
s_lshl_b32 s12, s12, 2
s_add_u32 s13, s13, s12
s_lshl_b32 s15, s3, 2
s_waitcnt lgkmcnt(0)""")
    srd(a, 28, 10, WSBYTES)
    src = {"A": KVT, "B1": X1, "B2": X3}[kind]
    a(f"""s_add_u32 s32, s13, {src}
s_lshl_b32 s45, s14, 12
s_add_u32 s32, s32, s45
s_add_u32 s45, s45, {ex0}
s_mov_b32 m0, s45
v_lshlrev_b32 v15, 4, v2""")
    for k in range(4):
        a(f"buffer_load_dword v15, s[28:31], s32 offen offset:{1024*k} lds")
    a("""v_lshrrev_b32 v15, 4, v2
v_lshlrev_b32 v15, 10, v15
v_and_b32 v63, 15, v2
v_lshl_add_u32 v15, v63, 4, v15
v_add_u32 v15, s45, v15""")
    if kind == "A":
        srd(a, 16, 4, MB2)
        a("s_lshl_b32 s35, s3, 13")
        a("buffer_load_dwordx4 v[48:51], v14, s[16:19], s35 offen")
        a("s_add_u32 s6, s6, s15")
        a("s_addc_u32 s7, s7, 0")
        a("s_load_dword s33, s[6:7], 0")
    else:
        stt = {"B1": ST1, "B2": ST3}[kind]
        a(f"s_mov_b32 s34, {stt}")
        a("buffer_load_dwordx4 v[48:51], v14, s[28:31], s34 offen")
        a(f"s_lshl_b32 s35, s3, {12 + NP}")
        a(f"s_add_u32 s35, s35, {KW}")
        if NP == 2:
            a("v_lshlrev_b32 v60, 5, v0")
            a("buffer_load_dwordx4 v[52:55], v60, s[28:31], s35 offen")
            a("buffer_load_dwordx4 v[56:59], v60, s[28:31], s35 offen offset:16")
        else:
            a("buffer_load_dwordx4 v[52:55], v14, s[28:31], s35 offen")
        a("s_add_u32 s4, s4, s15")
        a("s_addc_u32 s5, s5, 0")
        a("s_load_dword s33, s[4:5], 0")
        if kind == "B2":
            srd(a, 20, 6, MB2)
    na = 8 * NP
    a(f"""v_mov_b32 v64, 0
v_mov_b32 v65, 0
v_mov_b32 v66, 0
v_mov_b32 v67, 0
v_lshrrev_b32 v61, 3, v0
v_mul_u32_u24 v61, {WAS}, v61
v_and_b32 v62, 7, v0
v_lshl_add_u32 v61, v62, 4, v61
v_cmp_gt_u32 vcc, {na*8}, v0
s_and_saveexec_b64 s[36:37], vcc
ds_write_b128 v61, v[64:67] offset:{WL0}
s_mov_b64 exec, s[36:37]
v_lshrrev_b32 v61, 1, v0
v_mul_u32_u24 v61, {XLS}, v61
v_and_b32 v62, 1, v0
v_lshl_add_u32 v61, v62, 4, v61
v_cmp_gt_u32 vcc, 16, v0
s_and_saveexec_b64 s[36:37], vcc
ds_write_b128 v61, v[64:67]
s_mov_b64 exec, s[36:37]
v_cmp_eq_u32 vcc, 0, v0
s_and_saveexec_b64 s[36:37], vcc""")
    for ch in range(2):
        b = ch * 4 * XLS
        a(f"ds_write_b16 v64, v64 offset:{b + 1*XLS + 32}")
        a(f"ds_write_b32 v64, v64 offset:{b + 2*XLS + 32}")
        a(f"ds_write_b32 v64, v64 offset:{b + 3*XLS + 32}")
        a(f"ds_write_b16 v64, v64 offset:{b + 3*XLS + 36}")
    a("""s_mov_b64 exec, s[36:37]
s_mov_b32 s38, 0x05040100
s_mov_b32 s39, 0x07060302""")
    a(f"""s_lshr_b32 s40, s14, 2
s_bfe_u32 s41, s14, 0x10001
s_lshl_b32 s41, s41, 1
s_lshl_b32 s42, s40, 2
s_add_u32 s42, s42, s41
s_mul_i32 s42, s42, {XLS}
s_add_u32 s42, s42, 32
s_mul_i32 s43, s40, {NP*4}
s_add_u32 s43, s43, s41
s_mul_i32 s43, s43, {WAS}
s_add_u32 s43, s43, {WL0 + 56}
v_lshrrev_b32 v70, 4, v2
v_and_b32 v71, 3, v2
v_bfe_u32 v72, v2, 2, 2
v_sub_u32 v71, v71, v72
v_lshlrev_b32 v71, 3, v71
v_lshl_add_u32 v71, v70, 6, v71
v_add_u32 v12, s42, v71
v_and_b32 v71, 15, v2
v_lshlrev_b32 v71, 3, v71
v_lshlrev_b32 v72, 4, v70
v_sub_u32 v71, v71, v72
v_add_u32 v13, s43, v71""")
    VXA, VWB, ACC = 12, 13, 16
    for i in range(16): a(f"v_mov_b32 v{ACC+i}, 0")
    if kind == "A":
        a(f"""v_lshrrev_b32 v61, 8, v0
v_mul_u32_u24 v61, {4*WAS}, v61
v_and_b32 v62, 255, v0
v_lshl_add_u32 v61, v62, 2, v61
s_waitcnt vmcnt(1)
ds_read_b128 v[4:7], v15
s_waitcnt vmcnt(0)""")
        st()
        XS = 4
        a(f"""v_perm_b32 v64, v50, v48, s38
v_perm_b32 v65, v50, v48, s39
v_perm_b32 v66, v51, v49, s38
v_perm_b32 v67, v51, v49, s39
ds_write_b32 v61, v64 offset:{WL0+128}
ds_write_b32 v61, v65 offset:{WL0+128+WAS}
ds_write_b32 v61, v66 offset:{WL0+128+2*WAS}
ds_write_b32 v61, v67 offset:{WL0+128+3*WAS}""")
    else:
        if NP == 2:
            a(f"""v_lshrrev_b32 v61, 5, v0
v_mul_u32_u24 v61, {WAS}, v61
v_and_b32 v62, 31, v0
v_lshl_add_u32 v61, v62, 5, v61
s_waitcnt vmcnt(3)
ds_read_b128 v[4:7], v15
s_waitcnt vmcnt(2) lgkmcnt(0)""")
        else:
            a(f"""v_mul_u32_u24 v61, {WAS}, v1
v_lshl_add_u32 v61, v2, 4, v61
s_waitcnt vmcnt(2)
ds_read_b128 v[4:7], v15
s_waitcnt vmcnt(1) lgkmcnt(0)""")
        st()
        for r in range(4):
            lo(a, 72, 48 + r); hi(a, 73, 48 + r)
            a("v_rcp_f32 v74, v73")
            lo(a, 75, 4 + r); hi(a, 76, 4 + r)
            a("v_sub_f32 v75, v75, v72")
            a("v_sub_f32 v76, v76, v72")
            a("v_cvt_pk_bf16_f32 v77, v75, v76")
            lo(a, 75, 77); hi(a, 76, 77)
            for x in (75, 76):
                a(f"v_mul_f32 v78, v{x}, v74")
                a(f"v_fma_f32 v79, -v78, v73, v{x}")
                a(f"v_fma_f32 v{x}, v79, v74, v78")
            a(f"v_cvt_pk_bf16_f32 v{8+r}, v75, v76")
        XS = 8
    a("v_lshlrev_b32 v62, 3, v0")
    if kind == "A": a("s_waitcnt lgkmcnt(4)")
    for ch in range(2):
        sel = "s38" if ch == 0 else "s39"
        b = ch * 4 * XLS + 32
        e0, e1, o1 = 64 + 4 * ch, 65 + 4 * ch, 66 + 4 * ch
        a(f"""v_perm_b32 v{e0}, v{XS+1}, v{XS}, {sel}
v_perm_b32 v{e1}, v{XS+3}, v{XS+2}, {sel}
v_perm_b32 v{o1}, v{XS+2}, v{XS+1}, {sel}
ds_write_b64 v62, v[{e0}:{e1}] offset:{b}
ds_write_b16 v62, v{e0} offset:{b + XLS + 2}
ds_write_b32 v62, v{o1} offset:{b + XLS + 4}
ds_write_b16_d16_hi v62, v{e1} offset:{b + XLS + 8}
ds_write_b32 v62, v{e0} offset:{b + 2*XLS + 4}
ds_write_b32 v62, v{e1} offset:{b + 2*XLS + 8}
ds_write_b16 v62, v{e0} offset:{b + 3*XLS + 6}
ds_write_b32 v62, v{o1} offset:{b + 3*XLS + 8}
ds_write_b16_d16_hi v62, v{e1} offset:{b + 3*XLS + 12}""")
    if kind != "A":
        a(f"""s_waitcnt vmcnt(0)
ds_write_b128 v61, v[52:55] offset:{WL0+128}""")
        if NP == 2:
            a(f"ds_write_b128 v61, v[56:59] offset:{WL0+128+16}")
    a("""s_waitcnt lgkmcnt(0)
s_barrier""")
    st()
    a(f"""s_bitcmp1_b32 s14, 0
s_cbranch_scc1 {E}_S1""")
    F0 = 32
    FSZ = 32 + 32 * NP
    for S in range(2):
        if S == 1: a(f"{E}_S1:")
        q = LdsQ(a)
        tiles = SSETS[S]
        pairs = [(aa, c - aa, ti) for aa in range(8) for ti, c in enumerate(tiles) if c >= aa]
        steps = [(dl, rho) for dl in range(2) for rho in range(2)]
        def regA(si, aa): return F0 + (FSZ * (si & 1) if dbuf else 0) + 4 * aa
        def regB(si, e, p): return F0 + (FSZ * (si & 1) if dbuf else 0) + 32 + 32 * p + 4 * e
        def rdA(si, aa):
            dl, rho = steps[si]
            return [(f"ds_read_b64_tr_b16 v[{regA(si,aa)+2*hh}:{regA(si,aa)+2*hh+1}], v{VXA} offset:{512*aa + 256*rho + 32*hh + dl*XLS}",
                     [regA(si, aa) + 2 * hh, regA(si, aa) + 2 * hh + 1]) for hh in range(2)]
        def rdB(si, e, p):
            dl, rho = steps[si]
            return [(f"ds_read_b64 v[{regB(si,e,p)+2*hh}:{regB(si,e,p)+2*hh+1}], v{VWB} offset:{128*e + 64*(1-rho) + 8*(1-hh) + (p*4+dl)*WAS}",
                     [regB(si, e, p) + 2 * hh, regB(si, e, p) + 2 * hh + 1]) for hh in range(2)]
        def order(si):
            return pairs
        def frag_first_use(ordr):
            seen, out = set(), []
            for (aa, e, ti) in ordr:
                for f in (("A", aa), ("B", e)):
                    if f not in seen: seen.add(f); out.append(f)
            return out
        def reads_for(si, f):
            if f[0] == "A": return rdA(si, f[1])
            r = []
            for p in range(NP): r += rdB(si, f[1], p)
            return r
        ordrs = [pairs]
        for si in range(3):
            if dbuf:
                ordrs.append(pairs); continue
            lu = {}
            for k, (aa, e, ti) in enumerate(ordrs[si]):
                lu[("A", aa)] = k; lu[("B", e)] = k
            ordrs.append(sorted(pairs, key=lambda p: max(lu[("A", p[0])], lu[("B", p[1])])))
        for f in frag_first_use(ordrs[0]):
            for t, d in reads_for(0, f): q.issue(t, d)
        for si in range(4):
            o = ordrs[si]
            pend = frag_first_use(ordrs[si + 1]) if si < 3 else []
            lastuse = {}
            for k, (aa, e, ti) in enumerate(o):
                lastuse[("A", aa)] = k; lastuse[("B", e)] = k
            for k, (aa, e, ti) in enumerate(o):
                for p in range(NP):
                    A = regA(si, aa); B = regB(si, e, p); D = ACC + 4 * ti
                    q.need(list(range(A, A + 4)) + list(range(B, B + 4)))
                    a(f"v_mfma_f32_16x16x32_bf16 v[{D}:{D+3}], v[{A}:{A+3}], v[{B}:{B+3}], v[{D}:{D+3}]")
                if dbuf:
                    if pend:
                        f = pend.pop(0)
                        for t, d in reads_for(si + 1, f): q.issue(t, d)
                else:
                    for f in [f for f in pend if lastuse[f] <= k]:
                        pend.remove(f)
                        for t, d in reads_for(si + 1, f): q.issue(t, d)
            for f in pend:
                for t, d in reads_for(si + 1, f): q.issue(t, d)
        a(f"""v_and_b32 v32, 15, v2
v_lshrrev_b32 v33, 4, v2
v_lshlrev_b32 v34, 2, v33
v_xor_b32 v32, v32, v34
v_lshl_add_u32 v32, v33, 4, v32
v_lshlrev_b32 v32, 4, v32
s_lshr_b32 s44, s14, 1
s_lshl_b32 s44, s44, 13
v_add_u32 v32, s44, v32""")
        for ti, c in enumerate(tiles):
            a(f"ds_write_b128 v32, v[{ACC+4*ti}:{ACC+4*ti+3}] offset:{ex0 + c*1024}")
        if S == 0: a(f"s_branch {E}_J")
    a(f"{E}_J:")
    a(f"""v_lshrrev_b32 v32, 2, v2
v_and_b32 v33, 3, v2
v_lshlrev_b32 v34, 2, v33
v_xor_b32 v32, v32, v34
v_lshl_add_u32 v32, v33, 4, v32
v_lshlrev_b32 v32, 4, v32
s_lshl_b32 s44, s14, 10
s_add_u32 s44, s44, {ex0}
v_add_u32 v32, s44, v32
s_lshl_b32 s46, s33, 16
s_and_b32 s47, s33, 0xffff0000
s_waitcnt lgkmcnt(0)""")
    st()
    a("s_barrier")
    st()
    for k in range(4):
        a(f"ds_read_b128 v[{36+4*k}:{39+4*k}], v32 offset:{k*8192}")
    a("s_waitcnt lgkmcnt(0)")
    for r in range(4):
        a(f"v_add_f32 v52, v{36+r}, v{40+r}")
        a(f"v_add_f32 v53, v{44+r}, v{48+r}")
        a("v_cvt_pk_bf16_f32 v60, v52, v53")
        lo(a, 61, 60); hi(a, 62, 60)
        lo(a, 63, XS + r); hi(a, 64, XS + r)
        a("v_mul_f32 v63, s46, v63")
        a("v_mul_f32 v64, s47, v64")
        a("v_cvt_pk_bf16_f32 v60, v63, v64")
        lo(a, 63, 60); hi(a, 64, 60)
        a("v_add_f32 v61, v61, v63")
        a("v_add_f32 v62, v62, v64")
        if kind == "A":
            a(f"v_cvt_pk_bf16_f32 v{68+r}, v61, v62")
        else:
            a("v_cvt_pk_bf16_f32 v60, v61, v62")
            lo(a, 61, 60); hi(a, 62, 60)
            lo(a, 63, 4 + r); hi(a, 64, 4 + r)
            a("v_add_f32 v61, v61, v63")
            a("v_add_f32 v62, v62, v64")
            a(f"v_cvt_pk_bf16_f32 v{68+r}, v61, v62")
        if kind in ("A", "B1"):
            if r == 3:
                dst = YA if kind == "A" else X2
                a("s_lshl_b32 s32, s3, 13")
                a(f"s_add_u32 s32, s32, {dst}")
                a("buffer_store_dwordx4 v[68:71], v14, s[28:31], s32 offen")
        else:
            if r == 0: a("v_lshlrev_b32 v59, 12, v0")
            a(f"buffer_store_dword v{68+r}, v59, s[20:23], s15 offen offset:{1024*r}")
    st()
    st.finish(28)
    return max(F0 + FSZ * (2 if dbuf else 1), 80)

PXLS = 4160
PWL0 = 2 * PXLS
def PCO(NP): return 8 * NP * WAS + 128 - (8 * NP * WAS) % 256
def PEX0(NP): return (PWL0 + PCO(NP) + 8 * NP * WAS + 16 + 255) // 256 * 256
PWSTR = 8192 + 16
def PCONV_LDS(NP): return PEX0(NP) + 8 * PWSTR

def conv_body_p(a, kind, NP, st, E):
    ex0 = PEX0(NP); CO = PCO(NP)
    F0 = 48
    FSZ = 32 + 32 * NP
    XR = F0 + 2 * FSZ
    VW, VC, VP, VC2, VP2 = XR, XR + 1, XR + 2, XR + 3, XR + 4
    TD, XU = XR + 8, XR + 16
    if kind == "A":
        a("s_load_dwordx4 s[4:7], s[0:1], 32")
    else:
        a("s_load_dwordx4 s[4:7], s[0:1], 96")
    st()
    xcd_remap(a, 3, 12)
    a("""v_lshrrev_b32 v1, 6, v0
v_and_b32 v2, 63, v0
v_lshlrev_b32 v14, 4, v0
v_readfirstlane_b32 s14, v1
s_lshl_b32 s13, s3, 13
s_lshl_b32 s15, s3, 2
s_waitcnt lgkmcnt(0)""")
    srd(a, 28, 10, WSBYTES)
    src = {"A": KVT, "B1": X1, "B2": X3}[kind]
    a(f"s_add_u32 s32, s13, {src}")
    a("buffer_load_dwordx4 v[4:7], v14, s[28:31], s32 offen")
    if kind == "A":
        srd(a, 16, 4, MB2)
        a("buffer_load_dwordx4 v[48:51], v14, s[16:19], s13 offen")
        a("s_add_u32 s6, s6, s15")
        a("s_addc_u32 s7, s7, 0")
        a("s_load_dword s33, s[6:7], 0")
    else:
        stt = {"B1": ST1, "B2": ST3}[kind]
        a(f"s_mov_b32 s34, {stt}")
        a("buffer_load_dwordx4 v[48:51], v14, s[28:31], s34 offen")
        a(f"s_lshl_b32 s35, s3, {12 + NP}")
        a(f"s_add_u32 s35, s35, {KW}")
        if NP == 2:
            a("v_lshlrev_b32 v60, 5, v0")
            a("buffer_load_dwordx4 v[52:55], v60, s[28:31], s35 offen")
            a("buffer_load_dwordx4 v[56:59], v60, s[28:31], s35 offen offset:16")
        else:
            a("buffer_load_dwordx4 v[52:55], v14, s[28:31], s35 offen")
        a("s_add_u32 s4, s4, s15")
        a("s_addc_u32 s5, s5, 0")
        a("s_load_dword s33, s[4:5], 0")
        if kind == "B2":
            srd(a, 20, 6, MB2)
    na = 8 * NP
    a(f"""v_mov_b32 v64, 0
v_mov_b32 v65, 0
v_mov_b32 v66, 0
v_mov_b32 v67, 0
v_lshrrev_b32 v61, 4, v0
v_mul_u32_u24 v61, {WAS}, v61
v_and_b32 v62, 15, v0
v_lshl_add_u32 v61, v62, 3, v61
v_cmp_gt_u32 vcc, {na*16}, v0
s_and_saveexec_b64 s[36:37], vcc
ds_write_b64 v61, v[64:65] offset:{PWL0}
ds_write_b64 v61, v[64:65] offset:{PWL0 + CO + 8}
s_mov_b64 exec, s[36:37]
v_lshrrev_b32 v61, 1, v0
v_mul_u32_u24 v61, {PXLS}, v61
v_and_b32 v62, 1, v0
v_lshl_add_u32 v61, v62, 4, v61
v_cmp_gt_u32 vcc, 4, v0
s_and_saveexec_b64 s[36:37], vcc
ds_write_b128 v61, v[64:67]
s_mov_b64 exec, s[36:37]
s_mov_b32 s38, 0x05040100
s_mov_b32 s39, 0x07060302""")
    a(f"""s_lshr_b32 s40, s14, 2
s_and_b32 s41, s14, 3
s_mul_i32 s42, s40, {PXLS}
s_add_u32 s42, s42, 32
s_mul_i32 s43, s40, {NP*4}
s_add_u32 s43, s43, s41
s_mul_i32 s43, s43, {WAS}
s_add_u32 s43, s43, {PWL0 + 56}
v_lshrrev_b32 v70, 4, v2
v_and_b32 v71, 3, v2
v_bfe_u32 v72, v2, 2, 2
v_sub_u32 v71, v71, v72
v_lshlrev_b32 v71, 3, v71
v_lshl_add_u32 v71, v70, 6, v71
v_add_u32 v12, s42, v71
v_and_b32 v71, 15, v2
v_lshlrev_b32 v71, 3, v71
v_lshlrev_b32 v72, 4, v70
v_sub_u32 v71, v71, v72
v_add_u32 v13, s43, v71
v_and_b32 v71, 1, v2
v_xor_b32 v71, 1, v71
v_mul_u32_u24 v71, {CO + 8}, v71
v_add_u32 v13, v13, v71""")
    VXA, VWB, ACC = 12, 13, 16
    for i in range(32): a(f"v_mov_b32 v{ACC+i}, 0")
    a(f"""v_and_b32 v70, 15, v2
v_lshrrev_b32 v71, 4, v2
v_lshlrev_b32 v72, 2, v71
v_xor_b32 v70, v70, v72
v_lshl_add_u32 v70, v71, 4, v70
v_lshlrev_b32 v70, 4, v70
s_mul_i32 s44, s14, {PWSTR}
s_add_u32 s44, s44, {ex0}
v_add_u32 v{VW}, s44, v70
v_mov_b32 v70, s44
s_mov_b64 exec, 1
ds_write_b128 v70, v[64:67] offset:8192
s_mov_b64 exec, -1
v_lshrrev_b32 v70, 2, v2
v_and_b32 v71, 3, v2
v_lshlrev_b32 v72, 2, v71
v_xor_b32 v70, v70, v72
v_lshl_add_u32 v70, v71, 4, v70
v_lshlrev_b32 v70, 4, v70
s_lshl_b32 s44, s14, 10
s_add_u32 s44, s44, {ex0}
v_add_u32 v{VC}, s44, v70
v_subrev_u32 v73, 1, v2
v_lshrrev_b32 v71, 2, v73
v_and_b32 v73, 3, v73
v_lshlrev_b32 v72, 2, v73
v_xor_b32 v71, v71, v72
v_lshl_add_u32 v71, v73, 4, v71
v_lshlrev_b32 v71, 4, v71
v_add_u32 v71, s44, v71
s_sub_u32 s45, s44, {1024 - 51*16}
s_cmp_eq_u32 s14, 0
s_cselect_b32 s45, {ex0 + 8192}, s45
v_mov_b32 v72, s45
v_cmp_eq_u32 vcc, 0, v2
v_cndmask_b32 v{VP}, v71, v72, vcc
v_add_u32 v{VC2}, {4*PWSTR}, v{VC}
v_add_u32 v{VP2}, {4*PWSTR}, v{VP}
v_lshlrev_b32 v62, 3, v0""")
    if kind == "A":
        a(f"""v_lshrrev_b32 v61, 8, v0
v_mul_u32_u24 v61, {4*WAS}, v61
v_and_b32 v63, 255, v0
v_lshl_add_u32 v61, v63, 2, v61
s_waitcnt vmcnt(1)""")
        st()
        XS = 4
    else:
        if NP == 2:
            a(f"""v_lshrrev_b32 v61, 5, v0
v_mul_u32_u24 v61, {WAS}, v61
v_and_b32 v63, 31, v0
v_lshl_add_u32 v61, v63, 5, v61
s_waitcnt vmcnt(2)""")
        else:
            a(f"""v_mul_u32_u24 v61, {WAS}, v1
v_lshl_add_u32 v61, v2, 4, v61
s_waitcnt vmcnt(1)""")
        st()
        for r in range(4):
            T = 72 + 8 * r
            lo(a, T, 48 + r); hi(a, T + 1, 48 + r)
            a(f"v_rcp_f32 v{T+2}, v{T+1}")
            lo(a, XU + 2 * r, 4 + r); hi(a, XU + 2 * r + 1, 4 + r)
        for r in range(4):
            T = 72 + 8 * r
            a(f"v_sub_f32 v{T+3}, v{XU+2*r}, v{T}")
            a(f"v_sub_f32 v{T+4}, v{XU+2*r+1}, v{T}")
            a(f"v_cvt_pk_bf16_f32 v{T+5}, v{T+3}, v{T+4}")
            lo(a, T + 3, T + 5); hi(a, T + 4, T + 5)
            for x in (T + 3, T + 4):
                a(f"v_mul_f32 v{T+6}, v{x}, v{T+2}")
                a(f"v_fma_f32 v{T+7}, -v{T+6}, v{T+1}, v{x}")
                a(f"v_fma_f32 v{x}, v{T+7}, v{T+2}, v{T+6}")
            a(f"v_cvt_pk_bf16_f32 v{8+r}, v{T+3}, v{T+4}")
        XS = 8
    a(f"""v_perm_b32 v64, v{XS+1}, v{XS}, s38
v_perm_b32 v65, v{XS+3}, v{XS+2}, s38
v_perm_b32 v66, v{XS+1}, v{XS}, s39
v_perm_b32 v67, v{XS+3}, v{XS+2}, s39
ds_write_b64 v62, v[64:65] offset:32
ds_write_b64 v62, v[66:67] offset:{PXLS+32}
s_waitcnt vmcnt(0)""")
    if kind == "A":
        a("""v_perm_b32 v68, v50, v48, s38
v_perm_b32 v69, v50, v48, s39
v_perm_b32 v70, v51, v49, s38
v_perm_b32 v71, v51, v49, s39""")
        for f in range(4):
            a(f"ds_write_b32 v61, v{68+f} offset:{PWL0+128+f*WAS}")
            a(f"ds_write_b32 v61, v{68+f} offset:{PWL0+128+f*WAS+CO+8}")
    else:
        for h in range(NP):
            b = 52 + 4 * h
            a(f"ds_write_b128 v61, v[{b}:{b+3}] offset:{PWL0+128+16*h}")
            a(f"ds_write_b64 v61, v[{b}:{b+1}] offset:{PWL0+128+16*h+CO+8}")
            a(f"ds_write_b64 v61, v[{b+2}:{b+3}] offset:{PWL0+128+16*h+CO+16}")
    a("""s_waitcnt lgkmcnt(0)
s_lshl_b32 s46, s33, 16
s_and_b32 s47, s33, 0xffff0000
s_barrier""")
    st()
    FA = [F0, F0 + FSZ]
    FB = [F0 + 32, F0 + FSZ + 32]
    q = LdsQ(a)
    def rdA(rho, aa):
        return [(f"ds_read_b64_tr_b16 v[{FA[rho]+4*aa+2*hh}:{FA[rho]+4*aa+2*hh+1}], v{VXA} offset:{512*aa + 256*rho + 32*(1-hh)}",
                 [FA[rho] + 4 * aa + 2 * hh, FA[rho] + 4 * aa + 2 * hh + 1]) for hh in range(2)]
    def rdB(rho, e, p):
        d = FB[rho] + 32 * p + 4 * e
        return [(f"ds_read_b128 v[{d}:{d+3}], v{VWB} offset:{128*e + 64*(1-rho) + p*4*WAS}", list(range(d, d + 4)))]
    order = [(aa, c - aa, c) for c in range(8) for aa in range(c + 1)]
    def reads(rho):
        seen, r = set(), []
        for (aa, e, c) in order:
            if ("A", aa) not in seen: seen.add(("A", aa)); r += rdA(rho, aa)
            if ("B", e) not in seen:
                seen.add(("B", e))
                for p in range(NP): r += rdB(rho, e, p)
        return r
    def mf(rho, aa, e, c, p):
        A = FA[rho] + 4 * aa; B = FB[rho] + 32 * p + 4 * e; D = ACC + 4 * c
        q.need(list(range(A, A + 4)) + list(range(B, B + 4)))
        a(f"v_mfma_f32_16x16x32_bf16 v[{D}:{D+3}], v[{A}:{A+3}], v[{B}:{B+3}], v[{D}:{D+3}]")
    fill = []
    for r in range(4):
        fill += [f"v_lshlrev_b32 v{TD+2*r}, 16, v{XS+r}", f"v_and_b32 v{TD+2*r+1}, 0xffff0000, v{XS+r}",
                 f"v_mul_f32 v{TD+2*r}, s46, v{TD+2*r}", f"v_mul_f32 v{TD+2*r+1}, s47, v{TD+2*r+1}",
                 f"v_cvt_pk_bf16_f32 v15, v{TD+2*r}, v{TD+2*r+1}",
                 f"v_lshlrev_b32 v{TD+2*r}, 16, v15", f"v_and_b32 v{TD+2*r+1}, 0xffff0000, v15"]
    if kind == "B2": fill.append("v_lshlrev_b32 v3, 12, v0")
    for t, d in reads(0): q.issue(t, d)
    r1 = reads(1)
    for (aa, e, c) in order:
        for p in range(NP):
            mf(0, aa, e, c, p)
            if r1:
                tt, dd = r1.pop(0); q.issue(tt, dd)
            elif fill: a(fill.pop(0))
    for tt, dd in r1: q.issue(tt, dd)
    pendw = []
    for (aa, e, c) in order:
        for p in range(NP):
            mf(1, aa, e, c, p)
            if fill: a(fill.pop(0))
            pendw = [(cc, n - 1) for cc, n in pendw]
            for cc, n in [x for x in pendw if x[1] <= 0]:
                q.issue(f"ds_write_b128 v{VW}, v[{ACC+4*cc}:{ACC+4*cc+3}] offset:{cc*1024}", [])
            pendw = [x for x in pendw if x[1] > 0]
        if aa == c: pendw.append((c, 5))
    for f in fill: a(f)
    for cc, n in pendw:
        q.issue(f"ds_write_b128 v{VW}, v[{ACC+4*cc}:{ACC+4*cc+3}] offset:{cc*1024}", [])
    a("s_waitcnt lgkmcnt(0)")
    st()
    a("s_barrier")
    st()
    for w in range(8):
        b = VC if w < 4 else VC2
        a(f"ds_read_b128 v[{48+4*w}:{51+4*w}], v{b} offset:{(w&3)*PWSTR}")
        if w & 3:
            b = VP if w < 4 else VP2
            a(f"ds_read_b128 v[{80+4*w}:{83+4*w}], v{b} offset:{(w&3)*PWSTR}")
    for ch in range(2):
        a(f"s_waitcnt lgkmcnt({7 if ch == 0 else 0})")
        cur = lambda d, i: 48 + 4 * (4 * ch + d) + i
        prv = lambda d, i: 80 + 4 * (4 * ch + d) + i
        for r in range(4):
            t = [cur(0, r)]
            for d in range(1, 4):
                t.append(cur(d, r - d) if r - d >= 0 else prv(d, 4 + r - d))
            y = 16 + 4 * ch + r
            a(f"v_add_f32 v{y}, v{t[0]}, v{t[1]}")
            a(f"v_add_f32 v{24+r}, v{t[2]}, v{t[3]}")
            a(f"v_add_f32 v{y}, v{y}, v{24+r}")
    for r in range(4):
        T = 28 + 4 * r
        a(f"v_cvt_pk_bf16_f32 v{T}, v{16+r}, v{20+r}")
        lo(a, T + 1, T); hi(a, T + 2, T)
        a(f"v_add_f32 v{T+1}, v{T+1}, v{TD+2*r}")
        a(f"v_add_f32 v{T+2}, v{T+2}, v{TD+2*r+1}")
        if kind == "A":
            a(f"v_cvt_pk_bf16_f32 v{44+r}, v{T+1}, v{T+2}")
        else:
            a(f"v_cvt_pk_bf16_f32 v{T}, v{T+1}, v{T+2}")
            lo(a, T + 1, T); hi(a, T + 2, T)
            a(f"v_add_f32 v{T+1}, v{T+1}, v{XU+2*r}")
            a(f"v_add_f32 v{T+2}, v{T+2}, v{XU+2*r+1}")
            a(f"v_cvt_pk_bf16_f32 v{44+r}, v{T+1}, v{T+2}")
        if kind in ("A", "B1"):
            if r == 3:
                dst = YA if kind == "A" else X2
                a(f"s_add_u32 s32, s13, {dst}")
                a("buffer_store_dwordx4 v[44:47], v14, s[28:31], s32 offen")
        else:
            a(f"buffer_store_dword v{44+r}, v3, s[20:23], s15 offen offset:{1024*r}")
    st()
    st.finish(28)
    return XR + 24

def k_conv(kind, NP, dbuf=True, optp=False):
    name = {"A": "convA_kernel", "B1": "convB1_kernel", "B2": "convB2_kernel"}[kind]
    if kind == "A": NP = 1
    a = Asm()
    E = f"L_{name}"
    a(f"""s_cmp_ge_u32 s2, 256
s_cbranch_scc1 {E}_end
s_load_dwordx2 s[10:11], s[0:1], 120""")
    st = Stamps(a, {"A": 2, "B1": 4, "B2": 6}[kind])
    nv = conv_body_p(a, kind, NP, st, E) if optp else conv_body(a, kind, NP, st, E, dbuf)
    a(f"""{E}_end:
s_endpgm""")
    return kernel_text(name, a.text(), nv, SG(64))

def row_reduce(a, S1, S2, T, waddr, ldsoff):
    a(f"""v_permlane32_swap_b32 v{S1}, v{S2}
v_add_f32 v{S1}, v{S1}, v{S2}
v_mov_b32 v{T}, v{S1}
v_permlane16_swap_b32 v{S1}, v{T}
v_add_f32 v{S1}, v{S1}, v{T}
v_add_f32_dpp v{S1}, v{S1}, v{S1} row_ror:8 row_mask:0xf bank_mask:0xf
s_mov_b64 exec, s[48:49]
ds_write_b32 v{waddr}, v{S1} offset:{ldsoff}
s_mov_b64 exec, -1
s_waitcnt lgkmcnt(0)
s_barrier""")

def row_stats(a, raddr, ldsoff, piv, T, o_mean, o_m, o_den):
    a(f"""ds_read_b128 v[{T}:{T+3}], v{raddr} offset:{ldsoff}
ds_read_b128 v[{T+4}:{T+7}], v{raddr} offset:{ldsoff+16}
ds_read_b128 v[{T+8}:{T+11}], v{raddr} offset:{ldsoff+256}
ds_read_b128 v[{T+12}:{T+15}], v{raddr} offset:{ldsoff+272}
s_waitcnt lgkmcnt(2)""")
    for b in (0, 8):
        if b == 8: a("s_waitcnt lgkmcnt(0)")
        a(f"""v_add_f32 v{T+b}, v{T+b}, v{T+b+1}
v_add_f32 v{T+b+2}, v{T+b+2}, v{T+b+3}
v_add_f32 v{T+b+4}, v{T+b+4}, v{T+b+5}
v_add_f32 v{T+b+6}, v{T+b+6}, v{T+b+7}
v_add_f32 v{T+b}, v{T+b}, v{T+b+2}
v_add_f32 v{T+b+4}, v{T+b+4}, v{T+b+6}
v_add_f32 v{T+b}, v{T+b}, v{T+b+4}""")
    a(f"""v_mul_f32 v{T}, 0x3b000000, v{T}
v_mul_f32 v{T+1}, 0x3b000000, v{T+8}
v_add_f32 v{o_mean}, v{piv}, v{T}
v_fma_f32 v{T+1}, -v{T}, v{T}, v{T+1}
v_max_f32 v{T+1}, 0, v{T+1}
v_cvt_pk_bf16_f32 v{T+2}, v{o_mean}, v{T+1}
v_lshlrev_b32 v{o_m}, 16, v{T+2}
v_and_b32 v{T+1}, 0xffff0000, v{T+2}
v_add_f32 v{T+1}, 0x3727c5ac, v{T+1}
v_cvt_pk_bf16_f32 v{T+1}, v{T+1}, v{T+1}
v_and_b32 v{T+1}, 0xffff0000, v{T+1}
v_sqrt_f32 v{T+1}, v{T+1}
v_cvt_pk_bf16_f32 v{T+1}, v{T+1}, v{T+1}
v_and_b32 v{o_den}, 0xffff0000, v{T+1}""")

def k_row(kind, NP=1, nk=0, ch0=0):
    name = {"R1": "row1_kernel", "R2": "row2_kernel"}[kind]
    E = f"L_{name}_end"
    a = Asm()
    if nk:
        a(f"""s_add_u32 s60, s2, 256
s_sub_u32 s61, s2, {nk}
s_cmp_lt_u32 s2, {nk}
s_cselect_b32 s61, s60, s61
s_cmp_lt_u32 s2, {nk+256}
s_cselect_b32 s2, s61, s2""")
    a(f"""s_cmp_ge_u32 s2, 256
s_cbranch_scc1 {E}_kgen
s_setprio 3
s_load_dwordx2 s[10:11], s[0:1], 120
s_load_dwordx2 s[4:5], s[0:1], 0""")
    st = Stamps(a, {"R1": 3, "R2": 5}[kind]); st()
    xcd_remap(a, 3, 12)
    a("""v_and_b32 v1, 7, v0
v_lshrrev_b32 v2, 3, v0
s_lshl_b32 s13, s3, 3
v_add_u32 v3, s13, v1
v_lshlrev_b32 v9, 15, v2
v_lshl_add_u32 v8, v3, 2, v9
v_lshl_add_u32 v9, v3, 4, v9
s_waitcnt lgkmcnt(0)""")
    srd(a, 28, 10, WSBYTES)
    a(f"s_mov_b32 s32, {YA}")
    if kind == "R1":
        srd(a, 16, 4, MB2)
        a("""v_lshlrev_b32 v7, 10, v3
v_lshl_add_u32 v4, v2, 4, v7
buffer_load_dwordx4 v[16:19], v4, s[16:19], 0 offen
buffer_load_dword v20, v7, s[16:19], 0 offen""")
    else:
        a(f"""s_mov_b32 s33, {X2}
v_lshlrev_b32 v7, 2, v3""")
        for k in range(4):
            a(f"s_add_u32 s34, s33, {8192*k}")
            a(f"buffer_load_dword v{16+k}, v8, s[28:31], s34 offen")
        a("buffer_load_dword v20, v7, s[28:31], s33 offen")
    for k in range(4):
        a(f"s_add_u32 s34, s32, {8192*k}")
        a(f"buffer_load_dword v{12+k}, v8, s[28:31], s34 offen")
    a("""s_mov_b32 s48, 0xff
s_mov_b32 s49, 0xff
v_lshlrev_b32 v11, 5, v1
v_bfe_u32 v10, v0, 5, 1
v_lshl_add_u32 v10, v10, 8, v11
v_lshrrev_b32 v5, 6, v0
v_lshl_add_u32 v10, v5, 2, v10
s_waitcnt vmcnt(4)
v_lshlrev_b32 v20, 16, v20""")
    st()
    for k in range(4):
        lo(a, 24 + 2 * k, 16 + k); hi(a, 25 + 2 * k, 16 + k)
    def partial(P):
        for k in range(8):
            a(f"v_sub_f32 v{48+k}, v{24+k}, v{P}")
        a("v_add_f32 v40, v48, v49")
        a("v_mul_f32 v41, v48, v48")
        a("v_mul_f32 v42, v49, v49")
        for k in range(2, 8, 2):
            a(f"v_add_f32 v43, v{48+k}, v{49+k}")
            a(f"v_fmac_f32 v41, v{48+k}, v{48+k}")
            a(f"v_fmac_f32 v42, v{49+k}, v{49+k}")
            a("v_add_f32 v40, v40, v43")
        a("v_add_f32 v41, v41, v42")
    partial(20)
    row_reduce(a, 40, 41, 42, 10, 0)
    row_stats(a, 11, 0, 20, 48, 21, 22, 23)
    st()
    a("v_rcp_f32 v36, v23")
    a("s_waitcnt vmcnt(0)")
    for k in range(4):
        x0, x1 = 24 + 2 * k, 25 + 2 * k
        a(f"v_sub_f32 v51, v{x0}, v22")
        a(f"v_sub_f32 v52, v{x1}, v22")
        a("v_cvt_pk_bf16_f32 v53, v51, v52")
        lo(a, 51, 53); hi(a, 52, 53)
        for x in (51, 52):
            a(f"v_mul_f32 v54, v{x}, v36")
            a(f"v_fma_f32 v55, -v54, v23, v{x}")
            a(f"v_fma_f32 v{x}, v55, v36, v54")
        a("v_cvt_pk_bf16_f32 v53, v51, v52")
        lo(a, 51, 53); hi(a, 52, 53)
        lo(a, 54, 12 + k); hi(a, 55, 12 + k)
        a("v_mul_f32 v51, v51, v54")
        a("v_mul_f32 v52, v52, v55")
        a("v_cvt_pk_bf16_f32 v53, v51, v52")
        lo(a, 51, 53); hi(a, 52, 53)
        a(f"v_add_f32 v51, v51, v{x0}")
        a(f"v_add_f32 v52, v52, v{x1}")
        a(f"v_cvt_pk_bf16_f32 v{56+k}, v51, v52")
        lo(a, x0, 56 + k); hi(a, x1, 56 + k)
    dst = X1 if kind == "R1" else X3
    if ROW_OUT_T2:
        for k in range(4):
            a(f"s_mov_b32 s34, {dst + 8192*k}")
            a(f"buffer_store_dword v{56+k}, v8, s[28:31], s34 offen")
    else:
        a(f"s_mov_b32 s34, {dst}")
        a("buffer_store_dwordx4 v[56:59], v9, s[28:31], s34 offen")
    st()
    partial(21)
    row_reduce(a, 40, 41, 42, 10, 512)
    stt = ST1 if kind == "R1" else ST3
    a(f"""v_cmp_gt_u32 vcc, 8, v0
s_and_saveexec_b64 s[36:37], vcc
s_cbranch_execz {E}""")
    row_stats(a, 11, 512, 21, 64, 60, 61, 62)
    a(f"""v_lshrrev_b32 v61, 16, v61
v_or_b32 v61, v61, v62
v_lshlrev_b32 v7, 2, v3
s_mov_b32 s35, {stt}
buffer_store_dword v61, v7, s[28:31], s35 offen""")
    st.finish(28)
    a(f"""s_endpgm
{E}_kgen:
s_cmp_ge_u32 s2, {256+nk}
s_cbranch_scc1 {E}""")
    nv = 80
    if nk:
        a(f"s_add_u32 s55, s2, {ch0-256}")
        st2 = Stamps(a, 3)
        nv = kgen_body(a, NP, st2, 55)
    a(f"""{E}:
s_endpgm""")
    return kernel_text(name, a.text(), nv, SG(64))

KPART = 0
KPRM = 8 * 3072
KTAB0 = KPRM + 8 * 256
KGEN_LDS = KTAB0 + 2176 * 4
def kgen_body(a, NP, st, ch_sgpr):
    a(f"""s_load_dwordx8 s[4:11], s[0:1], 56
s_load_dwordx2 s[12:13], s[0:1], 88
s_load_dwordx2 s[14:15], s[0:1], 120
v_and_b32 v1, 15, v0
v_bfe_u32 v2, v0, 4, 2
v_lshrrev_b32 v3, 6, v0
s_lshl_b32 s3, s{ch_sgpr}, 8
v_lshlrev_b32 v4, 5, v3
v_lshl_add_u32 v4, v1, 1, v4
s_mov_b32 s50, 0x3fb8aa3b
s_mov_b32 s51, 0x32a57060
s_mov_b32 s52, 0x3f317218
s_mov_b32 s53, 0x3e22f983
s_mov_b32 s54, 0x07060302
v_readfirstlane_b32 s56, v3
s_waitcnt lgkmcnt(0)""")
    st()
    for i in range(4): srd(a, 16 + 4 * i, 4 + 2 * i, 131072)
    srd(a, 32, 14, WSBYTES)
    for i in range(4):
        a(f"buffer_load_ushort v{8+i}, v4, s[{16+4*i}:{19+4*i}], s3 offen")
    a(f"""s_lshr_b32 s36, s{ch_sgpr}, 1
s_lshl_b32 s36, s36, 2
s_add_u32 s12, s12, s36
s_addc_u32 s13, s13, 0
s_load_dword s37, s[12:13], 0""")
    a(f"""v_lshrrev_b32 v28, 3, v1
v_lshlrev_b32 v28, 7, v28
v_and_b32 v29, 7, v1
v_or_b32 v24, v28, v29
v_lshrrev_b32 v28, 2, v1
v_lshlrev_b32 v28, 7, v28
v_and_b32 v29, 3, v1
v_lshl_add_u32 v28, v29, 1, v28
v_add_u32 v28, 256, v28
v_bfe_u32 v29, v1, 1, 2
v_lshlrev_b32 v29, 7, v29
v_and_b32 v30, 1, v1
v_lshl_add_u32 v29, v30, 2, v29
v_add_u32 v29, 512, v29
v_cmp_gt_u32 vcc, 8, v1
v_cndmask_b32 v25, v29, v28, vcc
v_lshlrev_b32 v28, 7, v1
v_add_u32 v28, 1024, v28
v_min_u32 v26, 2048, v28
v_lshlrev_b32 v27, 3, v1
v_cvt_f32_u32 v24, v24
v_cvt_f32_u32 v25, v25
v_cvt_f32_u32 v26, v26
v_cvt_f32_u32 v27, v27
v_lshlrev_b32 v5, 8, v3
v_lshl_add_u32 v6, v1, 4, v5
v_lshl_add_u32 v5, v2, 6, v5
s_waitcnt lgkmcnt(0)
s_lshl_b32 s38, s37, 16
s_and_b32 s39, s37, 0xffff0000
s_bitcmp1_b32 s{ch_sgpr}, 0
s_cselect_b32 s38, s39, s38
v_mov_b32 v28, s38""")
    exp_acc(a, 29, 28, 30, 31)
    a("""v_cvt_pk_bf16_f32 v29, v29, v29
v_and_b32 v29, 0xffff0000, v29""")
    a("s_waitcnt vmcnt(0)")
    st()
    for i in range(4): lo(a, 8 + i, 8 + i)
    exp_acc(a, 12, 8, 30, 31)
    a(f"""v_cvt_pk_bf16_f32 v12, v12, v12
v_and_b32 v12, 0xffff0000, v12
v_mul_f32 v12, v12, v29
v_mul_f32 v12, s50, v12
v_mul_f32 v13, v9, v29
v_mul_f32 v13, s53, v13
v_mul_f32 v14, v10, v29
v_mul_f32 v15, v11, v29
v_add_f32 v14, v14, v14
v_add_f32 v15, v15, v15
ds_write_b128 v6, v[12:15] offset:{KPRM}
s_waitcnt lgkmcnt(0)""")
    for m in range(4):
        a(f"ds_read_b128 v[{8+4*m}:{11+4*m}], v5 offset:{KPRM + 16*m}")
    for m in range(4):
        a(f"s_waitcnt lgkmcnt({3-m})")
        A_, B_, CR, CI = 8 + 4 * m, 9 + 4 * m, 10 + 4 * m, 11 + 4 * m
        for T0 in (0, 2):
            for T in (T0, T0 + 1):
                b = 32 + 8 * (T & 1)
                a(f"v_mul_f32 v{b}, -v{A_}, v{24+T}")
                a(f"v_mul_f32 v{b+1}, v{B_}, v{24+T}")
                a(f"v_fract_f32 v{b+1}, v{b+1}")
            for T in (T0, T0 + 1):
                b = 32 + 8 * (T & 1)
                a(f"v_exp_f32 v{b}, v{b}")
                a(f"v_cos_f32 v{b+2}, v{b+1}")
                a(f"v_sin_f32 v{b+3}, v{b+1}")
            for T in (T0, T0 + 1):
                b = 32 + 8 * (T & 1)
                if T < 3:
                    a(f"v_mul_f32 v{b+2}, v{b+2}, v{b}")
                    a(f"v_mul_f32 v{b+3}, v{b+3}, v{b}")
                    H, L = 48 + 4 * T + m, 60 + 4 * T + m
                else:
                    a(f"v_mul_f32 v{b+4}, v{CR}, v{b}")
                    a(f"v_mul_f32 v{b+5}, v{CI}, v{b}")
                    a(f"v_mul_f32 v{b+6}, v{b+5}, v{b+3}")
                    a(f"v_mul_f32 v{b+7}, v{b+5}, v{b+2}")
                    a(f"v_fma_f32 v{b+2}, v{b+4}, v{b+2}, -v{b+6}")
                    a(f"v_fma_f32 v{b+3}, -v{b+4}, v{b+3}, -v{b+7}")
                    H, L = 72 + m, 76 + m
                a(f"v_and_b32 v{b+4}, 0xffff0000, v{b+2}")
                a(f"v_and_b32 v{b+5}, 0xffff0000, v{b+3}")
                a(f"v_perm_b32 v{H}, v{b+3}, v{b+2}, s54")
                a(f"v_sub_f32 v{b+2}, v{b+2}, v{b+4}")
                a(f"v_sub_f32 v{b+3}, v{b+3}, v{b+5}")
                a(f"v_cvt_pk_bf16_f32 v{L}, v{b+2}, v{b+3}")
    for T in range(3):
        D = 32 + 4 * T
        a(f"v_mfma_f32_16x16x32_bf16 v[{D}:{D+3}], v[{60+4*T}:{63+4*T}], v[72:75], 0")
        a(f"v_mfma_f32_16x16x32_bf16 v[{D}:{D+3}], v[{48+4*T}:{51+4*T}], v[76:79], v[{D}:{D+3}]")
        a(f"v_mfma_f32_16x16x32_bf16 v[{D}:{D+3}], v[{48+4*T}:{51+4*T}], v[72:75], v[{D}:{D+3}]")
    a("""v_and_b32 v30, 63, v0
v_lshlrev_b32 v30, 4, v30
v_mul_u32_u24 v31, 3072, v3
v_add_u32 v31, v31, v30""")
    a("""v_and_b32 v7, 3, v0
v_lshrrev_b32 v5, 2, v0
v_lshl_add_u32 v4, v5, 3, v7""")
    for it in range(2):
        a(f"v_add_u32 v{8+2*it}, {1024*it}, v4")
        a(f"v_add_u32 v{9+2*it}, {1024*it+4}, v4")
    for k in range(4): a(f"v_cvt_f32_u32 v{8+k}, v{8+k}")
    for k in range(0, 4, 2):
        a(f"v_cvt_pk_bf16_f32 v17, v{8+k}, v{9+k}")
        lo(a, 8 + k, 17); hi(a, 9 + k, 17)
    for k in range(4):
        a(f"v_cvt_u32_f32 v{8+k}, v{8+k}")
        a(f"v_lshlrev_b32 v{8+k}, 2, v{8+k}")
    a(f"""s_lshl_b32 s42, s{ch_sgpr}, {11+NP}
s_add_u32 s42, s42, {KW}
v_lshlrev_b32 v4, 10, v7
v_lshl_add_u32 v4, v5, 2, v4""")
    for T in range(3):
        a(f"ds_write_b128 v31, v[{32+4*T}:{35+4*T}] offset:{KPART + 1024*T}")
    a("""s_waitcnt lgkmcnt(0)
s_barrier""")
    st()
    global _LBL
    _LBL += 1
    L = f"L_kg{_LBL}"
    a(f"""s_cmp_ge_u32 s56, 3
s_cbranch_scc1 {L}_skip
s_lshl_b32 s57, s56, 10
v_add_u32 v30, s57, v30""")
    for w in range(8):
        a(f"ds_read_b128 v[{32+4*w}:{35+4*w}], v30 offset:{KPART + 3072*w}")
    a("v_lshlrev_b32 v65, 5, v1")
    a("s_waitcnt lgkmcnt(0)")
    for r in range(4):
        a(f"""v_add_f32 v{32+r}, v{32+r}, v{36+r}
v_add_f32 v{40+r}, v{40+r}, v{44+r}
v_add_f32 v{48+r}, v{48+r}, v{52+r}
v_add_f32 v{56+r}, v{56+r}, v{60+r}
v_add_f32 v{32+r}, v{32+r}, v{40+r}
v_add_f32 v{48+r}, v{48+r}, v{56+r}
v_add_f32 v{32+r}, v{32+r}, v{48+r}""")
    a(f"""s_cmp_eq_u32 s56, 1
s_cbranch_scc1 {L}_t1
s_cmp_eq_u32 s56, 2
s_cbranch_scc1 {L}_t2
v_lshrrev_b32 v64, 1, v2
v_lshlrev_b32 v64, 9, v64
v_and_b32 v66, 1, v2
v_lshl_add_u32 v64, v66, 4, v64
v_add_u32 v64, v65, v64
ds_write_b128 v64, v[32:35] offset:{KTAB0}
s_branch {L}_skip
{L}_t1:
v_lshlrev_b32 v64, 9, v2
v_add_u32 v64, 1024, v64
v_lshlrev_b32 v66, 10, v2
v_cmp_gt_u32 vcc, 2, v2
v_cndmask_b32 v64, v66, v64, vcc
v_add_u32 v64, v65, v64
ds_write_b32 v64, v32 offset:{KTAB0}
v_mov_b32 v67, 16
v_cndmask_b32 v66, v67, 8, vcc
v_add_u32 v66, v64, v66
ds_write_b32 v66, v33 offset:{KTAB0}
v_mov_b32 v67, 512
v_cndmask_b32 v66, v67, 16, vcc
v_add_u32 v66, v64, v66
ds_write_b32 v66, v34 offset:{KTAB0}
v_mov_b32 v67, 528
v_cndmask_b32 v66, v67, 24, vcc
v_add_u32 v66, v64, v66
ds_write_b32 v66, v35 offset:{KTAB0}
s_branch {L}_skip
{L}_t2:
v_lshlrev_b32 v64, 11, v2
v_add_u32 v64, v65, v64
v_cmp_gt_u32 vcc, 3, v2
s_and_saveexec_b64 s[40:41], vcc
ds_write_b32 v64, v32 offset:{KTAB0+4096}
s_mov_b64 exec, s[40:41]
v_cmp_gt_u32 vcc, 2, v2
s_and_saveexec_b64 s[40:41], vcc
ds_write_b32 v64, v33 offset:{KTAB0+4608}
ds_write_b32 v64, v34 offset:{KTAB0+5120}
ds_write_b32 v64, v35 offset:{KTAB0+5632}
s_mov_b64 exec, s[40:41]
{L}_skip:
s_waitcnt lgkmcnt(0)
s_barrier""")
    st()
    for k in range(4):
        a(f"ds_read_b32 v{20+k}, v{8+k} offset:{KTAB0}")
    a("s_waitcnt lgkmcnt(0)")
    for it in range(2):
        a(f"v_cvt_pk_bf16_f32 v{16+it}, v{20+2*it}, v{21+2*it}")
        a(f"buffer_store_dword v{16+it}, v4, s[32:35], s42 offen offset:{512*it}")
        if NP == 2:
            lo(a, 24, 16 + it); hi(a, 25, 16 + it)
            a(f"v_sub_f32 v24, v{20+2*it}, v24")
            a(f"v_sub_f32 v25, v{21+2*it}, v25")
            a(f"v_cvt_pk_bf16_f32 v{18+it}, v24, v25")
    if NP == 2:
        a("s_add_u32 s42, s42, 4096")
        for it in range(2):
            a(f"buffer_store_dword v{18+it}, v4, s[32:35], s42 offen offset:{512*it}")
    st.finish(32)
    return 80

def k_front(NP, nk=256, ch0=256, kfirst=False):
    name = "front_kernel"
    a = Asm()
    E = f"L_{name}"
    if kfirst and nk:
        a(f"""s_add_u32 s60, s2, 256
s_sub_u32 s61, s2, {nk}
s_cmp_lt_u32 s2, {nk}
s_cselect_b32 s61, s60, s61
s_cmp_lt_u32 s2, {nk+256}
s_cselect_b32 s2, s61, s2""")
    a(f"""s_cmp_ge_u32 s2, 256
s_cbranch_scc1 {E}_kgen
s_setprio 3
s_load_dwordx2 s[10:11], s[0:1], 120""")
    st = Stamps(a, 2)
    nv1 = conv_body(a, "A", 1, st, E, False)
    a(f"""s_endpgm
{E}_kgen:
s_cmp_ge_u32 s2, {256+nk}
s_cbranch_scc1 {E}_end
s_add_u32 s55, s2, {ch0-256}""")
    st2 = Stamps(a, 1)
    nv2 = kgen_body(a, NP, st2, 55)
    a(f"""{E}_end:
s_endpgm""")
    return kernel_text(name, a.text(), max(nv1, nv2), SG(64))
```

```python
import sys
import kern
from asmlib import *
def build(path, NP=2, merged=True, diag=False, dbufB=True, nk1=256, kf1=False, kf2=False, nk3=0, optp=True, kvprio=True, stmod='', pf=0):
    kern.DIAG = diag
    import kern2 as k2
    k2.ROW_OUT_T2 = optp
    k2.KV_T2 = (nk1 + nk3 == 512)
    k2.KV_PRIO = kvprio
    k2.CODE_PREFETCH = pf
    hdr = [l.rstrip("\n") for l in open("header.txt") if "Override launch" not in l and "grid=ceil" not in l]
    FL = max(k2.CONV_LDS(1), k2.KGEN_LDS)
    BL = k2.PCONV_LDS(NP) if optp else k2.CONV_LDS(NP)
    ks = [k2.k_kv(NP, nk1, kf1)]
    L = [("kv_kernel", 256 + nk1, 512, k2.KGEN_LDS if nk1 else 0)]
    if nk1 + nk3 == 512:
        ks.append(k2.k_conv("A", 1, True, True)); L.append(("convA_kernel", 256, 512, k2.PCONV_LDS(1)))
    else:
      ks.append(k2.k_front(NP, 512 - nk1 - nk3, nk1, kf2)); L.append(("front_kernel", 256 + 512 - nk1 - nk3, 512, FL))
    ks += [k2.k_row("R1", NP, nk3, 512 - nk3), k2.k_conv("B1", NP, dbufB, optp), k2.k_row("R2"), k2.k_conv("B2", NP, dbufB, optp)]
    L += [("row1_kernel", 256 + nk3, 512, k2.KGEN_LDS if nk3 else 1024), ("convB1_kernel", 256, 512, BL), ("row2_kernel", 256, 512, 1024), ("convB2_kernel", 256, 512, BL)]
    txt = file_text(hdr, L, ks)
    if stmod:
        import re
        txt = re.sub(r"(buffer_store_dword\S* [^\n]*)", lambda m: m.group(1) + " " + stmod, txt)
    open(path, "w").write(txt)
if __name__ == "__main__":
    build("v4.s", NP=1, kf1=True, nk1=512)
    build("v4_pf.s", NP=1, kf1=True, nk1=512, pf=17408)
```

```python
from asmlib import *

KVT, YA, X1, X2, X3, ST1, ST3, KW = 0x0, 0x200000, 0x400000, 0x600000, 0x800000, 0xA00000, 0xA10000, 0xC00000
WSBYTES = 0x10000000
MB2 = 2097152

def srd(a, d, base, nbytes):
    a(f"""s_mov_b32 s{d}, s{base}
s_and_b32 s{d+1}, s{base+1}, 0xffff
s_mov_b32 s{d+2}, {nbytes}
s_mov_b32 s{d+3}, 0x00020000""")

def lo(a, d, s): a(f"v_lshlrev_b32 v{d}, 16, v{s}")
def hi(a, d, s): a(f"v_and_b32 v{d}, 0xffff0000, v{s}")

def xcd_remap(a, sd, stmp):
    a(f"""s_and_b32 s{sd}, s2, 7
s_lshl_b32 s{sd}, s{sd}, 5
s_lshr_b32 s{stmp}, s2, 3
s_add_u32 s{sd}, s{sd}, s{stmp}""")

DIAG = False
DIAGBASE = 0x1000000
class Stamps:
    def __init__(self, a, kid):
        self.a = a; self.kid = kid; self.n = 0
        if DIAG: a("s_memrealtime s[64:65]")
    def __call__(self):
        if DIAG:
            self.a(f"s_memtime s[{68+2*self.n}:{69+2*self.n}]"); self.a("s_waitcnt lgkmcnt(0)"); self.n += 1
    def finish(self, ws_srd):
        if not DIAG: return
        a = self.a
        a("s_waitcnt vmcnt(0)")
        self()
        a("s_memrealtime s[66:67]")
        a("s_waitcnt lgkmcnt(0)")
        a("s_mov_b64 exec, 1")
        a(f"s_lshl_b32 s62, s2, 7")
        a(f"s_add_u32 s62, s62, {DIAGBASE + self.kid * 0x20000}")
        a("v_lshrrev_b32 v1, 6, v0")
        a("v_lshlrev_b32 v1, 24, v1")
        a("v_lshlrev_b32 v1, 4, v1")
        regs = [64, 66] + [68 + 2 * i for i in range(self.n)]
        for i, r in enumerate(regs):
            a(f"v_mov_b32 v2, s{r}")
            a(f"buffer_store_dword v2, v1, s[{ws_srd}:{ws_srd+3}], s62 offen offset:{4*i}")
        if self.kid == 6:
            a("""s_cmp_lg_u32 s2, 0
s_cbranch_scc1 L_dbgdone
s_load_dwordx2 s[92:93], s[0:1], 112
s_waitcnt lgkmcnt(0)
s_mov_b32 s88, s92
s_and_b32 s89, s93, 0xffff
s_mov_b32 s90, 256
s_mov_b32 s91, 0x00020000""")
            srcs = [(0, 0), (0, 256), (2, 0), (3, 0), (4, 0), (5, 0)]
            for i, (kid, wg) in enumerate(srcs):
                a(f"s_mov_b32 s62, {DIAGBASE + kid * 0x20000 + wg * 128}")
                a(f"buffer_load_dwordx2 v[4:5], v1, s[{ws_srd}:{ws_srd+3}], s62 offen")
                a("s_waitcnt vmcnt(0)")
                a(f"buffer_store_dwordx2 v[4:5], v1, s[88:91], 0 offen offset:{8*i}")
                a("s_waitcnt vmcnt(0)")
            a("v_mov_b32 v4, s64")
            a("v_mov_b32 v5, s66")
            a(f"buffer_store_dwordx2 v[4:5], v1, s[88:91], 0 offen offset:{8*len(srcs)}")
            a("L_dbgdone:")

def k_kv():
    a = Asm()
    a("""s_cmp_ge_u32 s2, 256
s_cbranch_scc1 L_kv_end
s_load_dwordx4 s[4:7], s[0:1], 8
s_load_dwordx2 s[8:9], s[0:1], 24
s_load_dwordx2 s[10:11], s[0:1], 120""")
    st = Stamps(a, 0); st()
    xcd_remap(a, 3, 12)
    a("""v_and_b32 v1, 255, v0
v_lshrrev_b32 v2, 8, v0
s_lshl_b32 s13, s3, 3
v_lshl_add_u32 v3, v2, 2, s13
v_lshlrev_b32 v4, 10, v3
v_lshl_add_u32 v4, v1, 2, v4
v_subrev_u32 v5, 3072, v4
v_subrev_u32 v6, 2048, v4
v_subrev_u32 v7, 1024, v4
v_lshlrev_b32 v8, 4, v1
v_lshlrev_b32 v9, 13, v1
v_lshl_add_u32 v9, v3, 2, v9
s_waitcnt lgkmcnt(0)""")
    srd(a, 16, 4, MB2); srd(a, 20, 6, MB2); srd(a, 24, 8, 4096); srd(a, 28, 10, WSBYTES)
    a("""buffer_load_dwordx4 v[24:27], v8, s[24:27], 0 offen
buffer_load_dword v10, v5, s[16:19], 0 offen
buffer_load_dword v11, v6, s[16:19], 0 offen
buffer_load_dword v12, v7, s[16:19], 0 offen
buffer_load_dword v13, v4, s[16:19], 0 offen
buffer_load_dword v14, v4, s[16:19], 0 offen offset:1024
buffer_load_dword v15, v4, s[16:19], 0 offen offset:2048
buffer_load_dword v16, v4, s[16:19], 0 offen offset:3072
buffer_load_dword v17, v4, s[20:23], 0 offen
buffer_load_dword v18, v4, s[20:23], 0 offen offset:1024
buffer_load_dword v19, v4, s[20:23], 0 offen offset:2048
buffer_load_dword v20, v4, s[20:23], 0 offen offset:3072
s_waitcnt vmcnt(11)""")
    for ch in range(2):
        lo(a, 28 + 4 * ch + 0, 24 + 2 * ch); hi(a, 28 + 4 * ch + 1, 24 + 2 * ch)
        lo(a, 28 + 4 * ch + 2, 25 + 2 * ch); hi(a, 28 + 4 * ch + 3, 25 + 2 * ch)
    a("s_waitcnt vmcnt(4)")
    for i in range(7):
        lo(a, 36 + i, 10 + i); hi(a, 44 + i, 10 + i)
    a("s_waitcnt vmcnt(0)")
    st()
    for r in range(4):
        for t in range(4):
            w = 3 - t
            a(f"v_mul_f32 v54, v{36+r+t}, v{28+w}")
            a(f"v_mul_f32 v55, v{44+r+t}, v{32+w}")
            a("v_cvt_pk_bf16_f32 v56, v54, v55")
            if t == 0:
                lo(a, 52, 56); hi(a, 53, 56)
            else:
                lo(a, 54, 56); hi(a, 55, 56)
                a("v_add_f32 v52, v52, v54")
                a("v_add_f32 v53, v53, v55")
                a("v_cvt_pk_bf16_f32 v56, v52, v53")
                lo(a, 52, 56); hi(a, 53, 56)
        lo(a, 54, 17 + r); hi(a, 55, 17 + r)
        a("v_mul_f32 v52, v52, v54")
        a("v_mul_f32 v53, v53, v55")
        a(f"v_cvt_pk_bf16_f32 v{60+r}, v52, v53")
    st()
    a("buffer_store_dwordx4 v[60:63], v9, s[28:31], 0 offen")
    st.finish(28)
    a("""L_kv_end:
s_endpgm""")
    return kernel_text("kv_kernel", a.text(), 64, 100 if DIAG else 40)

XLS = 4160
WL0 = 2 * XLS
WAS = 1152
EX0 = 26880
TS = 1216
WSTR = 8 * TS
CONV_LDS = EX0 + 8 * WSTR

class LdsQ:
    def __init__(self, a):
        self.a = a; self.q = []; self.done = 0
    def issue(self, text, dst):
        self.a(text); self.q.append(set(dst))
    def need(self, regs):
        regs = set(regs)
        idx = -1
        for i, d in enumerate(self.q):
            if d & regs: idx = i
        if idx >= self.done:
            n = len(self.q) - 1 - idx
            n = min(n, 15)
            self.a(f"s_waitcnt lgkmcnt({n})")
            self.done = len(self.q) - n

def k_conv(kind, NP):
    name = {"A": "convA_kernel", "B1": "convB1_kernel", "B2": "convB2_kernel"}[kind]
    if kind == "A": NP = 1
    a = Asm()
    E = f"L_{name}_end"
    a(f"""s_cmp_ge_u32 s2, 256
s_cbranch_scc1 {E}
s_load_dwordx2 s[10:11], s[0:1], 120""")
    if kind == "A":
        a("s_load_dwordx4 s[4:7], s[0:1], 32")
    else:
        a("s_load_dwordx4 s[4:7], s[0:1], 96")
    st = Stamps(a, {"A": 2, "B1": 4, "B2": 6}[kind]); st()
    xcd_remap(a, 3, 12)
    a("""v_lshrrev_b32 v1, 6, v0
v_and_b32 v2, 63, v0
v_lshlrev_b32 v3, 4, v0
s_nop 0
v_readfirstlane_b32 s14, v1
s_lshl_b32 s13, s3, 13
s_lshl_b32 s15, s3, 2
s_waitcnt lgkmcnt(0)""")
    srd(a, 28, 10, WSBYTES)
    src = {"A": KVT, "B1": X1, "B2": X3}[kind]
    a(f"s_add_u32 s32, s13, {src}")
    a("buffer_load_dwordx4 v[4:7], v3, s[28:31], s32 offen")
    if kind == "A":
        srd(a, 16, 4, MB2)
        a("buffer_load_dwordx4 v[48:51], v3, s[16:19], s13 offen")
        a("s_add_u32 s6, s6, s15")
        a("s_addc_u32 s7, s7, 0")
        a("s_load_dword s33, s[6:7], 0")
    else:
        stt = {"B1": ST1, "B2": ST3}[kind]
        a(f"s_mov_b32 s34, {stt}")
        a("buffer_load_dwordx4 v[48:51], v3, s[28:31], s34 offen")
        a("s_lshl_b32 s35, s3, 14")
        a(f"s_add_u32 s35, s35, {KW}")
        if NP == 2:
            a("v_lshlrev_b32 v60, 5, v0")
            a("buffer_load_dwordx4 v[52:55], v60, s[28:31], s35 offen")
            a("buffer_load_dwordx4 v[56:59], v60, s[28:31], s35 offen offset:16")
        else:
            a("""v_lshrrev_b32 v60, 8, v0
v_lshlrev_b32 v60, 13, v60
v_and_b32 v61, 255, v0
v_lshl_add_u32 v60, v61, 4, v60
buffer_load_dwordx4 v[52:55], v60, s[28:31], s35 offen""")
        a("s_add_u32 s4, s4, s15")
        a("s_addc_u32 s5, s5, 0")
        a("s_load_dword s33, s[4:5], 0")
        if kind == "B2":
            srd(a, 20, 6, MB2)
    na = 8 * NP
    a(f"""v_mov_b32 v64, 0
v_mov_b32 v65, 0
v_mov_b32 v66, 0
v_mov_b32 v67, 0
v_lshrrev_b32 v61, 3, v0
v_mul_u32_u24 v61, {WAS}, v61
v_and_b32 v62, 7, v0
v_lshl_add_u32 v61, v62, 4, v61
v_add_u32 v61, {WL0}, v61
v_cmp_gt_u32 vcc, {na*8}, v0
s_and_saveexec_b64 s[36:37], vcc
ds_write_b128 v61, v[64:67]
s_mov_b64 exec, s[36:37]
v_lshrrev_b32 v61, 1, v0
v_mul_u32_u24 v61, {XLS}, v61
v_and_b32 v62, 1, v0
v_lshl_add_u32 v61, v62, 4, v61
v_cmp_gt_u32 vcc, 4, v0
s_and_saveexec_b64 s[36:37], vcc
ds_write_b128 v61, v[64:67]
s_mov_b64 exec, s[36:37]
v_mul_u32_u24 v61, {WSTR}, v1
v_add_u32 v61, {EX0 + 16*16}, v61
v_cmp_eq_u32 vcc, 0, v2
s_and_saveexec_b64 s[36:37], vcc
ds_write_b128 v61, v[64:67]
s_mov_b64 exec, s[36:37]
s_mov_b32 s38, 0x05040100
s_mov_b32 s39, 0x07060302""")
    a(f"""s_lshr_b32 s40, s14, 2
s_and_b32 s41, s14, 3
s_mul_i32 s42, s40, {XLS}
s_mul_i32 s43, s40, {NP*4*WAS}
s_mul_i32 s44, s41, {WAS}
s_add_u32 s43, s43, s44
s_add_u32 s43, s43, {WL0 + 56}
s_add_u32 s42, s42, 32
v_lshrrev_b32 v70, 4, v2
v_and_b32 v71, 3, v2
v_bfe_u32 v72, v2, 2, 2
v_sub_u32 v71, v71, v72
v_lshlrev_b32 v71, 3, v71
v_lshl_add_u32 v71, v70, 6, v71
v_add_u32 v12, s42, v71
v_and_b32 v71, 15, v2
v_lshlrev_b32 v71, 3, v71
v_lshlrev_b32 v72, 4, v70
v_sub_u32 v71, v71, v72
v_add_u32 v13, s43, v71""")
    VXA, VWB, ACC = 12, 13, 16
    for i in range(32): a(f"v_mov_b32 v{ACC+i}, 0")
    if kind == "A":
        a("s_waitcnt vmcnt(0)")
        st()
        XS = 4
        a(f"""v_perm_b32 v64, v50, v48, s38
v_perm_b32 v65, v50, v48, s39
v_perm_b32 v66, v51, v49, s38
v_perm_b32 v67, v51, v49, s39
v_lshrrev_b32 v61, 8, v0
v_mul_u32_u24 v61, {4*WAS}, v61
v_and_b32 v62, 255, v0
v_lshl_add_u32 v61, v62, 2, v61
ds_write_b32 v61, v64 offset:{WL0+128}
ds_write_b32 v61, v65 offset:{WL0+128+WAS}
ds_write_b32 v61, v66 offset:{WL0+128+2*WAS}
ds_write_b32 v61, v67 offset:{WL0+128+3*WAS}""")
    else:
        if NP == 2:
            a(f"""v_lshrrev_b32 v61, 5, v0
v_mul_u32_u24 v61, {WAS}, v61
v_and_b32 v62, 31, v0
v_lshl_add_u32 v61, v62, 5, v61
s_waitcnt vmcnt(2)""")
        else:
            a(f"""v_lshrrev_b32 v61, 6, v0
v_mul_u32_u24 v61, {WAS}, v61
v_lshl_add_u32 v61, v2, 4, v61
s_waitcnt vmcnt(1)""")
        st()
        for r in range(4):
            lo(a, 72, 48 + r); hi(a, 73, 48 + r)
            a("v_rcp_f32 v74, v73")
            lo(a, 75, 4 + r); hi(a, 76, 4 + r)
            a("v_sub_f32 v75, v75, v72")
            a("v_sub_f32 v76, v76, v72")
            a("v_cvt_pk_bf16_f32 v77, v75, v76")
            lo(a, 75, 77); hi(a, 76, 77)
            for x in (75, 76):
                a(f"v_mul_f32 v78, v{x}, v74")
                a(f"v_fma_f32 v79, -v78, v73, v{x}")
                a(f"v_fma_f32 v{x}, v79, v74, v78")
            a(f"v_cvt_pk_bf16_f32 v{8+r}, v75, v76")
        XS = 8
        a(f"""s_waitcnt vmcnt(0)
ds_write_b128 v61, v[52:55] offset:{WL0+128}""")
        if NP == 2:
            a(f"ds_write_b128 v61, v[56:59] offset:{WL0+128+16}")
    a(f"""v_perm_b32 v64, v{XS+1}, v{XS}, s38
v_perm_b32 v65, v{XS+3}, v{XS+2}, s38
v_perm_b32 v66, v{XS+1}, v{XS}, s39
v_perm_b32 v67, v{XS+3}, v{XS+2}, s39
v_lshlrev_b32 v61, 3, v0
ds_write_b64 v61, v[64:65] offset:32
ds_write_b64 v61, v[66:67] offset:{XLS+32}
s_waitcnt lgkmcnt(0)
s_barrier""")
    st()
    F0 = 48
    FA = [F0, F0 + 32 + 32 * NP]
    FB = [F0 + 32, F0 + 32 + 32 * NP + 32]
    q = LdsQ(a)
    def rdA(rho, aa):
        out = []
        for hh in range(2):
            d = FA[rho] + 4 * aa + 2 * hh
            out.append((f"ds_read_b64_tr_b16 v[{d}:{d+1}], v{VXA} offset:{512*aa + 256*rho + 32*hh}", [d, d + 1]))
        return out
    def rdB(rho, e, p):
        out = []
        for hh in range(2):
            d = FB[rho] + 32 * p + 4 * e + 2 * hh
            out.append((f"ds_read_b64 v[{d}:{d+1}], v{VWB} offset:{128*e + 64*(1-rho) + 8*(1-hh) + p*4*WAS}", [d, d + 1]))
        return out
    def reads(rho):
        r = rdA(rho, 0)
        for e in range(8):
            for p in range(NP): r += rdB(rho, e, p)
        for aa in range(1, 8): r += rdA(rho, aa)
        return r
    def mfmas(rho):
        m = []
        for aa in range(8):
            for e in range(8 - aa):
                for p in range(NP):
                    c = aa + e
                    A = FA[rho] + 4 * aa; B = FB[rho] + 32 * p + 4 * e; D = ACC + 4 * c
                    m.append((f"v_mfma_f32_16x16x32_bf16 v[{D}:{D+3}], v[{A}:{A+3}], v[{B}:{B+3}], v[{D}:{D+3}]", list(range(A, A + 4)) + list(range(B, B + 4))))
        return m
    for t, d in reads(0): q.issue(t, d)
    r1 = reads(1)
    for t, d in mfmas(0):
        q.need(d); a(t)
        for _ in range(2):
            if r1:
                tt, dd = r1.pop(0); q.issue(tt, dd)
    for tt, dd in r1: q.issue(tt, dd)
    for t, d in mfmas(1):
        q.need(d); a(t)
    st()
    a(f"""v_and_b32 v48, 15, v2
v_lshrrev_b32 v49, 4, v2
v_mul_u32_u24 v49, 20, v49
v_add_u32 v48, v48, v49
v_lshlrev_b32 v48, 4, v48
s_mul_i32 s44, s14, {WSTR}
v_add_u32 v48, s44, v48""")
    for c in range(8):
        a(f"ds_write_b128 v48, v[{ACC+4*c}:{ACC+4*c+3}] offset:{EX0 + c*TS}")
    a(f"""v_lshrrev_b32 v50, 2, v2
v_and_b32 v51, 3, v2
v_mul_u32_u24 v51, 20, v51
v_add_u32 v50, v50, v51
v_lshlrev_b32 v50, 4, v50
s_mul_i32 s44, s14, {TS}
v_add_u32 v50, s44, v50
v_subrev_u32 v52, 1, v2
v_lshrrev_b32 v51, 2, v52
v_and_b32 v52, 3, v52
v_mul_u32_u24 v52, 20, v52
v_add_u32 v51, v51, v52
v_lshlrev_b32 v51, 4, v51
v_add_u32 v51, s44, v51
s_sub_u32 s45, s44, {TS - 75*16}
s_cmp_eq_u32 s14, 0
s_cselect_b32 s45, {16*16}, s45
v_mov_b32 v52, s45
v_cmp_eq_u32 vcc, 0, v2
v_cndmask_b32 v51, v51, v52, vcc
v_add_u32 v50, {EX0}, v50
v_add_u32 v51, {EX0}, v51
v_add_u32 v52, {4*WSTR}, v50
v_add_u32 v53, {4*WSTR}, v51
s_waitcnt lgkmcnt(0)
s_barrier""")
    st()
    for w in range(8):
        b = 50 if w < 4 else 52
        a(f"ds_read_b128 v[{80+4*w}:{83+4*w}], v{b} offset:{(w&3)*WSTR}")
    for w in range(8):
        if w & 3 == 0: continue
        b = 51 if w < 4 else 53
        a(f"ds_read_b128 v[{112+4*w}:{115+4*w}], v{b} offset:{(w&3)*WSTR}")
    a("s_waitcnt lgkmcnt(0)")
    for ch in range(2):
        cur = lambda d, i: 80 + 4 * (4 * ch + d) + i
        prv = lambda d, i: 112 + 4 * (4 * ch + d) + i
        for r in range(4):
            t = [cur(0, r)]
            for d in range(1, 4):
                t.append(cur(d, r - d) if r - d >= 0 else prv(d, 4 + r - d))
            y = 48 + 4 * ch + r
            a(f"v_add_f32 v{y}, v{t[0]}, v{t[1]}")
            a(f"v_add_f32 v60, v{t[2]}, v{t[3]}")
            a(f"v_add_f32 v{y}, v{y}, v60")
    a("""s_lshl_b32 s46, s33, 16
s_and_b32 s47, s33, 0xffff0000""")
    for r in range(4):
        a(f"v_cvt_pk_bf16_f32 v60, v{48+r}, v{52+r}")
        lo(a, 61, 60); hi(a, 62, 60)
        lo(a, 63, XS + r); hi(a, 64, XS + r)
        a("v_mul_f32 v63, s46, v63")
        a("v_mul_f32 v64, s47, v64")
        a("v_cvt_pk_bf16_f32 v60, v63, v64")
        lo(a, 63, 60); hi(a, 64, 60)
        a("v_add_f32 v61, v61, v63")
        a("v_add_f32 v62, v62, v64")
        if kind == "A":
            a(f"v_cvt_pk_bf16_f32 v{68+r}, v61, v62")
        else:
            a("v_cvt_pk_bf16_f32 v60, v61, v62")
            lo(a, 61, 60); hi(a, 62, 60)
            lo(a, 63, 4 + r); hi(a, 64, 4 + r)
            a("v_add_f32 v61, v61, v63")
            a("v_add_f32 v62, v62, v64")
            a(f"v_cvt_pk_bf16_f32 v{68+r}, v61, v62")
    st()
    if kind in ("A", "B1"):
        dst = YA if kind == "A" else X2
        a(f"s_add_u32 s32, s13, {dst}")
        a("buffer_store_dwordx4 v[68:71], v3, s[28:31], s32 offen")
    else:
        a("v_lshlrev_b32 v60, 12, v0")
        for r in range(4):
            a(f"buffer_store_dword v{68+r}, v60, s[20:23], s15 offen offset:{1024*r}")
    st.finish(28)
    a(f"""{E}:
s_endpgm""")
    nv = max(F0 + 2 * (32 + 32 * NP), 144)
    return kernel_text(name, a.text(), nv, 100 if DIAG else 64)

def reduce8(a, V, tmpaddr, ldsoff):
    for i in range(4):
        a(f"v_permlane32_swap_b32 v{V+i}, v{V+i+4}")
        a(f"v_add_f32 v{V+i}, v{V+i}, v{V+i+4}")
    for i in range(2):
        a(f"v_permlane16_swap_b32 v{V+i}, v{V+i+2}")
        a(f"v_add_f32 v{V+i}, v{V+i}, v{V+i+2}")
    for sh in (8, 4, 2, 1):
        for i in range(2):
            a(f"v_add_f32_dpp v{V+i}, v{V+i}, v{V+i} row_ror:{sh} row_mask:0xf bank_mask:0xf")
    a(f"""s_mov_b64 exec, s[48:49]
ds_write_b64 v{tmpaddr}, v[{V}:{V+1}] offset:{ldsoff}
s_mov_b64 exec, -1
s_waitcnt lgkmcnt(0)
s_barrier""")

def stats_from_lds(a, rdaddr, ldsoff, piv, T, out_mean_f32, out_m, out_den):
    for w in range(4):
        a(f"ds_read2_b32 v[{T+2*w}:{T+2*w+1}], v{rdaddr} offset0:{(ldsoff + 32*w)//4} offset1:{(ldsoff + 32*w)//4 + 4}")
    a(f"""s_waitcnt lgkmcnt(0)
v_add_f32 v{T}, v{T}, v{T+2}
v_add_f32 v{T+4}, v{T+4}, v{T+6}
v_add_f32 v{T+1}, v{T+1}, v{T+3}
v_add_f32 v{T+5}, v{T+5}, v{T+7}
v_add_f32 v{T}, v{T}, v{T+4}
v_add_f32 v{T+1}, v{T+1}, v{T+5}
v_mul_f32 v{T}, 0x3b000000, v{T}
v_mul_f32 v{T+1}, 0x3b000000, v{T+1}
v_add_f32 v{out_mean_f32}, v{piv}, v{T}
v_fma_f32 v{T+1}, -v{T}, v{T}, v{T+1}
v_max_f32 v{T+1}, 0, v{T+1}
v_cvt_pk_bf16_f32 v{T+2}, v{out_mean_f32}, v{T+1}
v_lshlrev_b32 v{out_m}, 16, v{T+2}
v_and_b32 v{T+1}, 0xffff0000, v{T+2}
v_add_f32 v{T+1}, 0x3727c5ac, v{T+1}
v_cvt_pk_bf16_f32 v{T+1}, v{T+1}, v{T+1}
v_and_b32 v{T+1}, 0xffff0000, v{T+1}
v_sqrt_f32 v{T+1}, v{T+1}
v_cvt_pk_bf16_f32 v{T+1}, v{T+1}, v{T+1}
v_and_b32 v{out_den}, 0xffff0000, v{T+1}""")

def bcast_quad(a, dst, src, r):
    a(f"v_mov_b32_dpp v{dst}, v{src} quad_perm:[{r},{r},{r},{r}] row_mask:0xf bank_mask:0xf")

def k_row(kind):
    name = {"R1": "row1_kernel", "R2": "row2_kernel"}[kind]
    E = f"L_{name}_end"
    a = Asm()
    a(f"""s_cmp_ge_u32 s2, 256
s_cbranch_scc1 {E}
s_load_dwordx2 s[10:11], s[0:1], 120
s_load_dwordx2 s[4:5], s[0:1], 0""")
    st = Stamps(a, {"R1": 3, "R2": 5}[kind]); st()
    xcd_remap(a, 3, 12)
    a("""v_and_b32 v1, 255, v0
v_lshrrev_b32 v2, 8, v0
s_lshl_b32 s13, s3, 3
v_lshl_add_u32 v3, v2, 2, s13
v_lshlrev_b32 v9, 13, v1
v_lshl_add_u32 v9, v3, 2, v9
v_and_b32 v5, 3, v0
v_add_u32 v6, v3, v5
s_waitcnt lgkmcnt(0)""")
    srd(a, 28, 10, WSBYTES)
    a(f"s_mov_b32 s32, {YA}")
    a("buffer_load_dwordx4 v[12:15], v9, s[28:31], s32 offen")
    if kind == "R1":
        srd(a, 16, 4, MB2)
        a("""v_lshlrev_b32 v4, 10, v3
v_lshl_add_u32 v4, v1, 2, v4
buffer_load_dword v16, v4, s[16:19], 0 offen
buffer_load_dword v17, v4, s[16:19], 0 offen offset:1024
buffer_load_dword v18, v4, s[16:19], 0 offen offset:2048
buffer_load_dword v19, v4, s[16:19], 0 offen offset:3072
v_lshlrev_b32 v7, 10, v6
buffer_load_dword v20, v7, s[16:19], 0 offen""")
    else:
        a(f"""s_mov_b32 s33, {X2}
buffer_load_dwordx4 v[16:19], v9, s[28:31], s33 offen
v_lshlrev_b32 v7, 2, v6
buffer_load_dword v20, v7, s[28:31], s33 offen""")
    a("""s_mov_b32 s48, 0x00010001
s_mov_b32 s49, 0x00010001
v_lshrrev_b32 v10, 4, v0
v_lshlrev_b32 v10, 3, v10
v_lshlrev_b32 v11, 7, v2
v_lshl_add_u32 v11, v5, 2, v11
s_waitcnt vmcnt(0)
v_lshlrev_b32 v20, 16, v20""")
    st()
    for r in range(4): bcast_quad(a, 24 + r, 20, r)
    for r in range(4):
        lo(a, 28 + r, 16 + r); hi(a, 32 + r, 16 + r)
    def partial(P):
        for r in range(4):
            a(f"v_sub_f32 v48, v{28+r}, v{P+r}")
            a(f"v_sub_f32 v49, v{32+r}, v{P+r}")
            a(f"v_add_f32 v{40+r}, v48, v49")
            a(f"v_mul_f32 v{44+r}, v48, v48")
            a(f"v_fmac_f32 v{44+r}, v49, v49")
    partial(24)
    reduce8(a, 40, 10, 0)
    stats_from_lds(a, 11, 0, 20, 48, 21, 22, 23)
    st()
    a("v_rcp_f32 v36, v23")
    for r in range(4):
        bcast_quad(a, 24 + r, 21, r)
    for r in range(4):
        bcast_quad(a, 48, 22, r); bcast_quad(a, 49, 23, r); bcast_quad(a, 50, 36, r)
        a(f"v_sub_f32 v51, v{28+r}, v48")
        a(f"v_sub_f32 v52, v{32+r}, v48")
        a("v_cvt_pk_bf16_f32 v53, v51, v52")
        lo(a, 51, 53); hi(a, 52, 53)
        for x in (51, 52):
            a(f"v_mul_f32 v54, v{x}, v50")
            a(f"v_fma_f32 v55, -v54, v49, v{x}")
            a(f"v_fma_f32 v{x}, v55, v50, v54")
        a("v_cvt_pk_bf16_f32 v53, v51, v52")
        lo(a, 51, 53); hi(a, 52, 53)
        lo(a, 54, 12 + r); hi(a, 55, 12 + r)
        a("v_mul_f32 v51, v51, v54")
        a("v_mul_f32 v52, v52, v55")
        a("v_cvt_pk_bf16_f32 v53, v51, v52")
        lo(a, 51, 53); hi(a, 52, 53)
        a(f"v_add_f32 v51, v51, v{28+r}")
        a(f"v_add_f32 v52, v52, v{32+r}")
        a(f"v_cvt_pk_bf16_f32 v{56+r}, v51, v52")
        lo(a, 28 + r, 56 + r); hi(a, 32 + r, 56 + r)
    dst = X1 if kind == "R1" else X3
    a(f"s_mov_b32 s34, {dst}")
    a("buffer_store_dwordx4 v[56:59], v9, s[28:31], s34 offen")
    st()
    partial(24)
    reduce8(a, 40, 10, 256)
    stats_from_lds(a, 11, 256, 21, 48, 60, 61, 62)
    stt = ST1 if kind == "R1" else ST3
    a(f"""v_lshrrev_b32 v61, 16, v61
v_or_b32 v61, v61, v62
v_lshlrev_b32 v7, 2, v6
s_mov_b32 s35, {stt}
v_cmp_gt_u32 vcc, 4, v1
s_and_saveexec_b64 s[36:37], vcc
s_cbranch_execz {E}
buffer_store_dword v61, v7, s[28:31], s35 offen""")
    st.finish(28)
    a(f"""{E}:
s_endpgm""")
    return kernel_text(name, a.text(), 64, 100 if DIAG else 56)

KTAB = 2176 * 4
KGEN_LDS = 4 * KTAB
def exp_acc(a, dst, x, t1, t2):
    a(f"""v_mul_f32 v{t1}, s50, v{x}
v_fma_f32 v{t2}, v{x}, s50, -v{t1}
v_fmac_f32 v{t2}, s51, v{x}
v_exp_f32 v{t1}, v{t1}
v_fma_f32 v{t2}, v{t2}, s52, 1.0
v_mul_f32 v{dst}, v{t1}, v{t2}""")

def k_kgen(first_wg=0):
    name = "kgen_kernel"
    E = f"L_{name}_end"
    a = Asm()
    a(f"""s_cmp_ge_u32 s2, 512
s_cbranch_scc1 {E}
s_load_dwordx8 s[4:11], s[0:1], 56
s_load_dwordx2 s[12:13], s[0:1], 88
s_load_dwordx2 s[14:15], s[0:1], 120
v_and_b32 v1, 15, v0
v_bfe_u32 v2, v0, 4, 2
v_lshrrev_b32 v3, 6, v0
s_lshl_b32 s3, s2, 8
v_lshlrev_b32 v4, 6, v3
v_lshl_add_u32 v4, v2, 3, v4
s_mov_b32 s50, 0x3fb8aa3b
s_mov_b32 s51, 0x32a57060
s_mov_b32 s52, 0x3f317218
s_mov_b32 s53, 0x3e22f983
s_waitcnt lgkmcnt(0)""")
    st = Stamps(a, 1); st()
    for i in range(4): srd(a, 16 + 4 * i, 4 + 2 * i, 131072)
    srd(a, 32, 14, WSBYTES)
    for i in range(4):
        for kk in range(2):
            d = 8 + 4 * i + 2 * kk
            a(f"buffer_load_dwordx2 v[{d}:{d+1}], v4, s[{16+4*i}:{19+4*i}], s3 offen offset:{32*kk}")
    a("""s_lshr_b32 s36, s2, 1
s_lshl_b32 s36, s36, 2
s_add_u32 s12, s12, s36
s_addc_u32 s13, s13, 0
s_load_dword s37, s[12:13], 0""")
    a("""v_lshrrev_b32 v28, 3, v1
v_lshlrev_b32 v28, 7, v28
v_and_b32 v29, 7, v1
v_or_b32 v24, v28, v29
v_lshrrev_b32 v28, 2, v1
v_lshlrev_b32 v28, 7, v28
v_and_b32 v29, 3, v1
v_lshl_add_u32 v28, v29, 1, v28
v_add_u32 v28, 256, v28
v_bfe_u32 v29, v1, 1, 2
v_lshlrev_b32 v29, 7, v29
v_and_b32 v30, 1, v1
v_lshl_add_u32 v29, v30, 2, v29
v_add_u32 v29, 512, v29
v_cmp_gt_u32 vcc, 8, v1
v_cndmask_b32 v25, v29, v28, vcc
v_lshlrev_b32 v28, 7, v1
v_add_u32 v28, 1024, v28
v_min_u32 v26, 2048, v28
v_lshlrev_b32 v27, 3, v1
v_cvt_f32_u32 v24, v24
v_cvt_f32_u32 v25, v25
v_cvt_f32_u32 v26, v26
v_cvt_f32_u32 v27, v27
s_waitcnt lgkmcnt(0)
s_lshl_b32 s38, s37, 16
s_and_b32 s39, s37, 0xffff0000
s_bitcmp1_b32 s2, 0
s_cselect_b32 s38, s39, s38
v_mov_b32 v28, s38""")
    exp_acc(a, 29, 28, 30, 31)
    a("""v_cvt_pk_bf16_f32 v29, v29, v29
v_and_b32 v29, 0xffff0000, v29""")
    for i in range(12): a(f"v_mov_b32 v{32+i}, 0")
    a("s_waitcnt vmcnt(0)")
    st()
    for kk in range(2):
        for m in range(4):
            un = lo if m % 2 == 0 else hi
            src = lambda i: 8 + 4 * i + 2 * kk + m // 2
            un(a, 76, src(0))
            exp_acc(a, 77, 76, 78, 79)
            a("v_cvt_pk_bf16_f32 v77, v77, v77")
            a("v_and_b32 v77, 0xffff0000, v77")
            a("v_mul_f32 v77, v77, v29")
            a("v_mul_f32 v77, s50, v77")
            un(a, 78, src(1))
            a("v_mul_f32 v78, v78, v29")
            a("v_mul_f32 v78, s53, v78")
            un(a, 79, src(2)); un(a, 80, src(3))
            a("v_mul_f32 v79, v79, v29")
            a("v_mul_f32 v80, v80, v29")
            a("v_add_f32 v79, v79, v79")
            a("v_add_f32 v80, v80, v80")
            for T in range(4):
                P = 24 + T
                a(f"v_mul_f32 v81, -v77, v{P}")
                a(f"v_mul_f32 v82, v78, v{P}")
                a("v_exp_f32 v81, v81")
                a("v_fract_f32 v82, v82")
                a("v_cos_f32 v83, v82")
                a("v_sin_f32 v84, v82")
                if T < 3:
                    a("v_mul_f32 v83, v83, v81")
                    a("v_mul_f32 v84, v84, v81")
                    H, L = 44 + 4 * T + m, 56 + 4 * T + m
                else:
                    a("v_mul_f32 v85, v79, v81")
                    a("v_mul_f32 v86, v80, v81")
                    a("v_mul_f32 v87, v86, v84")
                    a("v_mul_f32 v88, v86, v83")
                    a("v_fma_f32 v83, v85, v83, -v87")
                    a("v_fma_f32 v84, -v85, v84, -v88")
                    H, L = 68 + m, 72 + m
                a(f"v_cvt_pk_bf16_f32 v{H}, v83, v84")
                lo(a, 85, H); hi(a, 86, H)
                a("v_sub_f32 v83, v83, v85")
                a("v_sub_f32 v84, v84, v86")
                a(f"v_cvt_pk_bf16_f32 v{L}, v83, v84")
        for T in range(3):
            D = 32 + 4 * T
            a(f"v_mfma_f32_16x16x32_bf16 v[{D}:{D+3}], v[{56+4*T}:{59+4*T}], v[68:71], v[{D}:{D+3}]")
            a(f"v_mfma_f32_16x16x32_bf16 v[{D}:{D+3}], v[{44+4*T}:{47+4*T}], v[72:75], v[{D}:{D+3}]")
            a(f"v_mfma_f32_16x16x32_bf16 v[{D}:{D+3}], v[{44+4*T}:{47+4*T}], v[68:71], v[{D}:{D+3}]")
    st()
    a(f"""v_mul_u32_u24 v76, {KTAB}, v3
v_lshl_add_u32 v76, v1, 5, v76
v_lshrrev_b32 v77, 1, v2
v_lshlrev_b32 v77, 9, v77
v_and_b32 v78, 1, v2
v_lshl_add_u32 v77, v78, 4, v77
v_add_u32 v77, v76, v77
ds_write_b128 v77, v[32:35]""")
    a("""v_lshlrev_b32 v77, 9, v2
v_add_u32 v77, 1024, v77
v_lshlrev_b32 v78, 10, v2
v_cmp_gt_u32 vcc, 2, v2
v_cndmask_b32 v77, v78, v77, vcc
v_add_u32 v77, v76, v77
ds_write_b32 v77, v36
v_mov_b32 v79, 16
v_cndmask_b32 v78, v79, 8, vcc
v_add_u32 v78, v77, v78
ds_write_b32 v78, v37
v_mov_b32 v79, 512
v_cndmask_b32 v78, v79, 16, vcc
v_add_u32 v78, v77, v78
ds_write_b32 v78, v38
v_mov_b32 v79, 528
v_cndmask_b32 v78, v79, 24, vcc
v_add_u32 v78, v77, v78
ds_write_b32 v78, v39""")
    a("""v_lshlrev_b32 v77, 11, v2
v_add_u32 v77, v76, v77
v_cmp_gt_u32 vcc, 3, v2
s_and_saveexec_b64 s[40:41], vcc
ds_write_b32 v77, v40 offset:4096
s_mov_b64 exec, s[40:41]
v_cmp_gt_u32 vcc, 2, v2
s_and_saveexec_b64 s[40:41], vcc
ds_write_b32 v77, v41 offset:4608
ds_write_b32 v77, v42 offset:5120
ds_write_b32 v77, v43 offset:5632
s_mov_b64 exec, s[40:41]
s_waitcnt lgkmcnt(0)
s_barrier""")
    st()
    a("v_lshlrev_b32 v4, 3, v0")
    for k in range(8):
        a(f"v_add_u32 v{8+k}, {k}, v4")
        a(f"v_cvt_f32_u32 v{8+k}, v{8+k}")
    for k in range(0, 8, 2):
        a(f"v_cvt_pk_bf16_f32 v16, v{8+k}, v{9+k}")
        lo(a, 8 + k, 16); hi(a, 9 + k, 16)
    for k in range(8):
        a(f"v_cvt_u32_f32 v{8+k}, v{8+k}")
        a(f"v_lshlrev_b32 v{8+k}, 2, v{8+k}")
    for k in range(8):
        for w in range(4):
            a(f"ds_read_b32 v{16+4*k+w}, v{8+k} offset:{w*KTAB}")
        if k % 2 == 1 and k < 7: pass
    a("s_waitcnt lgkmcnt(0)")
    for k in range(8):
        b = 16 + 4 * k
        a(f"v_add_f32 v{b}, v{b}, v{b+1}")
        a(f"v_add_f32 v{b+2}, v{b+2}, v{b+3}")
        a(f"v_add_f32 v{8+k}, v{b}, v{b+2}")
    a(f"""s_lshl_b32 s42, s2, 13
s_add_u32 s42, s42, {KW}
v_lshlrev_b32 v4, 2, v0""")
    for f in range(4):
        a(f"v_cvt_pk_bf16_f32 v{16+f}, v{8+f}, v{12+f}")
        lo(a, 24, 16 + f); hi(a, 25, 16 + f)
        a(f"v_sub_f32 v24, v{8+f}, v24")
        a(f"v_sub_f32 v25, v{12+f}, v25")
        a(f"v_cvt_pk_bf16_f32 v{20+f}, v24, v25")
        a(f"buffer_store_dword v{16+f}, v4, s[32:35], s42 offen offset:{1024*f}")
    a("s_add_u32 s42, s42, 4096")
    for f in range(4):
        a(f"buffer_store_dword v{20+f}, v4, s[32:35], s42 offen offset:{1024*f}")
    st.finish(32)
    a(f"""{E}:
s_endpgm""")
    return kernel_text(name, a.text(), 96, 100 if DIAG else 64)
```

```python
from asmlib import *
import kern
from kern import srd, lo, hi, xcd_remap, Stamps, LdsQ, exp_acc, MB2, WSBYTES

KVT, YA, X1, X2, X3, ST1, ST3, KW = 0x0, 0x200000, 0x400000, 0x600000, 0x800000, 0xA00000, 0xA10000, 0xC00000
ROW_OUT_T2 = True
_LBL = 0
KV_T2 = False
def SG(n): return 100 if kern.DIAG else n

KV_PRIO = True
CODE_PREFETCH = 0
TLB_WARM = False
DATA_PREFETCH = False
def k_kv(NP=1, nk=0, kfirst=False):
    a = Asm()
    if CODE_PREFETCH:
        a(f"""s_cmp_ge_u32 s2, 8
s_cbranch_scc1 L_kv_nopf
s_getpc_b64 s[58:59]
v_lshlrev_b32 v1, 7, v0
v_cmp_gt_u32 vcc, {CODE_PREFETCH}, v1
s_and_saveexec_b64 s[60:61], vcc
s_cbranch_execz L_kv_pfdone
global_load_dword v40, v1, s[58:59]
L_kv_pfdone:
s_mov_b64 exec, s[60:61]""")
        if TLB_WARM:
            a("""s_load_dwordx4 s[4:7], s[0:1], 96
s_load_dwordx2 s[8:9], s[0:1], 120
s_load_dwordx2 s[10:11], s[0:1], 40
v_lshlrev_b32 v1, 15, v0
v_lshlrev_b32 v2, 12, v0
v_mov_b32 v3, 0
s_waitcnt lgkmcnt(0)
global_load_dword v41, v1, s[8:9]
global_load_dword v42, v2, s[6:7]
global_load_dword v43, v3, s[4:5]
global_load_dword v44, v3, s[10:11]""")
        a("L_kv_nopf:")
    if kfirst and nk:
        a(f"""s_add_u32 s60, s2, 256
s_sub_u32 s61, s2, {nk}
s_cmp_lt_u32 s2, {nk}
s_cselect_b32 s61, s60, s61
s_cmp_lt_u32 s2, {nk+256}
s_cselect_b32 s2, s61, s2""")
    a("""s_cmp_ge_u32 s2, 256
s_cbranch_scc1 L_kv_kgen
""" + ("s_setprio 3" if KV_PRIO else "") + """
s_load_dwordx4 s[4:7], s[0:1], 8
s_load_dwordx2 s[8:9], s[0:1], 24
s_load_dwordx2 s[10:11], s[0:1], 120
s_load_dwordx2 s[32:33], s[0:1], 0
s_load_dwordx2 s[34:35], s[0:1], 32""")
    st = Stamps(a, 0); st()
    xcd_remap(a, 3, 12)
    a("""v_and_b32 v1, 255, v0
v_lshrrev_b32 v2, 8, v0
s_lshl_b32 s13, s3, 3
v_lshl_add_u32 v3, v2, 2, s13
v_lshlrev_b32 v4, 10, v3
v_lshl_add_u32 v4, v1, 2, v4
v_subrev_u32 v5, 3072, v4
v_subrev_u32 v6, 2048, v4
v_subrev_u32 v7, 1024, v4
v_lshlrev_b32 v8, 4, v1
v_lshrrev_b32 v9, 2, v1
v_lshlrev_b32 v9, 15, v9
v_lshl_add_u32 v9, v3, 4, v9
v_and_b32 v21, 3, v1
v_lshl_add_u32 v9, v21, 2, v9
s_waitcnt lgkmcnt(0)""")
    srd(a, 16, 4, MB2); srd(a, 20, 6, MB2); srd(a, 24, 8, 4096); srd(a, 28, 10, WSBYTES)
    a("""buffer_load_dwordx4 v[24:27], v8, s[24:27], 0 offen
buffer_load_dword v10, v5, s[16:19], 0 offen
buffer_load_dword v11, v6, s[16:19], 0 offen
buffer_load_dword v12, v7, s[16:19], 0 offen
buffer_load_dword v13, v4, s[16:19], 0 offen
buffer_load_dword v14, v4, s[16:19], 0 offen offset:1024
buffer_load_dword v15, v4, s[16:19], 0 offen offset:2048
buffer_load_dword v16, v4, s[16:19], 0 offen offset:3072
buffer_load_dword v17, v4, s[20:23], 0 offen
buffer_load_dword v18, v4, s[20:23], 0 offen offset:1024
buffer_load_dword v19, v4, s[20:23], 0 offen offset:2048
buffer_load_dword v20, v4, s[20:23], 0 offen offset:3072""")
    npf = 0
    if DATA_PREFETCH:
        srd(a, 36, 32, MB2); srd(a, 40, 34, MB2)
        a("""s_lshl_b32 s44, s3, 13
v_lshrrev_b32 v22, 6, v0
v_and_b32 v23, 7, v0
v_lshl_add_u32 v22, v22, 3, v23
v_lshlrev_b32 v22, 7, v22
s_mov_b64 exec, 0xff
buffer_load_dword v64, v22, s[40:43], s44 offen
buffer_load_dword v65, v22, s[36:39], s44 offen
s_mov_b64 exec, -1""")
        npf = 2
    a(f"s_waitcnt vmcnt({11+npf})")
    for ch in range(2):
        lo(a, 28 + 4 * ch + 0, 24 + 2 * ch); hi(a, 28 + 4 * ch + 1, 24 + 2 * ch)
        lo(a, 28 + 4 * ch + 2, 25 + 2 * ch); hi(a, 28 + 4 * ch + 3, 25 + 2 * ch)
    a(f"s_waitcnt vmcnt({4+npf})")
    for i in range(7):
        lo(a, 36 + i, 10 + i); hi(a, 44 + i, 10 + i)
    a(f"s_waitcnt vmcnt({npf})")
    st()
    for r in range(4):
        for t in range(4):
            w = 3 - t
            a(f"v_mul_f32 v54, v{36+r+t}, v{28+w}")
            a(f"v_mul_f32 v55, v{44+r+t}, v{32+w}")
            a("v_cvt_pk_bf16_f32 v56, v54, v55")
            if t == 0:
                lo(a, 52, 56); hi(a, 53, 56)
            else:
                lo(a, 54, 56); hi(a, 55, 56)
                a("v_add_f32 v52, v52, v54")
                a("v_add_f32 v53, v53, v55")
                a("v_cvt_pk_bf16_f32 v56, v52, v53")
                lo(a, 52, 56); hi(a, 53, 56)
        lo(a, 54, 17 + r); hi(a, 55, 17 + r)
        a("v_mul_f32 v52, v52, v54")
        a("v_mul_f32 v53, v53, v55")
        a(f"v_cvt_pk_bf16_f32 v{60+r}, v52, v53")
        if not KV_T2: a(f"buffer_store_dword v{60+r}, v9, s[28:31], 0 offen offset:{16*r}")
    if KV_T2:
        a("""v_lshlrev_b32 v9, 13, v1
v_lshl_add_u32 v9, v3, 2, v9
buffer_store_dwordx4 v[60:63], v9, s[28:31], 0 offen""")
    st.finish(28)
    a(f"""s_endpgm
L_kv_kgen:
s_cmp_ge_u32 s2, {256+nk}
s_cbranch_scc1 L_kv_end""")
    nv = 72
    if nk:
        a("s_sub_u32 s55, s2, 256")
        st2 = Stamps(a, 0)
        nv = kgen_body(a, NP, st2, 55)
    a("""L_kv_end:
s_endpgm""")
    return kernel_text("kv_kernel", a.text(), nv, SG(64))

XLS = 4160
WL0 = 8 * XLS
WAS = 1152
def EX0(NP): return WL0 + 8 * NP * WAS
def CONV_LDS(NP): return EX0(NP) + 32768
SSETS = [[7, 4, 3, 0], [6, 5, 2, 1]]

def conv_body(a, kind, NP, st, E, dbuf):
    ex0 = EX0(NP)
    if kind == "A":
        a("s_load_dwordx4 s[4:7], s[0:1], 32")
    else:
        a("s_load_dwordx4 s[4:7], s[0:1], 96")
    st()
    xcd_remap(a, 3, 12)
    a("""v_lshrrev_b32 v1, 6, v0
v_and_b32 v2, 63, v0
v_lshlrev_b32 v3, 6, v0
v_lshlrev_b32 v14, 4, v0
v_readfirstlane_b32 s14, v1
s_lshr_b32 s13, s3, 2
s_lshl_b32 s13, s13, 15
s_and_b32 s12, s3, 3
s_lshl_b32 s12, s12, 2
s_add_u32 s13, s13, s12
s_lshl_b32 s15, s3, 2
s_waitcnt lgkmcnt(0)""")
    srd(a, 28, 10, WSBYTES)
    src = {"A": KVT, "B1": X1, "B2": X3}[kind]
    a(f"""s_add_u32 s32, s13, {src}
s_lshl_b32 s45, s14, 12
s_add_u32 s32, s32, s45
s_add_u32 s45, s45, {ex0}
s_mov_b32 m0, s45
v_lshlrev_b32 v15, 4, v2""")
    for k in range(4):
        a(f"buffer_load_dword v15, s[28:31], s32 offen offset:{1024*k} lds")
    a("""v_lshrrev_b32 v15, 4, v2
v_lshlrev_b32 v15, 10, v15
v_and_b32 v63, 15, v2
v_lshl_add_u32 v15, v63, 4, v15
v_add_u32 v15, s45, v15""")
    if kind == "A":
        srd(a, 16, 4, MB2)
        a("s_lshl_b32 s35, s3, 13")
        a("buffer_load_dwordx4 v[48:51], v14, s[16:19], s35 offen")
        a("s_add_u32 s6, s6, s15")
        a("s_addc_u32 s7, s7, 0")
        a("s_load_dword s33, s[6:7], 0")
    else:
        stt = {"B1": ST1, "B2": ST3}[kind]
        a(f"s_mov_b32 s34, {stt}")
        a("buffer_load_dwordx4 v[48:51], v14, s[28:31], s34 offen")
        a(f"s_lshl_b32 s35, s3, {12 + NP}")
        a(f"s_add_u32 s35, s35, {KW}")
        if NP == 2:
            a("v_lshlrev_b32 v60, 5, v0")
            a("buffer_load_dwordx4 v[52:55], v60, s[28:31], s35 offen")
            a("buffer_load_dwordx4 v[56:59], v60, s[28:31], s35 offen offset:16")
        else:
            a("buffer_load_dwordx4 v[52:55], v14, s[28:31], s35 offen")
        a("s_add_u32 s4, s4, s15")
        a("s_addc_u32 s5, s5, 0")
        a("s_load_dword s33, s[4:5], 0")
        if kind == "B2":
            srd(a, 20, 6, MB2)
    na = 8 * NP
    a(f"""v_mov_b32 v64, 0
v_mov_b32 v65, 0
v_mov_b32 v66, 0
v_mov_b32 v67, 0
v_lshrrev_b32 v61, 3, v0
v_mul_u32_u24 v61, {WAS}, v61
v_and_b32 v62, 7, v0
v_lshl_add_u32 v61, v62, 4, v61
v_cmp_gt_u32 vcc, {na*8}, v0
s_and_saveexec_b64 s[36:37], vcc
ds_write_b128 v61, v[64:67] offset:{WL0}
s_mov_b64 exec, s[36:37]
v_lshrrev_b32 v61, 1, v0
v_mul_u32_u24 v61, {XLS}, v61
v_and_b32 v62, 1, v0
v_lshl_add_u32 v61, v62, 4, v61
v_cmp_gt_u32 vcc, 16, v0
s_and_saveexec_b64 s[36:37], vcc
ds_write_b128 v61, v[64:67]
s_mov_b64 exec, s[36:37]
v_cmp_eq_u32 vcc, 0, v0
s_and_saveexec_b64 s[36:37], vcc""")
    for ch in range(2):
        b = ch * 4 * XLS
        a(f"ds_write_b16 v64, v64 offset:{b + 1*XLS + 32}")
        a(f"ds_write_b32 v64, v64 offset:{b + 2*XLS + 32}")
        a(f"ds_write_b32 v64, v64 offset:{b + 3*XLS + 32}")
        a(f"ds_write_b16 v64, v64 offset:{b + 3*XLS + 36}")
    a("""s_mov_b64 exec, s[36:37]
s_mov_b32 s38, 0x05040100
s_mov_b32 s39, 0x07060302""")
    a(f"""s_lshr_b32 s40, s14, 2
s_bfe_u32 s41, s14, 0x10001
s_lshl_b32 s41, s41, 1
s_lshl_b32 s42, s40, 2
s_add_u32 s42, s42, s41
s_mul_i32 s42, s42, {XLS}
s_add_u32 s42, s42, 32
s_mul_i32 s43, s40, {NP*4}
s_add_u32 s43, s43, s41
s_mul_i32 s43, s43, {WAS}
s_add_u32 s43, s43, {WL0 + 56}
v_lshrrev_b32 v70, 4, v2
v_and_b32 v71, 3, v2
v_bfe_u32 v72, v2, 2, 2
v_sub_u32 v71, v71, v72
v_lshlrev_b32 v71, 3, v71
v_lshl_add_u32 v71, v70, 6, v71
v_add_u32 v12, s42, v71
v_and_b32 v71, 15, v2
v_lshlrev_b32 v71, 3, v71
v_lshlrev_b32 v72, 4, v70
v_sub_u32 v71, v71, v72
v_add_u32 v13, s43, v71""")
    VXA, VWB, ACC = 12, 13, 16
    for i in range(16): a(f"v_mov_b32 v{ACC+i}, 0")
    if kind == "A":
        a(f"""v_lshrrev_b32 v61, 8, v0
v_mul_u32_u24 v61, {4*WAS}, v61
v_and_b32 v62, 255, v0
v_lshl_add_u32 v61, v62, 2, v61
s_waitcnt vmcnt(1)
ds_read_b128 v[4:7], v15
s_waitcnt vmcnt(0)""")
        st()
        XS = 4
        a(f"""v_perm_b32 v64, v50, v48, s38
v_perm_b32 v65, v50, v48, s39
v_perm_b32 v66, v51, v49, s38
v_perm_b32 v67, v51, v49, s39
ds_write_b32 v61, v64 offset:{WL0+128}
ds_write_b32 v61, v65 offset:{WL0+128+WAS}
ds_write_b32 v61, v66 offset:{WL0+128+2*WAS}
ds_write_b32 v61, v67 offset:{WL0+128+3*WAS}""")
    else:
        if NP == 2:
            a(f"""v_lshrrev_b32 v61, 5, v0
v_mul_u32_u24 v61, {WAS}, v61
v_and_b32 v62, 31, v0
v_lshl_add_u32 v61, v62, 5, v61
s_waitcnt vmcnt(3)
ds_read_b128 v[4:7], v15
s_waitcnt vmcnt(2) lgkmcnt(0)""")
        else:
            a(f"""v_mul_u32_u24 v61, {WAS}, v1
v_lshl_add_u32 v61, v2, 4, v61
s_waitcnt vmcnt(2)
ds_read_b128 v[4:7], v15
s_waitcnt vmcnt(1) lgkmcnt(0)""")
        st()
        for r in range(4):
            lo(a, 72, 48 + r); hi(a, 73, 48 + r)
            a("v_rcp_f32 v74, v73")
            lo(a, 75, 4 + r); hi(a, 76, 4 + r)
            a("v_sub_f32 v75, v75, v72")
            a("v_sub_f32 v76, v76, v72")
            a("v_cvt_pk_bf16_f32 v77, v75, v76")
            lo(a, 75, 77); hi(a, 76, 77)
            for x in (75, 76):
                a(f"v_mul_f32 v78, v{x}, v74")
                a(f"v_fma_f32 v79, -v78, v73, v{x}")
                a(f"v_fma_f32 v{x}, v79, v74, v78")
            a(f"v_cvt_pk_bf16_f32 v{8+r}, v75, v76")
        XS = 8
    a("v_lshlrev_b32 v62, 3, v0")
    if kind == "A": a("s_waitcnt lgkmcnt(4)")
    for ch in range(2):
        sel = "s38" if ch == 0 else "s39"
        b = ch * 4 * XLS + 32
        e0, e1, o1 = 64 + 4 * ch, 65 + 4 * ch, 66 + 4 * ch
        a(f"""v_perm_b32 v{e0}, v{XS+1}, v{XS}, {sel}
v_perm_b32 v{e1}, v{XS+3}, v{XS+2}, {sel}
v_perm_b32 v{o1}, v{XS+2}, v{XS+1}, {sel}
ds_write_b64 v62, v[{e0}:{e1}] offset:{b}
ds_write_b16 v62, v{e0} offset:{b + XLS + 2}
ds_write_b32 v62, v{o1} offset:{b + XLS + 4}
ds_write_b16_d16_hi v62, v{e1} offset:{b + XLS + 8}
ds_write_b32 v62, v{e0} offset:{b + 2*XLS + 4}
ds_write_b32 v62, v{e1} offset:{b + 2*XLS + 8}
ds_write_b16 v62, v{e0} offset:{b + 3*XLS + 6}
ds_write_b32 v62, v{o1} offset:{b + 3*XLS + 8}
ds_write_b16_d16_hi v62, v{e1} offset:{b + 3*XLS + 12}""")
    if kind != "A":
        a(f"""s_waitcnt vmcnt(0)
ds_write_b128 v61, v[52:55] offset:{WL0+128}""")
        if NP == 2:
            a(f"ds_write_b128 v61, v[56:59] offset:{WL0+128+16}")
    a("""s_waitcnt lgkmcnt(0)
s_barrier""")
    st()
    a(f"""s_bitcmp1_b32 s14, 0
s_cbranch_scc1 {E}_S1""")
    F0 = 32
    FSZ = 32 + 32 * NP
    for S in range(2):
        if S == 1: a(f"{E}_S1:")
        q = LdsQ(a)
        tiles = SSETS[S]
        pairs = [(aa, c - aa, ti) for aa in range(8) for ti, c in enumerate(tiles) if c >= aa]
        steps = [(dl, rho) for dl in range(2) for rho in range(2)]
        def regA(si, aa): return F0 + (FSZ * (si & 1) if dbuf else 0) + 4 * aa
        def regB(si, e, p): return F0 + (FSZ * (si & 1) if dbuf else 0) + 32 + 32 * p + 4 * e
        def rdA(si, aa):
            dl, rho = steps[si]
            return [(f"ds_read_b64_tr_b16 v[{regA(si,aa)+2*hh}:{regA(si,aa)+2*hh+1}], v{VXA} offset:{512*aa + 256*rho + 32*hh + dl*XLS}",
                     [regA(si, aa) + 2 * hh, regA(si, aa) + 2 * hh + 1]) for hh in range(2)]
        def rdB(si, e, p):
            dl, rho = steps[si]
            return [(f"ds_read_b64 v[{regB(si,e,p)+2*hh}:{regB(si,e,p)+2*hh+1}], v{VWB} offset:{128*e + 64*(1-rho) + 8*(1-hh) + (p*4+dl)*WAS}",
                     [regB(si, e, p) + 2 * hh, regB(si, e, p) + 2 * hh + 1]) for hh in range(2)]
        def order(si):
            return pairs
        def frag_first_use(ordr):
            seen, out = set(), []
            for (aa, e, ti) in ordr:
                for f in (("A", aa), ("B", e)):
                    if f not in seen: seen.add(f); out.append(f)
            return out
        def reads_for(si, f):
            if f[0] == "A": return rdA(si, f[1])
            r = []
            for p in range(NP): r += rdB(si, f[1], p)
            return r
        ordrs = [pairs]
        for si in range(3):
            if dbuf:
                ordrs.append(pairs); continue
            lu = {}
            for k, (aa, e, ti) in enumerate(ordrs[si]):
                lu[("A", aa)] = k; lu[("B", e)] = k
            ordrs.append(sorted(pairs, key=lambda p: max(lu[("A", p[0])], lu[("B", p[1])])))
        for f in frag_first_use(ordrs[0]):
            for t, d in reads_for(0, f): q.issue(t, d)
        for si in range(4):
            o = ordrs[si]
            pend = frag_first_use(ordrs[si + 1]) if si < 3 else []
            lastuse = {}
            for k, (aa, e, ti) in enumerate(o):
                lastuse[("A", aa)] = k; lastuse[("B", e)] = k
            for k, (aa, e, ti) in enumerate(o):
                for p in range(NP):
                    A = regA(si, aa); B = regB(si, e, p); D = ACC + 4 * ti
                    q.need(list(range(A, A + 4)) + list(range(B, B + 4)))
                    a(f"v_mfma_f32_16x16x32_bf16 v[{D}:{D+3}], v[{A}:{A+3}], v[{B}:{B+3}], v[{D}:{D+3}]")
                if dbuf:
                    if pend:
                        f = pend.pop(0)
                        for t, d in reads_for(si + 1, f): q.issue(t, d)
                else:
                    for f in [f for f in pend if lastuse[f] <= k]:
                        pend.remove(f)
                        for t, d in reads_for(si + 1, f): q.issue(t, d)
            for f in pend:
                for t, d in reads_for(si + 1, f): q.issue(t, d)
        a(f"""v_and_b32 v32, 15, v2
v_lshrrev_b32 v33, 4, v2
v_lshlrev_b32 v34, 2, v33
v_xor_b32 v32, v32, v34
v_lshl_add_u32 v32, v33, 4, v32
v_lshlrev_b32 v32, 4, v32
s_lshr_b32 s44, s14, 1
s_lshl_b32 s44, s44, 13
v_add_u32 v32, s44, v32""")
        for ti, c in enumerate(tiles):
            a(f"ds_write_b128 v32, v[{ACC+4*ti}:{ACC+4*ti+3}] offset:{ex0 + c*1024}")
        if S == 0: a(f"s_branch {E}_J")
    a(f"{E}_J:")
    a(f"""v_lshrrev_b32 v32, 2, v2
v_and_b32 v33, 3, v2
v_lshlrev_b32 v34, 2, v33
v_xor_b32 v32, v32, v34
v_lshl_add_u32 v32, v33, 4, v32
v_lshlrev_b32 v32, 4, v32
s_lshl_b32 s44, s14, 10
s_add_u32 s44, s44, {ex0}
v_add_u32 v32, s44, v32
s_lshl_b32 s46, s33, 16
s_and_b32 s47, s33, 0xffff0000
s_waitcnt lgkmcnt(0)""")
    st()
    a("s_barrier")
    st()
    for k in range(4):
        a(f"ds_read_b128 v[{36+4*k}:{39+4*k}], v32 offset:{k*8192}")
    a("s_waitcnt lgkmcnt(0)")
    for r in range(4):
        a(f"v_add_f32 v52, v{36+r}, v{40+r}")
        a(f"v_add_f32 v53, v{44+r}, v{48+r}")
        a("v_cvt_pk_bf16_f32 v60, v52, v53")
        lo(a, 61, 60); hi(a, 62, 60)
        lo(a, 63, XS + r); hi(a, 64, XS + r)
        a("v_mul_f32 v63, s46, v63")
        a("v_mul_f32 v64, s47, v64")
        a("v_cvt_pk_bf16_f32 v60, v63, v64")
        lo(a, 63, 60); hi(a, 64, 60)
        a("v_add_f32 v61, v61, v63")
        a("v_add_f32 v62, v62, v64")
        if kind == "A":
            a(f"v_cvt_pk_bf16_f32 v{68+r}, v61, v62")
        else:
            a("v_cvt_pk_bf16_f32 v60, v61, v62")
            lo(a, 61, 60); hi(a, 62, 60)
            lo(a, 63, 4 + r); hi(a, 64, 4 + r)
            a("v_add_f32 v61, v61, v63")
            a("v_add_f32 v62, v62, v64")
            a(f"v_cvt_pk_bf16_f32 v{68+r}, v61, v62")
        if kind in ("A", "B1"):
            if r == 3:
                dst = YA if kind == "A" else X2
                a("s_lshl_b32 s32, s3, 13")
                a(f"s_add_u32 s32, s32, {dst}")
                a("buffer_store_dwordx4 v[68:71], v14, s[28:31], s32 offen")
        else:
            if r == 0: a("v_lshlrev_b32 v59, 12, v0")
            a(f"buffer_store_dword v{68+r}, v59, s[20:23], s15 offen offset:{1024*r}")
    st()
    st.finish(28)
    return max(F0 + FSZ * (2 if dbuf else 1), 80)

PXLS = 4160
PWL0 = 2 * PXLS
def PCO(NP): return 8 * NP * WAS + 128 - (8 * NP * WAS) % 256
def PEX0(NP): return (PWL0 + PCO(NP) + 8 * NP * WAS + 16 + 255) // 256 * 256
PWSTR = 8192 + 16
def PCONV_LDS(NP): return PEX0(NP) + 8 * PWSTR

def conv_body_p(a, kind, NP, st, E):
    ex0 = PEX0(NP); CO = PCO(NP)
    F0 = 48
    FSZ = 32 + 32 * NP
    XR = F0 + 2 * FSZ
    VW, VC, VP, VC2, VP2 = XR, XR + 1, XR + 2, XR + 3, XR + 4
    TD, XU = XR + 8, XR + 16
    if kind == "A":
        a("s_load_dwordx4 s[4:7], s[0:1], 32")
    else:
        a("s_load_dwordx4 s[4:7], s[0:1], 96")
    st()
    xcd_remap(a, 3, 12)
    a("""v_lshrrev_b32 v1, 6, v0
v_and_b32 v2, 63, v0
v_lshlrev_b32 v14, 4, v0
v_readfirstlane_b32 s14, v1
s_lshl_b32 s13, s3, 13
s_lshl_b32 s15, s3, 2
s_waitcnt lgkmcnt(0)""")
    srd(a, 28, 10, WSBYTES)
    src = {"A": KVT, "B1": X1, "B2": X3}[kind]
    a(f"s_add_u32 s32, s13, {src}")
    a("buffer_load_dwordx4 v[4:7], v14, s[28:31], s32 offen")
    if kind == "A":
        srd(a, 16, 4, MB2)
        a("buffer_load_dwordx4 v[48:51], v14, s[16:19], s13 offen")
        a("s_add_u32 s6, s6, s15")
        a("s_addc_u32 s7, s7, 0")
        a("s_load_dword s33, s[6:7], 0")
    else:
        stt = {"B1": ST1, "B2": ST3}[kind]
        a(f"s_mov_b32 s34, {stt}")
        a("buffer_load_dwordx4 v[48:51], v14, s[28:31], s34 offen")
        a(f"s_lshl_b32 s35, s3, {12 + NP}")
        a(f"s_add_u32 s35, s35, {KW}")
        if NP == 2:
            a("v_lshlrev_b32 v60, 5, v0")
            a("buffer_load_dwordx4 v[52:55], v60, s[28:31], s35 offen")
            a("buffer_load_dwordx4 v[56:59], v60, s[28:31], s35 offen offset:16")
        else:
            a("buffer_load_dwordx4 v[52:55], v14, s[28:31], s35 offen")
        a("s_add_u32 s4, s4, s15")
        a("s_addc_u32 s5, s5, 0")
        a("s_load_dword s33, s[4:5], 0")
        if kind == "B2":
            srd(a, 20, 6, MB2)
    na = 8 * NP
    a(f"""v_mov_b32 v64, 0
v_mov_b32 v65, 0
v_mov_b32 v66, 0
v_mov_b32 v67, 0
v_lshrrev_b32 v61, 4, v0
v_mul_u32_u24 v61, {WAS}, v61
v_and_b32 v62, 15, v0
v_lshl_add_u32 v61, v62, 3, v61
v_cmp_gt_u32 vcc, {na*16}, v0
s_and_saveexec_b64 s[36:37], vcc
ds_write_b64 v61, v[64:65] offset:{PWL0}
ds_write_b64 v61, v[64:65] offset:{PWL0 + CO + 8}
s_mov_b64 exec, s[36:37]
v_lshrrev_b32 v61, 1, v0
v_mul_u32_u24 v61, {PXLS}, v61
v_and_b32 v62, 1, v0
v_lshl_add_u32 v61, v62, 4, v61
v_cmp_gt_u32 vcc, 4, v0
s_and_saveexec_b64 s[36:37], vcc
ds_write_b128 v61, v[64:67]
s_mov_b64 exec, s[36:37]
s_mov_b32 s38, 0x05040100
s_mov_b32 s39, 0x07060302""")
    a(f"""s_lshr_b32 s40, s14, 2
s_and_b32 s41, s14, 3
s_mul_i32 s42, s40, {PXLS}
s_add_u32 s42, s42, 32
s_mul_i32 s43, s40, {NP*4}
s_add_u32 s43, s43, s41
s_mul_i32 s43, s43, {WAS}
s_add_u32 s43, s43, {PWL0 + 56}
v_lshrrev_b32 v70, 4, v2
v_and_b32 v71, 3, v2
v_bfe_u32 v72, v2, 2, 2
v_sub_u32 v71, v71, v72
v_lshlrev_b32 v71, 3, v71
v_lshl_add_u32 v71, v70, 6, v71
v_add_u32 v12, s42, v71
v_and_b32 v71, 15, v2
v_lshlrev_b32 v71, 3, v71
v_lshlrev_b32 v72, 4, v70
v_sub_u32 v71, v71, v72
v_add_u32 v13, s43, v71
v_and_b32 v71, 1, v2
v_xor_b32 v71, 1, v71
v_mul_u32_u24 v71, {CO + 8}, v71
v_add_u32 v13, v13, v71""")
    VXA, VWB, ACC = 12, 13, 16
    for i in range(32): a(f"v_mov_b32 v{ACC+i}, 0")
    a(f"""v_and_b32 v70, 15, v2
v_lshrrev_b32 v71, 4, v2
v_lshlrev_b32 v72, 2, v71
v_xor_b32 v70, v70, v72
v_lshl_add_u32 v70, v71, 4, v70
v_lshlrev_b32 v70, 4, v70
s_mul_i32 s44, s14, {PWSTR}
s_add_u32 s44, s44, {ex0}
v_add_u32 v{VW}, s44, v70
v_mov_b32 v70, s44
s_mov_b64 exec, 1
ds_write_b128 v70, v[64:67] offset:8192
s_mov_b64 exec, -1
v_lshrrev_b32 v70, 2, v2
v_and_b32 v71, 3, v2
v_lshlrev_b32 v72, 2, v71
v_xor_b32 v70, v70, v72
v_lshl_add_u32 v70, v71, 4, v70
v_lshlrev_b32 v70, 4, v70
s_lshl_b32 s44, s14, 10
s_add_u32 s44, s44, {ex0}
v_add_u32 v{VC}, s44, v70
v_subrev_u32 v73, 1, v2
v_lshrrev_b32 v71, 2, v73
v_and_b32 v73, 3, v73
v_lshlrev_b32 v72, 2, v73
v_xor_b32 v71, v71, v72
v_lshl_add_u32 v71, v73, 4, v71
v_lshlrev_b32 v71, 4, v71
v_add_u32 v71, s44, v71
s_sub_u32 s45, s44, {1024 - 51*16}
s_cmp_eq_u32 s14, 0
s_cselect_b32 s45, {ex0 + 8192}, s45
v_mov_b32 v72, s45
v_cmp_eq_u32 vcc, 0, v2
v_cndmask_b32 v{VP}, v71, v72, vcc
v_add_u32 v{VC2}, {4*PWSTR}, v{VC}
v_add_u32 v{VP2}, {4*PWSTR}, v{VP}
v_lshlrev_b32 v62, 3, v0""")
    if kind == "A":
        a(f"""v_lshrrev_b32 v61, 8, v0
v_mul_u32_u24 v61, {4*WAS}, v61
v_and_b32 v63, 255, v0
v_lshl_add_u32 v61, v63, 2, v61
s_waitcnt vmcnt(1)""")
        st()
        XS = 4
    else:
        if NP == 2:
            a(f"""v_lshrrev_b32 v61, 5, v0
v_mul_u32_u24 v61, {WAS}, v61
v_and_b32 v63, 31, v0
v_lshl_add_u32 v61, v63, 5, v61
s_waitcnt vmcnt(2)""")
        else:
            a(f"""v_mul_u32_u24 v61, {WAS}, v1
v_lshl_add_u32 v61, v2, 4, v61
s_waitcnt vmcnt(1)""")
        st()
        for r in range(4):
            T = 72 + 8 * r
            lo(a, T, 48 + r); hi(a, T + 1, 48 + r)
            a(f"v_rcp_f32 v{T+2}, v{T+1}")
            lo(a, XU + 2 * r, 4 + r); hi(a, XU + 2 * r + 1, 4 + r)
        for r in range(4):
            T = 72 + 8 * r
            a(f"v_sub_f32 v{T+3}, v{XU+2*r}, v{T}")
            a(f"v_sub_f32 v{T+4}, v{XU+2*r+1}, v{T}")
            a(f"v_cvt_pk_bf16_f32 v{T+5}, v{T+3}, v{T+4}")
            lo(a, T + 3, T + 5); hi(a, T + 4, T + 5)
            for x in (T + 3, T + 4):
                a(f"v_mul_f32 v{T+6}, v{x}, v{T+2}")
                a(f"v_fma_f32 v{T+7}, -v{T+6}, v{T+1}, v{x}")
                a(f"v_fma_f32 v{x}, v{T+7}, v{T+2}, v{T+6}")
            a(f"v_cvt_pk_bf16_f32 v{8+r}, v{T+3}, v{T+4}")
        XS = 8
    a(f"""v_perm_b32 v64, v{XS+1}, v{XS}, s38
v_perm_b32 v65, v{XS+3}, v{XS+2}, s38
v_perm_b32 v66, v{XS+1}, v{XS}, s39
v_perm_b32 v67, v{XS+3}, v{XS+2}, s39
ds_write_b64 v62, v[64:65] offset:32
ds_write_b64 v62, v[66:67] offset:{PXLS+32}
s_waitcnt vmcnt(0)""")
    if kind == "A":
        a("""v_perm_b32 v68, v50, v48, s38
v_perm_b32 v69, v50, v48, s39
v_perm_b32 v70, v51, v49, s38
v_perm_b32 v71, v51, v49, s39""")
        for f in range(4):
            a(f"ds_write_b32 v61, v{68+f} offset:{PWL0+128+f*WAS}")
            a(f"ds_write_b32 v61, v{68+f} offset:{PWL0+128+f*WAS+CO+8}")
    else:
        for h in range(NP):
            b = 52 + 4 * h
            a(f"ds_write_b128 v61, v[{b}:{b+3}] offset:{PWL0+128+16*h}")
            a(f"ds_write_b64 v61, v[{b}:{b+1}] offset:{PWL0+128+16*h+CO+8}")
            a(f"ds_write_b64 v61, v[{b+2}:{b+3}] offset:{PWL0+128+16*h+CO+16}")
    a("""s_waitcnt lgkmcnt(0)
s_lshl_b32 s46, s33, 16
s_and_b32 s47, s33, 0xffff0000
s_barrier""")
    st()
    FA = [F0, F0 + FSZ]
    FB = [F0 + 32, F0 + FSZ + 32]
    q = LdsQ(a)
    def rdA(rho, aa):
        return [(f"ds_read_b64_tr_b16 v[{FA[rho]+4*aa+2*hh}:{FA[rho]+4*aa+2*hh+1}], v{VXA} offset:{512*aa + 256*rho + 32*(1-hh)}",
                 [FA[rho] + 4 * aa + 2 * hh, FA[rho] + 4 * aa + 2 * hh + 1]) for hh in range(2)]
    def rdB(rho, e, p):
        d = FB[rho] + 32 * p + 4 * e
        return [(f"ds_read_b128 v[{d}:{d+3}], v{VWB} offset:{128*e + 64*(1-rho) + p*4*WAS}", list(range(d, d + 4)))]
    order = [(aa, c - aa, c) for c in range(8) for aa in range(c + 1)]
    def reads(rho):
        seen, r = set(), []
        for (aa, e, c) in order:
            if ("A", aa) not in seen: seen.add(("A", aa)); r += rdA(rho, aa)
            if ("B", e) not in seen:
                seen.add(("B", e))
                for p in range(NP): r += rdB(rho, e, p)
        return r
    def mf(rho, aa, e, c, p):
        A = FA[rho] + 4 * aa; B = FB[rho] + 32 * p + 4 * e; D = ACC + 4 * c
        q.need(list(range(A, A + 4)) + list(range(B, B + 4)))
        a(f"v_mfma_f32_16x16x32_bf16 v[{D}:{D+3}], v[{A}:{A+3}], v[{B}:{B+3}], v[{D}:{D+3}]")
    fill = []
    for r in range(4):
        fill += [f"v_lshlrev_b32 v{TD+2*r}, 16, v{XS+r}", f"v_and_b32 v{TD+2*r+1}, 0xffff0000, v{XS+r}",
                 f"v_mul_f32 v{TD+2*r}, s46, v{TD+2*r}", f"v_mul_f32 v{TD+2*r+1}, s47, v{TD+2*r+1}",
                 f"v_cvt_pk_bf16_f32 v15, v{TD+2*r}, v{TD+2*r+1}",
                 f"v_lshlrev_b32 v{TD+2*r}, 16, v15", f"v_and_b32 v{TD+2*r+1}, 0xffff0000, v15"]
    if kind == "B2": fill.append("v_lshlrev_b32 v3, 12, v0")
    for t, d in reads(0): q.issue(t, d)
    r1 = reads(1)
    for (aa, e, c) in order:
        for p in range(NP):
            mf(0, aa, e, c, p)
            if r1:
                tt, dd = r1.pop(0); q.issue(tt, dd)
            elif fill: a(fill.pop(0))
    for tt, dd in r1: q.issue(tt, dd)
    pendw = []
    for (aa, e, c) in order:
        for p in range(NP):
            mf(1, aa, e, c, p)
            if fill: a(fill.pop(0))
            pendw = [(cc, n - 1) for cc, n in pendw]
            for cc, n in [x for x in pendw if x[1] <= 0]:
                q.issue(f"ds_write_b128 v{VW}, v[{ACC+4*cc}:{ACC+4*cc+3}] offset:{cc*1024}", [])
            pendw = [x for x in pendw if x[1] > 0]
        if aa == c: pendw.append((c, 5))
    for f in fill: a(f)
    for cc, n in pendw:
        q.issue(f"ds_write_b128 v{VW}, v[{ACC+4*cc}:{ACC+4*cc+3}] offset:{cc*1024}", [])
    a("s_waitcnt lgkmcnt(0)")
    st()
    a("s_barrier")
    st()
    for w in range(8):
        b = VC if w < 4 else VC2
        a(f"ds_read_b128 v[{48+4*w}:{51+4*w}], v{b} offset:{(w&3)*PWSTR}")
        if w & 3:
            b = VP if w < 4 else VP2
            a(f"ds_read_b128 v[{80+4*w}:{83+4*w}], v{b} offset:{(w&3)*PWSTR}")
    for ch in range(2):
        a(f"s_waitcnt lgkmcnt({7 if ch == 0 else 0})")
        cur = lambda d, i: 48 + 4 * (4 * ch + d) + i
        prv = lambda d, i: 80 + 4 * (4 * ch + d) + i
        for r in range(4):
            t = [cur(0, r)]
            for d in range(1, 4):
                t.append(cur(d, r - d) if r - d >= 0 else prv(d, 4 + r - d))
            y = 16 + 4 * ch + r
            a(f"v_add_f32 v{y}, v{t[0]}, v{t[1]}")
            a(f"v_add_f32 v{24+r}, v{t[2]}, v{t[3]}")
            a(f"v_add_f32 v{y}, v{y}, v{24+r}")
    for r in range(4):
        T = 28 + 4 * r
        a(f"v_cvt_pk_bf16_f32 v{T}, v{16+r}, v{20+r}")
        lo(a, T + 1, T); hi(a, T + 2, T)
        a(f"v_add_f32 v{T+1}, v{T+1}, v{TD+2*r}")
        a(f"v_add_f32 v{T+2}, v{T+2}, v{TD+2*r+1}")
        if kind == "A":
            a(f"v_cvt_pk_bf16_f32 v{44+r}, v{T+1}, v{T+2}")
        else:
            a(f"v_cvt_pk_bf16_f32 v{T}, v{T+1}, v{T+2}")
            lo(a, T + 1, T); hi(a, T + 2, T)
            a(f"v_add_f32 v{T+1}, v{T+1}, v{XU+2*r}")
            a(f"v_add_f32 v{T+2}, v{T+2}, v{XU+2*r+1}")
            a(f"v_cvt_pk_bf16_f32 v{44+r}, v{T+1}, v{T+2}")
        if kind in ("A", "B1"):
            if r == 3:
                dst = YA if kind == "A" else X2
                a(f"s_add_u32 s32, s13, {dst}")
                a("buffer_store_dwordx4 v[44:47], v14, s[28:31], s32 offen")
        else:
            a(f"buffer_store_dword v{44+r}, v3, s[20:23], s15 offen offset:{1024*r}")
    st()
    st.finish(28)
    return XR + 24

def k_conv(kind, NP, dbuf=True, optp=False):
    name = {"A": "convA_kernel", "B1": "convB1_kernel", "B2": "convB2_kernel"}[kind]
    if kind == "A": NP = 1
    a = Asm()
    E = f"L_{name}"
    a(f"""s_cmp_ge_u32 s2, 256
s_cbranch_scc1 {E}_end
s_load_dwordx2 s[10:11], s[0:1], 120""")
    st = Stamps(a, {"A": 2, "B1": 4, "B2": 6}[kind])
    nv = conv_body_p(a, kind, NP, st, E) if optp else conv_body(a, kind, NP, st, E, dbuf)
    a(f"""{E}_end:
s_endpgm""")
    return kernel_text(name, a.text(), nv, SG(64))

def row_reduce(a, S1, S2, T, waddr, ldsoff):
    a(f"""v_permlane32_swap_b32 v{S1}, v{S2}
v_add_f32 v{S1}, v{S1}, v{S2}
v_mov_b32 v{T}, v{S1}
v_permlane16_swap_b32 v{S1}, v{T}
v_add_f32 v{S1}, v{S1}, v{T}
v_add_f32_dpp v{S1}, v{S1}, v{S1} row_ror:8 row_mask:0xf bank_mask:0xf
s_mov_b64 exec, s[48:49]
ds_write_b32 v{waddr}, v{S1} offset:{ldsoff}
s_mov_b64 exec, -1
s_waitcnt lgkmcnt(0)
s_barrier""")

def row_stats(a, raddr, ldsoff, piv, T, o_mean, o_m, o_den):
    a(f"""ds_read_b128 v[{T}:{T+3}], v{raddr} offset:{ldsoff}
ds_read_b128 v[{T+4}:{T+7}], v{raddr} offset:{ldsoff+16}
ds_read_b128 v[{T+8}:{T+11}], v{raddr} offset:{ldsoff+256}
ds_read_b128 v[{T+12}:{T+15}], v{raddr} offset:{ldsoff+272}
s_waitcnt lgkmcnt(2)""")
    for b in (0, 8):
        if b == 8: a("s_waitcnt lgkmcnt(0)")
        a(f"""v_add_f32 v{T+b}, v{T+b}, v{T+b+1}
v_add_f32 v{T+b+2}, v{T+b+2}, v{T+b+3}
v_add_f32 v{T+b+4}, v{T+b+4}, v{T+b+5}
v_add_f32 v{T+b+6}, v{T+b+6}, v{T+b+7}
v_add_f32 v{T+b}, v{T+b}, v{T+b+2}
v_add_f32 v{T+b+4}, v{T+b+4}, v{T+b+6}
v_add_f32 v{T+b}, v{T+b}, v{T+b+4}""")
    a(f"""v_mul_f32 v{T}, 0x3b000000, v{T}
v_mul_f32 v{T+1}, 0x3b000000, v{T+8}
v_add_f32 v{o_mean}, v{piv}, v{T}
v_fma_f32 v{T+1}, -v{T}, v{T}, v{T+1}
v_max_f32 v{T+1}, 0, v{T+1}
v_cvt_pk_bf16_f32 v{T+2}, v{o_mean}, v{T+1}
v_lshlrev_b32 v{o_m}, 16, v{T+2}
v_and_b32 v{T+1}, 0xffff0000, v{T+2}
v_add_f32 v{T+1}, 0x3727c5ac, v{T+1}
v_cvt_pk_bf16_f32 v{T+1}, v{T+1}, v{T+1}
v_and_b32 v{T+1}, 0xffff0000, v{T+1}
v_sqrt_f32 v{T+1}, v{T+1}
v_cvt_pk_bf16_f32 v{T+1}, v{T+1}, v{T+1}
v_and_b32 v{o_den}, 0xffff0000, v{T+1}""")

def k_row(kind, NP=1, nk=0, ch0=0):
    name = {"R1": "row1_kernel", "R2": "row2_kernel"}[kind]
    E = f"L_{name}_end"
    a = Asm()
    if nk:
        a(f"""s_add_u32 s60, s2, 256
s_sub_u32 s61, s2, {nk}
s_cmp_lt_u32 s2, {nk}
s_cselect_b32 s61, s60, s61
s_cmp_lt_u32 s2, {nk+256}
s_cselect_b32 s2, s61, s2""")
    a(f"""s_cmp_ge_u32 s2, 256
s_cbranch_scc1 {E}_kgen
s_setprio 3
s_load_dwordx2 s[10:11], s[0:1], 120
s_load_dwordx2 s[4:5], s[0:1], 0""")
    st = Stamps(a, {"R1": 3, "R2": 5}[kind]); st()
    xcd_remap(a, 3, 12)
    a("""v_and_b32 v1, 7, v0
v_lshrrev_b32 v2, 3, v0
s_lshl_b32 s13, s3, 3
v_add_u32 v3, s13, v1
v_lshlrev_b32 v9, 15, v2
v_lshl_add_u32 v8, v3, 2, v9
v_lshl_add_u32 v9, v3, 4, v9
s_waitcnt lgkmcnt(0)""")
    srd(a, 28, 10, WSBYTES)
    a(f"s_mov_b32 s32, {YA}")
    if kind == "R1":
        srd(a, 16, 4, MB2)
        a("""v_lshlrev_b32 v7, 10, v3
v_lshl_add_u32 v4, v2, 4, v7
buffer_load_dwordx4 v[16:19], v4, s[16:19], 0 offen
buffer_load_dword v20, v7, s[16:19], 0 offen""")
    else:
        a(f"""s_mov_b32 s33, {X2}
v_lshlrev_b32 v7, 2, v3""")
        for k in range(4):
            a(f"s_add_u32 s34, s33, {8192*k}")
            a(f"buffer_load_dword v{16+k}, v8, s[28:31], s34 offen")
        a("buffer_load_dword v20, v7, s[28:31], s33 offen")
    for k in range(4):
        a(f"s_add_u32 s34, s32, {8192*k}")
        a(f"buffer_load_dword v{12+k}, v8, s[28:31], s34 offen")
    a("""s_mov_b32 s48, 0xff
s_mov_b32 s49, 0xff
v_lshlrev_b32 v11, 5, v1
v_bfe_u32 v10, v0, 5, 1
v_lshl_add_u32 v10, v10, 8, v11
v_lshrrev_b32 v5, 6, v0
v_lshl_add_u32 v10, v5, 2, v10
s_waitcnt vmcnt(4)
v_lshlrev_b32 v20, 16, v20""")
    st()
    for k in range(4):
        lo(a, 24 + 2 * k, 16 + k); hi(a, 25 + 2 * k, 16 + k)
    def partial(P):
        for k in range(8):
            a(f"v_sub_f32 v{48+k}, v{24+k}, v{P}")
        a("v_add_f32 v40, v48, v49")
        a("v_mul_f32 v41, v48, v48")
        a("v_mul_f32 v42, v49, v49")
        for k in range(2, 8, 2):
            a(f"v_add_f32 v43, v{48+k}, v{49+k}")
            a(f"v_fmac_f32 v41, v{48+k}, v{48+k}")
            a(f"v_fmac_f32 v42, v{49+k}, v{49+k}")
            a("v_add_f32 v40, v40, v43")
        a("v_add_f32 v41, v41, v42")
    partial(20)
    row_reduce(a, 40, 41, 42, 10, 0)
    row_stats(a, 11, 0, 20, 48, 21, 22, 23)
    st()
    a("v_rcp_f32 v36, v23")
    a("s_waitcnt vmcnt(0)")
    for k in range(4):
        x0, x1 = 24 + 2 * k, 25 + 2 * k
        a(f"v_sub_f32 v51, v{x0}, v22")
        a(f"v_sub_f32 v52, v{x1}, v22")
        a("v_cvt_pk_bf16_f32 v53, v51, v52")
        lo(a, 51, 53); hi(a, 52, 53)
        for x in (51, 52):
            a(f"v_mul_f32 v54, v{x}, v36")
            a(f"v_fma_f32 v55, -v54, v23, v{x}")
            a(f"v_fma_f32 v{x}, v55, v36, v54")
        a("v_cvt_pk_bf16_f32 v53, v51, v52")
        lo(a, 51, 53); hi(a, 52, 53)
        lo(a, 54, 12 + k); hi(a, 55, 12 + k)
        a("v_mul_f32 v51, v51, v54")
        a("v_mul_f32 v52, v52, v55")
        a("v_cvt_pk_bf16_f32 v53, v51, v52")
        lo(a, 51, 53); hi(a, 52, 53)
        a(f"v_add_f32 v51, v51, v{x0}")
        a(f"v_add_f32 v52, v52, v{x1}")
        a(f"v_cvt_pk_bf16_f32 v{56+k}, v51, v52")
        lo(a, x0, 56 + k); hi(a, x1, 56 + k)
    dst = X1 if kind == "R1" else X3
    if ROW_OUT_T2:
        for k in range(4):
            a(f"s_mov_b32 s34, {dst + 8192*k}")
            a(f"buffer_store_dword v{56+k}, v8, s[28:31], s34 offen")
    else:
        a(f"s_mov_b32 s34, {dst}")
        a("buffer_store_dwordx4 v[56:59], v9, s[28:31], s34 offen")
    st()
    partial(21)
    row_reduce(a, 40, 41, 42, 10, 512)
    stt = ST1 if kind == "R1" else ST3
    a(f"""v_cmp_gt_u32 vcc, 8, v0
s_and_saveexec_b64 s[36:37], vcc
s_cbranch_execz {E}""")
    row_stats(a, 11, 512, 21, 64, 60, 61, 62)
    a(f"""v_lshrrev_b32 v61, 16, v61
v_or_b32 v61, v61, v62
v_lshlrev_b32 v7, 2, v3
s_mov_b32 s35, {stt}
buffer_store_dword v61, v7, s[28:31], s35 offen""")
    st.finish(28)
    a(f"""s_endpgm
{E}_kgen:
s_cmp_ge_u32 s2, {256+nk}
s_cbranch_scc1 {E}""")
    nv = 80
    if nk:
        a(f"s_add_u32 s55, s2, {ch0-256}")
        st2 = Stamps(a, 3)
        nv = kgen_body(a, NP, st2, 55)
    a(f"""{E}:
s_endpgm""")
    return kernel_text(name, a.text(), nv, SG(64))

KPART = 0
KPRM = 8 * 3072
KTAB0 = KPRM + 8 * 256
KGEN_LDS = KTAB0 + 2176 * 4
def kgen_body(a, NP, st, ch_sgpr):
    a(f"""s_load_dwordx8 s[4:11], s[0:1], 56
s_load_dwordx2 s[12:13], s[0:1], 88
s_load_dwordx2 s[14:15], s[0:1], 120
v_and_b32 v1, 15, v0
v_bfe_u32 v2, v0, 4, 2
v_lshrrev_b32 v3, 6, v0
s_lshl_b32 s3, s{ch_sgpr}, 8
v_lshlrev_b32 v4, 5, v3
v_lshl_add_u32 v4, v1, 1, v4
s_mov_b32 s50, 0x3fb8aa3b
s_mov_b32 s51, 0x32a57060
s_mov_b32 s52, 0x3f317218
s_mov_b32 s53, 0x3e22f983
s_mov_b32 s54, 0x07060302
v_readfirstlane_b32 s56, v3
s_waitcnt lgkmcnt(0)""")
    st()
    for i in range(4): srd(a, 16 + 4 * i, 4 + 2 * i, 131072)
    srd(a, 32, 14, WSBYTES)
    for i in range(4):
        a(f"buffer_load_ushort v{8+i}, v4, s[{16+4*i}:{19+4*i}], s3 offen")
    a(f"""s_lshr_b32 s36, s{ch_sgpr}, 1
s_lshl_b32 s36, s36, 2
s_add_u32 s12, s12, s36
s_addc_u32 s13, s13, 0
s_load_dword s37, s[12:13], 0""")
    a(f"""v_lshrrev_b32 v28, 3, v1
v_lshlrev_b32 v28, 7, v28
v_and_b32 v29, 7, v1
v_or_b32 v24, v28, v29
v_lshrrev_b32 v28, 2, v1
v_lshlrev_b32 v28, 7, v28
v_and_b32 v29, 3, v1
v_lshl_add_u32 v28, v29, 1, v28
v_add_u32 v28, 256, v28
v_bfe_u32 v29, v1, 1, 2
v_lshlrev_b32 v29, 7, v29
v_and_b32 v30, 1, v1
v_lshl_add_u32 v29, v30, 2, v29
v_add_u32 v29, 512, v29
v_cmp_gt_u32 vcc, 8, v1
v_cndmask_b32 v25, v29, v28, vcc
v_lshlrev_b32 v28, 7, v1
v_add_u32 v28, 1024, v28
v_min_u32 v26, 2048, v28
v_lshlrev_b32 v27, 3, v1
v_cvt_f32_u32 v24, v24
v_cvt_f32_u32 v25, v25
v_cvt_f32_u32 v26, v26
v_cvt_f32_u32 v27, v27
v_lshlrev_b32 v5, 8, v3
v_lshl_add_u32 v6, v1, 4, v5
v_lshl_add_u32 v5, v2, 6, v5
s_waitcnt lgkmcnt(0)
s_lshl_b32 s38, s37, 16
s_and_b32 s39, s37, 0xffff0000
s_bitcmp1_b32 s{ch_sgpr}, 0
s_cselect_b32 s38, s39, s38
v_mov_b32 v28, s38""")
    exp_acc(a, 29, 28, 30, 31)
    a("""v_cvt_pk_bf16_f32 v29, v29, v29
v_and_b32 v29, 0xffff0000, v29""")
    a("s_waitcnt vmcnt(0)")
    st()
    for i in range(4): lo(a, 8 + i, 8 + i)
    exp_acc(a, 12, 8, 30, 31)
    a(f"""v_cvt_pk_bf16_f32 v12, v12, v12
v_and_b32 v12, 0xffff0000, v12
v_mul_f32 v12, v12, v29
v_mul_f32 v12, s50, v12
v_mul_f32 v13, v9, v29
v_mul_f32 v13, s53, v13
v_mul_f32 v14, v10, v29
v_mul_f32 v15, v11, v29
v_add_f32 v14, v14, v14
v_add_f32 v15, v15, v15
ds_write_b128 v6, v[12:15] offset:{KPRM}
s_waitcnt lgkmcnt(0)""")
    for m in range(4):
        a(f"ds_read_b128 v[{8+4*m}:{11+4*m}], v5 offset:{KPRM + 16*m}")
    for m in range(4):
        a(f"s_waitcnt lgkmcnt({3-m})")
        A_, B_, CR, CI = 8 + 4 * m, 9 + 4 * m, 10 + 4 * m, 11 + 4 * m
        for T0 in (0, 2):
            for T in (T0, T0 + 1):
                b = 32 + 8 * (T & 1)
                a(f"v_mul_f32 v{b}, -v{A_}, v{24+T}")
                a(f"v_mul_f32 v{b+1}, v{B_}, v{24+T}")
                a(f"v_fract_f32 v{b+1}, v{b+1}")
            for T in (T0, T0 + 1):
                b = 32 + 8 * (T & 1)
                a(f"v_exp_f32 v{b}, v{b}")
                a(f"v_cos_f32 v{b+2}, v{b+1}")
                a(f"v_sin_f32 v{b+3}, v{b+1}")
            for T in (T0, T0 + 1):
                b = 32 + 8 * (T & 1)
                if T < 3:
                    a(f"v_mul_f32 v{b+2}, v{b+2}, v{b}")
                    a(f"v_mul_f32 v{b+3}, v{b+3}, v{b}")
                    H, L = 48 + 4 * T + m, 60 + 4 * T + m
                else:
                    a(f"v_mul_f32 v{b+4}, v{CR}, v{b}")
                    a(f"v_mul_f32 v{b+5}, v{CI}, v{b}")
                    a(f"v_mul_f32 v{b+6}, v{b+5}, v{b+3}")
                    a(f"v_mul_f32 v{b+7}, v{b+5}, v{b+2}")
                    a(f"v_fma_f32 v{b+2}, v{b+4}, v{b+2}, -v{b+6}")
                    a(f"v_fma_f32 v{b+3}, -v{b+4}, v{b+3}, -v{b+7}")
                    H, L = 72 + m, 76 + m
                a(f"v_and_b32 v{b+4}, 0xffff0000, v{b+2}")
                a(f"v_and_b32 v{b+5}, 0xffff0000, v{b+3}")
                a(f"v_perm_b32 v{H}, v{b+3}, v{b+2}, s54")
                a(f"v_sub_f32 v{b+2}, v{b+2}, v{b+4}")
                a(f"v_sub_f32 v{b+3}, v{b+3}, v{b+5}")
                a(f"v_cvt_pk_bf16_f32 v{L}, v{b+2}, v{b+3}")
    for T in range(3):
        D = 32 + 4 * T
        a(f"v_mfma_f32_16x16x32_bf16 v[{D}:{D+3}], v[{60+4*T}:{63+4*T}], v[72:75], 0")
        a(f"v_mfma_f32_16x16x32_bf16 v[{D}:{D+3}], v[{48+4*T}:{51+4*T}], v[76:79], v[{D}:{D+3}]")
        a(f"v_mfma_f32_16x16x32_bf16 v[{D}:{D+3}], v[{48+4*T}:{51+4*T}], v[72:75], v[{D}:{D+3}]")
    a("""v_and_b32 v30, 63, v0
v_lshlrev_b32 v30, 4, v30
v_mul_u32_u24 v31, 3072, v3
v_add_u32 v31, v31, v30""")
    a("""v_and_b32 v7, 3, v0
v_lshrrev_b32 v5, 2, v0
v_lshl_add_u32 v4, v5, 3, v7""")
    for it in range(2):
        a(f"v_add_u32 v{8+2*it}, {1024*it}, v4")
        a(f"v_add_u32 v{9+2*it}, {1024*it+4}, v4")
    for k in range(4): a(f"v_cvt_f32_u32 v{8+k}, v{8+k}")
    for k in range(0, 4, 2):
        a(f"v_cvt_pk_bf16_f32 v17, v{8+k}, v{9+k}")
        lo(a, 8 + k, 17); hi(a, 9 + k, 17)
    for k in range(4):
        a(f"v_cvt_u32_f32 v{8+k}, v{8+k}")
        a(f"v_lshlrev_b32 v{8+k}, 2, v{8+k}")
    a(f"""s_lshl_b32 s42, s{ch_sgpr}, {11+NP}
s_add_u32 s42, s42, {KW}
v_lshlrev_b32 v4, 10, v7
v_lshl_add_u32 v4, v5, 2, v4""")
    for T in range(3):
        a(f"ds_write_b128 v31, v[{32+4*T}:{35+4*T}] offset:{KPART + 1024*T}")
    a("""s_waitcnt lgkmcnt(0)
s_barrier""")
    st()
    global _LBL
    _LBL += 1
    L = f"L_kg{_LBL}"
    a(f"""s_cmp_ge_u32 s56, 3
s_cbranch_scc1 {L}_skip
s_lshl_b32 s57, s56, 10
v_add_u32 v30, s57, v30""")
    for w in range(8):
        a(f"ds_read_b128 v[{32+4*w}:{35+4*w}], v30 offset:{KPART + 3072*w}")
    a("v_lshlrev_b32 v65, 5, v1")
    a("s_waitcnt lgkmcnt(0)")
    for r in range(4):
        a(f"""v_add_f32 v{32+r}, v{32+r}, v{36+r}
v_add_f32 v{40+r}, v{40+r}, v{44+r}
v_add_f32 v{48+r}, v{48+r}, v{52+r}
v_add_f32 v{56+r}, v{56+r}, v{60+r}
v_add_f32 v{32+r}, v{32+r}, v{40+r}
v_add_f32 v{48+r}, v{48+r}, v{56+r}
v_add_f32 v{32+r}, v{32+r}, v{48+r}""")
    a(f"""s_cmp_eq_u32 s56, 1
s_cbranch_scc1 {L}_t1
s_cmp_eq_u32 s56, 2
s_cbranch_scc1 {L}_t2
v_lshrrev_b32 v64, 1, v2
v_lshlrev_b32 v64, 9, v64
v_and_b32 v66, 1, v2
v_lshl_add_u32 v64, v66, 4, v64
v_add_u32 v64, v65, v64
ds_write_b128 v64, v[32:35] offset:{KTAB0}
s_branch {L}_skip
{L}_t1:
v_lshlrev_b32 v64, 9, v2
v_add_u32 v64, 1024, v64
v_lshlrev_b32 v66, 10, v2
v_cmp_gt_u32 vcc, 2, v2
v_cndmask_b32 v64, v66, v64, vcc
v_add_u32 v64, v65, v64
ds_write_b32 v64, v32 offset:{KTAB0}
v_mov_b32 v67, 16
v_cndmask_b32 v66, v67, 8, vcc
v_add_u32 v66, v64, v66
ds_write_b32 v66, v33 offset:{KTAB0}
v_mov_b32 v67, 512
v_cndmask_b32 v66, v67, 16, vcc
v_add_u32 v66, v64, v66
ds_write_b32 v66, v34 offset:{KTAB0}
v_mov_b32 v67, 528
v_cndmask_b32 v66, v67, 24, vcc
v_add_u32 v66, v64, v66
ds_write_b32 v66, v35 offset:{KTAB0}
s_branch {L}_skip
{L}_t2:
v_lshlrev_b32 v64, 11, v2
v_add_u32 v64, v65, v64
v_cmp_gt_u32 vcc, 3, v2
s_and_saveexec_b64 s[40:41], vcc
ds_write_b32 v64, v32 offset:{KTAB0+4096}
s_mov_b64 exec, s[40:41]
v_cmp_gt_u32 vcc, 2, v2
s_and_saveexec_b64 s[40:41], vcc
ds_write_b32 v64, v33 offset:{KTAB0+4608}
ds_write_b32 v64, v34 offset:{KTAB0+5120}
ds_write_b32 v64, v35 offset:{KTAB0+5632}
s_mov_b64 exec, s[40:41]
{L}_skip:
s_waitcnt lgkmcnt(0)
s_barrier""")
    st()
    for k in range(4):
        a(f"ds_read_b32 v{20+k}, v{8+k} offset:{KTAB0}")
    a("s_waitcnt lgkmcnt(0)")
    for it in range(2):
        a(f"v_cvt_pk_bf16_f32 v{16+it}, v{20+2*it}, v{21+2*it}")
        a(f"buffer_store_dword v{16+it}, v4, s[32:35], s42 offen offset:{512*it}")
        if NP == 2:
            lo(a, 24, 16 + it); hi(a, 25, 16 + it)
            a(f"v_sub_f32 v24, v{20+2*it}, v24")
            a(f"v_sub_f32 v25, v{21+2*it}, v25")
            a(f"v_cvt_pk_bf16_f32 v{18+it}, v24, v25")
    if NP == 2:
        a("s_add_u32 s42, s42, 4096")
        for it in range(2):
            a(f"buffer_store_dword v{18+it}, v4, s[32:35], s42 offen offset:{512*it}")
    st.finish(32)
    return 80

def k_front(NP, nk=256, ch0=256, kfirst=False):
    name = "front_kernel"
    a = Asm()
    E = f"L_{name}"
    if kfirst and nk:
        a(f"""s_add_u32 s60, s2, 256
s_sub_u32 s61, s2, {nk}
s_cmp_lt_u32 s2, {nk}
s_cselect_b32 s61, s60, s61
s_cmp_lt_u32 s2, {nk+256}
s_cselect_b32 s2, s61, s2""")
    a(f"""s_cmp_ge_u32 s2, 256
s_cbranch_scc1 {E}_kgen
s_setprio 3
s_load_dwordx2 s[10:11], s[0:1], 120""")
    st = Stamps(a, 2)
    nv1 = conv_body(a, "A", 1, st, E, False)
    a(f"""s_endpgm
{E}_kgen:
s_cmp_ge_u32 s2, {256+nk}
s_cbranch_scc1 {E}_end
s_add_u32 s55, s2, {ch0-256}""")
    st2 = Stamps(a, 1)
    nv2 = kgen_body(a, NP, st2, 55)
    a(f"""{E}_end:
s_endpgm""")
    return kernel_text(name, a.text(), max(nv1, nv2), SG(64))
```

```python
import sys
import kern
from asmlib import *
def build(path, NP=2, merged=True, diag=False, dbufB=True, nk1=256, kf1=False, kf2=False, nk3=0, optp=True, kvprio=True, stmod='', pf=0, dpf=False, tlb=False):
    kern.DIAG = diag
    import kern2 as k2
    k2.ROW_OUT_T2 = optp
    k2.KV_T2 = (nk1 + nk3 == 512)
    k2.KV_PRIO = kvprio
    k2.CODE_PREFETCH = pf
    k2.DATA_PREFETCH = dpf
    k2.TLB_WARM = tlb
    hdr = [l.rstrip("\n") for l in open("header.txt") if "Override launch" not in l and "grid=ceil" not in l]
    FL = max(k2.CONV_LDS(1), k2.KGEN_LDS)
    BL = k2.PCONV_LDS(NP) if optp else k2.CONV_LDS(NP)
    ks = [k2.k_kv(NP, nk1, kf1)]
    L = [("kv_kernel", 256 + nk1, 512, k2.KGEN_LDS if nk1 else 0)]
    if nk1 + nk3 == 512:
        ks.append(k2.k_conv("A", 1, True, True)); L.append(("convA_kernel", 256, 512, k2.PCONV_LDS(1)))
    else:
      ks.append(k2.k_front(NP, 512 - nk1 - nk3, nk1, kf2)); L.append(("front_kernel", 256 + 512 - nk1 - nk3, 512, FL))
    ks += [k2.k_row("R1", NP, nk3, 512 - nk3), k2.k_conv("B1", NP, dbufB, optp), k2.k_row("R2"), k2.k_conv("B2", NP, dbufB, optp)]
    L += [("row1_kernel", 256 + nk3, 512, k2.KGEN_LDS if nk3 else 1024), ("convB1_kernel", 256, 512, BL), ("row2_kernel", 256, 512, 1024), ("convB2_kernel", 256, 512, BL)]
    txt = file_text(hdr, L, ks)
    if stmod:
        import re
        txt = re.sub(r"(buffer_store_dword\S* [^\n]*)", lambda m: m.group(1) + " " + stmod, txt)
    open(path, "w").write(txt)
if __name__ == "__main__":
    build("v4_dpf.s", NP=1, kf1=True, nk1=512, pf=17408, dpf=True)
    build("v4_tlb.s", NP=1, kf1=True, nk1=512, pf=17408, dpf=True, tlb=True)
```

```python
from asmlib import *
import kern
from kern import srd, lo, hi, xcd_remap, Stamps, LdsQ, exp_acc, MB2, WSBYTES

KVT, YA, X1, X2, X3, ST1, ST3, KW = 0x0, 0x200000, 0x400000, 0x600000, 0x800000, 0xA00000, 0xA10000, 0xC00000
ROW_OUT_T2 = True
_LBL = 0
KV_T2 = False
QH, X0T = 0x1400000, 0x1600000
FUSE_X1 = False
def SG(n): return 100 if kern.DIAG else n

KV_PRIO = True
CODE_PREFETCH = 0
PF_D = False
PF_K = False
TLB_WARM = False
DATA_PREFETCH = False
def k_kv(NP=1, nk=0, kfirst=False):
    a = Asm()
    if CODE_PREFETCH:
        a(f"""s_cmp_ge_u32 s2, 8
s_cbranch_scc1 L_kv_nopf
s_getpc_b64 s[58:59]
L_pf_base:
v_lshlrev_b32 v1, 7, v0
v_cmp_gt_u32 vcc, L_code_end-L_pf_base-4, v1
s_and_saveexec_b64 s[60:61], vcc
s_cbranch_execz L_kv_pfdone
global_load_dword v40, v1, s[58:59]
L_kv_pfdone:
s_mov_b64 exec, s[60:61]""")
        if TLB_WARM:
            a("""s_load_dwordx4 s[4:7], s[0:1], 96
s_load_dwordx2 s[8:9], s[0:1], 120
s_load_dwordx2 s[10:11], s[0:1], 40
v_lshlrev_b32 v1, 15, v0
v_lshlrev_b32 v2, 12, v0
v_mov_b32 v3, 0
s_waitcnt lgkmcnt(0)
global_load_dword v41, v1, s[8:9]
global_load_dword v42, v2, s[6:7]
global_load_dword v43, v3, s[4:5]
global_load_dword v44, v3, s[10:11]""")
        a("L_kv_nopf:")
    if kfirst and nk:
        a(f"""s_add_u32 s60, s2, 256
s_sub_u32 s61, s2, {nk}
s_cmp_lt_u32 s2, {nk}
s_cselect_b32 s61, s60, s61
s_cmp_lt_u32 s2, {nk+256}
s_cselect_b32 s2, s61, s2""")
    a("""s_cmp_ge_u32 s2, 256
s_cbranch_scc1 L_kv_kgen
""" + ("s_setprio 3" if KV_PRIO else "") + """
s_load_dwordx4 s[4:7], s[0:1], 8
s_load_dwordx2 s[8:9], s[0:1], 24
s_load_dwordx2 s[10:11], s[0:1], 120
s_load_dwordx2 s[32:33], s[0:1], 0
s_load_dwordx2 s[34:35], s[0:1], 32
s_load_dwordx2 s[50:51], s[0:1], 40
s_load_dwordx2 s[52:53], s[0:1], 96""")
    st = Stamps(a, 0); st()
    xcd_remap(a, 3, 12)
    a("""v_and_b32 v1, 255, v0
v_lshrrev_b32 v2, 8, v0
s_lshl_b32 s13, s3, 3
v_lshl_add_u32 v3, v2, 2, s13
v_lshlrev_b32 v4, 10, v3
v_lshl_add_u32 v4, v1, 2, v4
v_subrev_u32 v5, 3072, v4
v_subrev_u32 v6, 2048, v4
v_subrev_u32 v7, 1024, v4
v_lshlrev_b32 v8, 4, v1
v_lshrrev_b32 v9, 2, v1
v_lshlrev_b32 v9, 15, v9
v_lshl_add_u32 v9, v3, 4, v9
v_and_b32 v21, 3, v1
v_lshl_add_u32 v9, v21, 2, v9
s_waitcnt lgkmcnt(0)""")
    srd(a, 16, 4, MB2); srd(a, 20, 6, MB2); srd(a, 24, 8, 4096); srd(a, 28, 10, WSBYTES)
    a("""buffer_load_dwordx4 v[24:27], v8, s[24:27], 0 offen
buffer_load_dword v10, v5, s[16:19], 0 offen
buffer_load_dword v11, v6, s[16:19], 0 offen
buffer_load_dword v12, v7, s[16:19], 0 offen
buffer_load_dword v13, v4, s[16:19], 0 offen
buffer_load_dword v14, v4, s[16:19], 0 offen offset:1024
buffer_load_dword v15, v4, s[16:19], 0 offen offset:2048
buffer_load_dword v16, v4, s[16:19], 0 offen offset:3072
buffer_load_dword v17, v4, s[20:23], 0 offen
buffer_load_dword v18, v4, s[20:23], 0 offen offset:1024
buffer_load_dword v19, v4, s[20:23], 0 offen offset:2048
buffer_load_dword v20, v4, s[20:23], 0 offen offset:3072""")
    npf = 0
    if FUSE_X1:
        srd(a, 36, 32, MB2); srd(a, 40, 34, MB2)
        for r in range(4):
            a(f"buffer_load_dword v{64+r}, v4, s[36:39], 0 offen offset:{1024*r}")
        a("""s_lshl_b32 s44, s3, 13
v_lshrrev_b32 v22, 6, v0
v_and_b32 v23, 7, v0
v_lshl_add_u32 v22, v22, 3, v23
v_lshlrev_b32 v22, 7, v22
s_mov_b64 exec, 0xff
buffer_load_dword v68, v22, s[40:43], s44 offen
s_mov_b64 exec, -1
v_and_b32 v75, 7, v0
v_add_u32 v75, s13, v75
v_lshlrev_b32 v75, 10, v75
v_lshrrev_b32 v76, 3, v0
v_lshl_add_u32 v76, v76, 4, v75
buffer_load_dwordx4 v[70:73], v76, s[36:39], 0 offen
buffer_load_dword v74, v75, s[36:39], 0 offen""")
        npf = 7
    elif DATA_PREFETCH:
        srd(a, 36, 32, MB2); srd(a, 40, 34, MB2)
        a("""s_lshl_b32 s44, s3, 13
v_lshrrev_b32 v22, 6, v0
v_and_b32 v23, 7, v0
v_lshl_add_u32 v22, v22, 3, v23
v_lshlrev_b32 v22, 7, v22
s_mov_b64 exec, 0xff
buffer_load_dword v64, v22, s[40:43], s44 offen
buffer_load_dword v65, v22, s[36:39], s44 offen
s_mov_b64 exec, -1""")
        npf = 2
        if PF_D:
            a("""s_lshl_b32 s45, s3, 2
s_add_u32 s50, s50, s45
s_addc_u32 s51, s51, 0
s_add_u32 s52, s52, s45
s_addc_u32 s53, s53, 0
s_load_dword s54, s[50:51], 0
s_load_dword s55, s[52:53], 0""")
    a(f"s_waitcnt vmcnt({11+npf})")
    for ch in range(2):
        lo(a, 28 + 4 * ch + 0, 24 + 2 * ch); hi(a, 28 + 4 * ch + 1, 24 + 2 * ch)
        lo(a, 28 + 4 * ch + 2, 25 + 2 * ch); hi(a, 28 + 4 * ch + 3, 25 + 2 * ch)
    a(f"s_waitcnt vmcnt({4+npf})")
    for i in range(7):
        lo(a, 36 + i, 10 + i); hi(a, 44 + i, 10 + i)
    a(f"s_waitcnt vmcnt({npf})")
    st()
    for r in range(4):
        for t in range(4):
            w = 3 - t
            a(f"v_mul_f32 v54, v{36+r+t}, v{28+w}")
            a(f"v_mul_f32 v55, v{44+r+t}, v{32+w}")
            a("v_cvt_pk_bf16_f32 v56, v54, v55")
            if t == 0:
                lo(a, 52, 56); hi(a, 53, 56)
            else:
                lo(a, 54, 56); hi(a, 55, 56)
                a("v_add_f32 v52, v52, v54")
                a("v_add_f32 v53, v53, v55")
                a("v_cvt_pk_bf16_f32 v56, v52, v53")
                lo(a, 52, 56); hi(a, 53, 56)
        lo(a, 54, 17 + r); hi(a, 55, 17 + r)
        a("v_mul_f32 v52, v52, v54")
        a("v_mul_f32 v53, v53, v55")
        a(f"v_cvt_pk_bf16_f32 v{60+r}, v52, v53")
        if not KV_T2: a(f"buffer_store_dword v{60+r}, v9, s[28:31], 0 offen offset:{16*r}")
    if KV_T2:
        a("""v_lshlrev_b32 v9, 13, v1
v_lshl_add_u32 v9, v3, 2, v9
buffer_store_dwordx4 v[60:63], v9, s[28:31], 0 offen""")
        if FUSE_X1:
            a(f"""s_mov_b32 s45, {X0T}
s_waitcnt vmcnt(4)
buffer_store_dwordx4 v[64:67], v9, s[28:31], s45 offen
s_waitcnt vmcnt(2)""")
            ln0_compute(a)
    st.finish(28)
    a(f"""s_endpgm
L_kv_kgen:
s_cmp_ge_u32 s2, {256+nk}
s_cbranch_scc1 L_kv_ln0""")
    nv = 72
    if nk:
        a("s_sub_u32 s55, s2, 256")
        st2 = Stamps(a, 0)
        nv = kgen_body(a, NP, st2, 55)
    a("""s_endpgm
L_kv_ln0:""")
    a("""L_kv_end:
s_endpgm""")
    return kernel_text("kv_kernel", a.text(), max(nv, 80), SG(64))

XLS = 4160
WL0 = 8 * XLS
WAS = 1152
def EX0(NP): return WL0 + 8 * NP * WAS
def CONV_LDS(NP): return EX0(NP) + 32768
SSETS = [[7, 4, 3, 0], [6, 5, 2, 1]]

def conv_body(a, kind, NP, st, E, dbuf):
    ex0 = EX0(NP)
    if kind == "A":
        a("s_load_dwordx4 s[4:7], s[0:1], 32")
    else:
        a("s_load_dwordx4 s[4:7], s[0:1], 96")
    st()
    xcd_remap(a, 3, 12)
    a("""v_lshrrev_b32 v1, 6, v0
v_and_b32 v2, 63, v0
v_lshlrev_b32 v3, 6, v0
v_lshlrev_b32 v14, 4, v0
v_readfirstlane_b32 s14, v1
s_lshr_b32 s13, s3, 2
s_lshl_b32 s13, s13, 15
s_and_b32 s12, s3, 3
s_lshl_b32 s12, s12, 2
s_add_u32 s13, s13, s12
s_lshl_b32 s15, s3, 2
s_waitcnt lgkmcnt(0)""")
    srd(a, 28, 10, WSBYTES)
    src = {"A": KVT, "B1": X1, "B2": X3}[kind]
    a(f"""s_lshl_b32 s13, s3, 13
s_add_u32 s32, s13, {src}
buffer_load_dwordx4 v[4:7], v14, s[28:31], s32 offen""")
    if kind == "A":
        srd(a, 16, 4, MB2)
        a("s_lshl_b32 s35, s3, 13")
        a("buffer_load_dwordx4 v[48:51], v14, s[16:19], s35 offen")
        if FUSE_X1:
            a(f"s_add_u32 s34, s13, {QH}")
            a("buffer_load_dwordx4 v[8:11], v14, s[28:31], s34 offen")
            a(f"s_add_u32 s34, s13, {X0T}")
            a("buffer_load_dwordx4 v[100:103], v14, s[28:31], s34 offen")
        a("s_add_u32 s6, s6, s15")
        a("s_addc_u32 s7, s7, 0")
        a("s_load_dword s33, s[6:7], 0")
    else:
        stt = {"B1": ST1, "B2": ST3}[kind]
        a(f"s_mov_b32 s34, {stt}")
        a("buffer_load_dwordx4 v[48:51], v14, s[28:31], s34 offen")
        a(f"s_lshl_b32 s35, s3, {12 + NP}")
        a(f"s_add_u32 s35, s35, {KW}")
        if NP == 2:
            a("v_lshlrev_b32 v60, 5, v0")
            a("buffer_load_dwordx4 v[52:55], v60, s[28:31], s35 offen")
            a("buffer_load_dwordx4 v[56:59], v60, s[28:31], s35 offen offset:16")
        else:
            a("buffer_load_dwordx4 v[52:55], v14, s[28:31], s35 offen")
        a("s_add_u32 s4, s4, s15")
        a("s_addc_u32 s5, s5, 0")
        a("s_load_dword s33, s[4:5], 0")
        if kind == "B2":
            srd(a, 20, 6, MB2)
    na = 8 * NP
    a(f"""v_mov_b32 v64, 0
v_mov_b32 v65, 0
v_mov_b32 v66, 0
v_mov_b32 v67, 0
v_lshrrev_b32 v61, 3, v0
v_mul_u32_u24 v61, {WAS}, v61
v_and_b32 v62, 7, v0
v_lshl_add_u32 v61, v62, 4, v61
v_cmp_gt_u32 vcc, {na*8}, v0
s_and_saveexec_b64 s[36:37], vcc
ds_write_b128 v61, v[64:67] offset:{WL0}
s_mov_b64 exec, s[36:37]
v_lshrrev_b32 v61, 1, v0
v_mul_u32_u24 v61, {XLS}, v61
v_and_b32 v62, 1, v0
v_lshl_add_u32 v61, v62, 4, v61
v_cmp_gt_u32 vcc, 16, v0
s_and_saveexec_b64 s[36:37], vcc
ds_write_b128 v61, v[64:67]
s_mov_b64 exec, s[36:37]
v_cmp_eq_u32 vcc, 0, v0
s_and_saveexec_b64 s[36:37], vcc""")
    for ch in range(2):
        b = ch * 4 * XLS
        a(f"ds_write_b16 v64, v64 offset:{b + 1*XLS + 32}")
        a(f"ds_write_b32 v64, v64 offset:{b + 2*XLS + 32}")
        a(f"ds_write_b32 v64, v64 offset:{b + 3*XLS + 32}")
        a(f"ds_write_b16 v64, v64 offset:{b + 3*XLS + 36}")
    a("""s_mov_b64 exec, s[36:37]
s_mov_b32 s38, 0x05040100
s_mov_b32 s39, 0x07060302""")
    a(f"""s_lshr_b32 s40, s14, 2
s_bfe_u32 s41, s14, 0x10001
s_lshl_b32 s41, s41, 1
s_lshl_b32 s42, s40, 2
s_add_u32 s42, s42, s41
s_mul_i32 s42, s42, {XLS}
s_add_u32 s42, s42, 32
s_mul_i32 s43, s40, {NP*4}
s_add_u32 s43, s43, s41
s_mul_i32 s43, s43, {WAS}
s_add_u32 s43, s43, {WL0 + 56}
v_lshrrev_b32 v70, 4, v2
v_and_b32 v71, 3, v2
v_bfe_u32 v72, v2, 2, 2
v_sub_u32 v71, v71, v72
v_lshlrev_b32 v71, 3, v71
v_lshl_add_u32 v71, v70, 6, v71
v_add_u32 v12, s42, v71
v_and_b32 v71, 15, v2
v_lshlrev_b32 v71, 3, v71
v_lshlrev_b32 v72, 4, v70
v_sub_u32 v71, v71, v72
v_add_u32 v13, s43, v71""")
    VXA, VWB, ACC = 12, 13, 16
    for i in range(16): a(f"v_mov_b32 v{ACC+i}, 0")
    if kind == "A":
        a(f"""v_lshrrev_b32 v61, 8, v0
v_mul_u32_u24 v61, {4*WAS}, v61
v_and_b32 v62, 255, v0
v_lshl_add_u32 v61, v62, 2, v61
s_waitcnt vmcnt({2 if FUSE_X1 else 0})""")
        st()
        XS = 4
        a(f"""v_perm_b32 v64, v50, v48, s38
v_perm_b32 v65, v50, v48, s39
v_perm_b32 v66, v51, v49, s38
v_perm_b32 v67, v51, v49, s39
ds_write_b32 v61, v64 offset:{WL0+128}
ds_write_b32 v61, v65 offset:{WL0+128+WAS}
ds_write_b32 v61, v66 offset:{WL0+128+2*WAS}
ds_write_b32 v61, v67 offset:{WL0+128+3*WAS}""")
    else:
        if NP == 2:
            a(f"""v_lshrrev_b32 v61, 5, v0
v_mul_u32_u24 v61, {WAS}, v61
v_and_b32 v62, 31, v0
v_lshl_add_u32 v61, v62, 5, v61
s_waitcnt vmcnt(2)""")
        else:
            a(f"""v_mul_u32_u24 v61, {WAS}, v1
v_lshl_add_u32 v61, v2, 4, v61
s_waitcnt vmcnt(1)""")
        st()
        for r in range(4):
            lo(a, 72, 48 + r); hi(a, 73, 48 + r)
            a("v_rcp_f32 v74, v73")
            lo(a, 75, 4 + r); hi(a, 76, 4 + r)
            a("v_sub_f32 v75, v75, v72")
            a("v_sub_f32 v76, v76, v72")
            a("v_cvt_pk_bf16_f32 v77, v75, v76")
            lo(a, 75, 77); hi(a, 76, 77)
            for x in (75, 76):
                a(f"v_mul_f32 v78, v{x}, v74")
                a(f"v_fma_f32 v79, -v78, v73, v{x}")
                a(f"v_fma_f32 v{x}, v79, v74, v78")
            a(f"v_cvt_pk_bf16_f32 v{8+r}, v75, v76")
        XS = 8
    a("v_lshlrev_b32 v62, 3, v0")
    for ch in range(2):
        sel = "s38" if ch == 0 else "s39"
        b = ch * 4 * XLS + 32
        e0, e1, o1 = 64 + 4 * ch, 65 + 4 * ch, 66 + 4 * ch
        a(f"""v_perm_b32 v{e0}, v{XS+1}, v{XS}, {sel}
v_perm_b32 v{e1}, v{XS+3}, v{XS+2}, {sel}
v_perm_b32 v{o1}, v{XS+2}, v{XS+1}, {sel}
ds_write_b64 v62, v[{e0}:{e1}] offset:{b}
ds_write_b16 v62, v{e0} offset:{b + XLS + 2}
ds_write_b32 v62, v{o1} offset:{b + XLS + 4}
ds_write_b16_d16_hi v62, v{e1} offset:{b + XLS + 8}
ds_write_b32 v62, v{e0} offset:{b + 2*XLS + 4}
ds_write_b32 v62, v{e1} offset:{b + 2*XLS + 8}
ds_write_b16 v62, v{e0} offset:{b + 3*XLS + 6}
ds_write_b32 v62, v{o1} offset:{b + 3*XLS + 8}
ds_write_b16_d16_hi v62, v{e1} offset:{b + 3*XLS + 12}""")
    if kind != "A":
        a(f"""s_waitcnt vmcnt(0)
ds_write_b128 v61, v[52:55] offset:{WL0+128}""")
        if NP == 2:
            a(f"ds_write_b128 v61, v[56:59] offset:{WL0+128+16}")
    a("""s_waitcnt lgkmcnt(0)
s_barrier""")
    st()
    a(f"""s_bitcmp1_b32 s14, 0
s_cbranch_scc1 {E}_S1""")
    F0 = 32
    FSZ = 32 + 32 * NP
    for S in range(2):
        if S == 1: a(f"{E}_S1:")
        q = LdsQ(a)
        tiles = SSETS[S]
        pairs = [(aa, c - aa, ti) for aa in range(8) for ti, c in enumerate(tiles) if c >= aa]
        steps = [(dl, rho) for dl in range(2) for rho in range(2)]
        def regA(si, aa): return F0 + (FSZ * (si & 1) if dbuf else 0) + 4 * aa
        def regB(si, e, p): return F0 + (FSZ * (si & 1) if dbuf else 0) + 32 + 32 * p + 4 * e
        def rdA(si, aa):
            dl, rho = steps[si]
            return [(f"ds_read_b64_tr_b16 v[{regA(si,aa)+2*hh}:{regA(si,aa)+2*hh+1}], v{VXA} offset:{512*aa + 256*rho + 32*hh + dl*XLS}",
                     [regA(si, aa) + 2 * hh, regA(si, aa) + 2 * hh + 1]) for hh in range(2)]
        def rdB(si, e, p):
            dl, rho = steps[si]
            return [(f"ds_read_b64 v[{regB(si,e,p)+2*hh}:{regB(si,e,p)+2*hh+1}], v{VWB} offset:{128*e + 64*(1-rho) + 8*(1-hh) + (p*4+dl)*WAS}",
                     [regB(si, e, p) + 2 * hh, regB(si, e, p) + 2 * hh + 1]) for hh in range(2)]
        def order(si):
            return pairs
        def frag_first_use(ordr):
            seen, out = set(), []
            for (aa, e, ti) in ordr:
                for f in (("A", aa), ("B", e)):
                    if f not in seen: seen.add(f); out.append(f)
            return out
        def reads_for(si, f):
            if f[0] == "A": return rdA(si, f[1])
            r = []
            for p in range(NP): r += rdB(si, f[1], p)
            return r
        ordrs = [pairs]
        for si in range(3):
            if dbuf:
                ordrs.append(pairs); continue
            lu = {}
            for k, (aa, e, ti) in enumerate(ordrs[si]):
                lu[("A", aa)] = k; lu[("B", e)] = k
            ordrs.append(sorted(pairs, key=lambda p: max(lu[("A", p[0])], lu[("B", p[1])])))
        for f in frag_first_use(ordrs[0]):
            for t, d in reads_for(0, f): q.issue(t, d)
        for si in range(4):
            o = ordrs[si]
            pend = frag_first_use(ordrs[si + 1]) if si < 3 else []
            lastuse = {}
            for k, (aa, e, ti) in enumerate(o):
                lastuse[("A", aa)] = k; lastuse[("B", e)] = k
            for k, (aa, e, ti) in enumerate(o):
                for p in range(NP):
                    A = regA(si, aa); B = regB(si, e, p); D = ACC + 4 * ti
                    q.need(list(range(A, A + 4)) + list(range(B, B + 4)))
                    a(f"v_mfma_f32_16x16x32_bf16 v[{D}:{D+3}], v[{A}:{A+3}], v[{B}:{B+3}], v[{D}:{D+3}]")
                if dbuf:
                    if pend:
                        f = pend.pop(0)
                        for t, d in reads_for(si + 1, f): q.issue(t, d)
                else:
                    for f in [f for f in pend if lastuse[f] <= k]:
                        pend.remove(f)
                        for t, d in reads_for(si + 1, f): q.issue(t, d)
            for f in pend:
                for t, d in reads_for(si + 1, f): q.issue(t, d)
        a(f"""v_and_b32 v32, 15, v2
v_lshrrev_b32 v33, 4, v2
v_lshlrev_b32 v34, 2, v33
v_xor_b32 v32, v32, v34
v_lshl_add_u32 v32, v33, 4, v32
v_lshlrev_b32 v32, 4, v32
s_lshr_b32 s44, s14, 1
s_lshl_b32 s44, s44, 13
v_add_u32 v32, s44, v32""")
        for ti, c in enumerate(tiles):
            a(f"ds_write_b128 v32, v[{ACC+4*ti}:{ACC+4*ti+3}] offset:{ex0 + c*1024}")
        if S == 0: a(f"s_branch {E}_J")
    a(f"{E}_J:")
    a(f"""v_lshrrev_b32 v32, 2, v2
v_and_b32 v33, 3, v2
v_lshlrev_b32 v34, 2, v33
v_xor_b32 v32, v32, v34
v_lshl_add_u32 v32, v33, 4, v32
v_lshlrev_b32 v32, 4, v32
s_lshl_b32 s44, s14, 10
s_add_u32 s44, s44, {ex0}
v_add_u32 v32, s44, v32
s_lshl_b32 s46, s33, 16
s_and_b32 s47, s33, 0xffff0000
s_waitcnt lgkmcnt(0)""")
    st()
    a("s_barrier")
    st()
    for k in range(4):
        a(f"ds_read_b128 v[{36+4*k}:{39+4*k}], v32 offset:{k*8192}")
    a("s_waitcnt lgkmcnt(0)")
    for r in range(4):
        a(f"v_add_f32 v52, v{36+r}, v{40+r}")
        a(f"v_add_f32 v53, v{44+r}, v{48+r}")
        a("v_cvt_pk_bf16_f32 v60, v52, v53")
        lo(a, 61, 60); hi(a, 62, 60)
        lo(a, 63, XS + r); hi(a, 64, XS + r)
        a("v_mul_f32 v63, s46, v63")
        a("v_mul_f32 v64, s47, v64")
        a("v_cvt_pk_bf16_f32 v60, v63, v64")
        lo(a, 63, 60); hi(a, 64, 60)
        a("v_add_f32 v61, v61, v63")
        a("v_add_f32 v62, v62, v64")
        if kind == "A":
            a(f"v_cvt_pk_bf16_f32 v{68+r}, v61, v62")
            if FUSE_X1:
                if r == 0: a("s_waitcnt vmcnt(0)")
                lo(a, 61, 68 + r); hi(a, 62, 68 + r)
                lo(a, 63, 8 + r); hi(a, 64, 8 + r)
                a("v_mul_f32 v61, v61, v63")
                a("v_mul_f32 v62, v62, v64")
                a("v_cvt_pk_bf16_f32 v60, v61, v62")
                lo(a, 61, 60); hi(a, 62, 60)
                lo(a, 63, 100 + r); hi(a, 64, 100 + r)
                a("v_add_f32 v61, v61, v63")
                a("v_add_f32 v62, v62, v64")
                a(f"v_cvt_pk_bf16_f32 v{72+r}, v61, v62")
                if r == 3:
                    a(f"s_add_u32 s34, s13, {X1}")
                    a("buffer_store_dwordx4 v[72:75], v14, s[28:31], s34 offen")
        else:
            a("v_cvt_pk_bf16_f32 v60, v61, v62")
            lo(a, 61, 60); hi(a, 62, 60)
            lo(a, 63, 4 + r); hi(a, 64, 4 + r)
            a("v_add_f32 v61, v61, v63")
            a("v_add_f32 v62, v62, v64")
            a(f"v_cvt_pk_bf16_f32 v{68+r}, v61, v62")
        if kind in ("A", "B1"):
            if r == 3:
                dst = YA if kind == "A" else X2
                a("s_lshl_b32 s32, s3, 13")
                a(f"s_add_u32 s32, s32, {dst}")
                a("buffer_store_dwordx4 v[68:71], v14, s[28:31], s32 offen")
        else:
            if r == 0: a("v_lshlrev_b32 v59, 12, v0")
            a(f"buffer_store_dword v{68+r}, v59, s[20:23], s15 offen offset:{1024*r}")
    st()
    st.finish(28)
    return max(F0 + FSZ * (2 if dbuf else 1), 104)

PXLS = 4160
PWL0 = 2 * PXLS
def PCO(NP): return 8 * NP * WAS + 128 - (8 * NP * WAS) % 256
def PEX0(NP): return (PWL0 + PCO(NP) + 8 * NP * WAS + 16 + 255) // 256 * 256
PWSTR = 8192 + 16
def PCONV_LDS(NP): return PEX0(NP) + 8 * PWSTR

def conv_body_p(a, kind, NP, st, E):
    ex0 = PEX0(NP); CO = PCO(NP)
    F0 = 48
    FSZ = 32 + 32 * NP
    XR = F0 + 2 * FSZ
    VW, VC, VP, VC2, VP2 = XR, XR + 1, XR + 2, XR + 3, XR + 4
    TD, XU = XR + 8, XR + 16
    if kind == "A":
        a("s_load_dwordx4 s[4:7], s[0:1], 32")
    else:
        a("s_load_dwordx4 s[4:7], s[0:1], 96")
    st()
    xcd_remap(a, 3, 12)
    a("""v_lshrrev_b32 v1, 6, v0
v_and_b32 v2, 63, v0
v_lshlrev_b32 v14, 4, v0
v_readfirstlane_b32 s14, v1
s_lshl_b32 s13, s3, 13
s_lshl_b32 s15, s3, 2
s_waitcnt lgkmcnt(0)""")
    srd(a, 28, 10, WSBYTES)
    src = {"A": KVT, "B1": X1, "B2": X3}[kind]
    a(f"s_add_u32 s32, s13, {src}")
    a("buffer_load_dwordx4 v[4:7], v14, s[28:31], s32 offen")
    if kind == "A":
        srd(a, 16, 4, MB2)
        a("buffer_load_dwordx4 v[48:51], v14, s[16:19], s13 offen")
        if FUSE_X1:
            a(f"s_add_u32 s34, s13, {QH}")
            a("buffer_load_dwordx4 v[8:11], v14, s[28:31], s34 offen")
            a(f"s_add_u32 s34, s13, {X0T}")
            a(f"buffer_load_dwordx4 v[{XR+24}:{XR+27}], v14, s[28:31], s34 offen")
        a("s_add_u32 s6, s6, s15")
        a("s_addc_u32 s7, s7, 0")
        a("s_load_dword s33, s[6:7], 0")
    else:
        stt = {"B1": ST1, "B2": ST3}[kind]
        a(f"s_mov_b32 s34, {stt}")
        a("buffer_load_dwordx4 v[48:51], v14, s[28:31], s34 offen")
        a(f"s_lshl_b32 s35, s3, {12 + NP}")
        a(f"s_add_u32 s35, s35, {KW}")
        if NP == 2:
            a("v_lshlrev_b32 v60, 5, v0")
            a("buffer_load_dwordx4 v[52:55], v60, s[28:31], s35 offen")
            a("buffer_load_dwordx4 v[56:59], v60, s[28:31], s35 offen offset:16")
        else:
            a("buffer_load_dwordx4 v[52:55], v14, s[28:31], s35 offen")
        a("s_add_u32 s4, s4, s15")
        a("s_addc_u32 s5, s5, 0")
        a("s_load_dword s33, s[4:5], 0")
        if kind == "B2":
            srd(a, 20, 6, MB2)
    na = 8 * NP
    a(f"""v_mov_b32 v64, 0
v_mov_b32 v65, 0
v_mov_b32 v66, 0
v_mov_b32 v67, 0
v_lshrrev_b32 v61, 4, v0
v_mul_u32_u24 v61, {WAS}, v61
v_and_b32 v62, 15, v0
v_lshl_add_u32 v61, v62, 3, v61
v_cmp_gt_u32 vcc, {na*16}, v0
s_and_saveexec_b64 s[36:37], vcc
ds_write_b64 v61, v[64:65] offset:{PWL0}
ds_write_b64 v61, v[64:65] offset:{PWL0 + CO + 8}
s_mov_b64 exec, s[36:37]
v_lshrrev_b32 v61, 1, v0
v_mul_u32_u24 v61, {PXLS}, v61
v_and_b32 v62, 1, v0
v_lshl_add_u32 v61, v62, 4, v61
v_cmp_gt_u32 vcc, 4, v0
s_and_saveexec_b64 s[36:37], vcc
ds_write_b128 v61, v[64:67]
s_mov_b64 exec, s[36:37]
s_mov_b32 s38, 0x05040100
s_mov_b32 s39, 0x07060302""")
    a(f"""s_lshr_b32 s40, s14, 2
s_and_b32 s41, s14, 3
s_mul_i32 s42, s40, {PXLS}
s_add_u32 s42, s42, 32
s_mul_i32 s43, s40, {NP*4}
s_add_u32 s43, s43, s41
s_mul_i32 s43, s43, {WAS}
s_add_u32 s43, s43, {PWL0 + 56}
v_lshrrev_b32 v70, 4, v2
v_and_b32 v71, 3, v2
v_bfe_u32 v72, v2, 2, 2
v_sub_u32 v71, v71, v72
v_lshlrev_b32 v71, 3, v71
v_lshl_add_u32 v71, v70, 6, v71
v_add_u32 v12, s42, v71
v_and_b32 v71, 15, v2
v_lshlrev_b32 v71, 3, v71
v_lshlrev_b32 v72, 4, v70
v_sub_u32 v71, v71, v72
v_add_u32 v13, s43, v71
v_and_b32 v71, 1, v2
v_xor_b32 v71, 1, v71
v_mul_u32_u24 v71, {CO + 8}, v71
v_add_u32 v13, v13, v71""")
    VXA, VWB, ACC = 12, 13, 16
    for i in range(32): a(f"v_mov_b32 v{ACC+i}, 0")
    a(f"""v_and_b32 v70, 15, v2
v_lshrrev_b32 v71, 4, v2
v_lshlrev_b32 v72, 2, v71
v_xor_b32 v70, v70, v72
v_lshl_add_u32 v70, v71, 4, v70
v_lshlrev_b32 v70, 4, v70
s_mul_i32 s44, s14, {PWSTR}
s_add_u32 s44, s44, {ex0}
v_add_u32 v{VW}, s44, v70
v_mov_b32 v70, s44
s_mov_b64 exec, 1
ds_write_b128 v70, v[64:67] offset:8192
s_mov_b64 exec, -1
v_lshrrev_b32 v70, 2, v2
v_and_b32 v71, 3, v2
v_lshlrev_b32 v72, 2, v71
v_xor_b32 v70, v70, v72
v_lshl_add_u32 v70, v71, 4, v70
v_lshlrev_b32 v70, 4, v70
s_lshl_b32 s44, s14, 10
s_add_u32 s44, s44, {ex0}
v_add_u32 v{VC}, s44, v70
v_subrev_u32 v73, 1, v2
v_lshrrev_b32 v71, 2, v73
v_and_b32 v73, 3, v73
v_lshlrev_b32 v72, 2, v73
v_xor_b32 v71, v71, v72
v_lshl_add_u32 v71, v73, 4, v71
v_lshlrev_b32 v71, 4, v71
v_add_u32 v71, s44, v71
s_sub_u32 s45, s44, {1024 - 51*16}
s_cmp_eq_u32 s14, 0
s_cselect_b32 s45, {ex0 + 8192}, s45
v_mov_b32 v72, s45
v_cmp_eq_u32 vcc, 0, v2
v_cndmask_b32 v{VP}, v71, v72, vcc
v_add_u32 v{VC2}, {4*PWSTR}, v{VC}
v_add_u32 v{VP2}, {4*PWSTR}, v{VP}
v_lshlrev_b32 v62, 3, v0""")
    if kind == "A":
        a(f"""v_lshrrev_b32 v61, 8, v0
v_mul_u32_u24 v61, {4*WAS}, v61
v_and_b32 v63, 255, v0
v_lshl_add_u32 v61, v63, 2, v61
s_waitcnt vmcnt({3 if FUSE_X1 else 1})""")
        st()
        XS = 4
    else:
        if NP == 2:
            a(f"""v_lshrrev_b32 v61, 5, v0
v_mul_u32_u24 v61, {WAS}, v61
v_and_b32 v63, 31, v0
v_lshl_add_u32 v61, v63, 5, v61
s_waitcnt vmcnt(2)""")
        else:
            a(f"""v_mul_u32_u24 v61, {WAS}, v1
v_lshl_add_u32 v61, v2, 4, v61
s_waitcnt vmcnt(1)""")
        st()
        for r in range(4):
            T = 72 + 8 * r
            lo(a, T, 48 + r); hi(a, T + 1, 48 + r)
            a(f"v_rcp_f32 v{T+2}, v{T+1}")
            lo(a, XU + 2 * r, 4 + r); hi(a, XU + 2 * r + 1, 4 + r)
        for r in range(4):
            T = 72 + 8 * r
            a(f"v_sub_f32 v{T+3}, v{XU+2*r}, v{T}")
            a(f"v_sub_f32 v{T+4}, v{XU+2*r+1}, v{T}")
            a(f"v_cvt_pk_bf16_f32 v{T+5}, v{T+3}, v{T+4}")
            lo(a, T + 3, T + 5); hi(a, T + 4, T + 5)
            for x in (T + 3, T + 4):
                a(f"v_mul_f32 v{T+6}, v{x}, v{T+2}")
                a(f"v_fma_f32 v{T+7}, -v{T+6}, v{T+1}, v{x}")
                a(f"v_fma_f32 v{x}, v{T+7}, v{T+2}, v{T+6}")
            a(f"v_cvt_pk_bf16_f32 v{8+r}, v{T+3}, v{T+4}")
        XS = 8
    a(f"""v_perm_b32 v64, v{XS+1}, v{XS}, s38
v_perm_b32 v65, v{XS+3}, v{XS+2}, s38
v_perm_b32 v66, v{XS+1}, v{XS}, s39
v_perm_b32 v67, v{XS+3}, v{XS+2}, s39
ds_write_b64 v62, v[64:65] offset:32
ds_write_b64 v62, v[66:67] offset:{PXLS+32}
s_waitcnt vmcnt({2 if (kind == "A" and FUSE_X1) else 0})""")
    if kind == "A":
        a("""v_perm_b32 v68, v50, v48, s38
v_perm_b32 v69, v50, v48, s39
v_perm_b32 v70, v51, v49, s38
v_perm_b32 v71, v51, v49, s39""")
        for f in range(4):
            a(f"ds_write_b32 v61, v{68+f} offset:{PWL0+128+f*WAS}")
            a(f"ds_write_b32 v61, v{68+f} offset:{PWL0+128+f*WAS+CO+8}")
    else:
        for h in range(NP):
            b = 52 + 4 * h
            a(f"ds_write_b128 v61, v[{b}:{b+3}] offset:{PWL0+128+16*h}")
            a(f"ds_write_b64 v61, v[{b}:{b+1}] offset:{PWL0+128+16*h+CO+8}")
            a(f"ds_write_b64 v61, v[{b+2}:{b+3}] offset:{PWL0+128+16*h+CO+16}")
    a("""s_waitcnt lgkmcnt(0)
s_lshl_b32 s46, s33, 16
s_and_b32 s47, s33, 0xffff0000
s_barrier""")
    st()
    FA = [F0, F0 + FSZ]
    FB = [F0 + 32, F0 + FSZ + 32]
    q = LdsQ(a)
    def rdA(rho, aa):
        return [(f"ds_read_b64_tr_b16 v[{FA[rho]+4*aa+2*hh}:{FA[rho]+4*aa+2*hh+1}], v{VXA} offset:{512*aa + 256*rho + 32*(1-hh)}",
                 [FA[rho] + 4 * aa + 2 * hh, FA[rho] + 4 * aa + 2 * hh + 1]) for hh in range(2)]
    def rdB(rho, e, p):
        d = FB[rho] + 32 * p + 4 * e
        return [(f"ds_read_b128 v[{d}:{d+3}], v{VWB} offset:{128*e + 64*(1-rho) + p*4*WAS}", list(range(d, d + 4)))]
    order = [(aa, c - aa, c) for c in range(8) for aa in range(c + 1)]
    def reads(rho):
        seen, r = set(), []
        for (aa, e, c) in order:
            if ("A", aa) not in seen: seen.add(("A", aa)); r += rdA(rho, aa)
            if ("B", e) not in seen:
                seen.add(("B", e))
                for p in range(NP): r += rdB(rho, e, p)
        return r
    def mf(rho, aa, e, c, p):
        A = FA[rho] + 4 * aa; B = FB[rho] + 32 * p + 4 * e; D = ACC + 4 * c
        q.need(list(range(A, A + 4)) + list(range(B, B + 4)))
        a(f"v_mfma_f32_16x16x32_bf16 v[{D}:{D+3}], v[{A}:{A+3}], v[{B}:{B+3}], v[{D}:{D+3}]")
    fill = []
    for r in range(4):
        fill += [f"v_lshlrev_b32 v{TD+2*r}, 16, v{XS+r}", f"v_and_b32 v{TD+2*r+1}, 0xffff0000, v{XS+r}",
                 f"v_mul_f32 v{TD+2*r}, s46, v{TD+2*r}", f"v_mul_f32 v{TD+2*r+1}, s47, v{TD+2*r+1}",
                 f"v_cvt_pk_bf16_f32 v15, v{TD+2*r}, v{TD+2*r+1}",
                 f"v_lshlrev_b32 v{TD+2*r}, 16, v15", f"v_and_b32 v{TD+2*r+1}, 0xffff0000, v15"]
    if kind == "B2": fill.append("v_lshlrev_b32 v3, 12, v0")
    QU = XR + 28
    if kind == "A" and FUSE_X1:
        fill.append("s_waitcnt vmcnt(0)")
        for r in range(4):
            fill += [f"v_lshlrev_b32 v{QU+2*r}, 16, v{8+r}", f"v_and_b32 v{QU+2*r+1}, 0xffff0000, v{8+r}",
                     f"v_lshlrev_b32 v{XU+2*r}, 16, v{XR+24+r}", f"v_and_b32 v{XU+2*r+1}, 0xffff0000, v{XR+24+r}"]
    for t, d in reads(0): q.issue(t, d)
    r1 = reads(1)
    for (aa, e, c) in order:
        for p in range(NP):
            mf(0, aa, e, c, p)
            if r1:
                tt, dd = r1.pop(0); q.issue(tt, dd)
            elif fill: a(fill.pop(0))
    for tt, dd in r1: q.issue(tt, dd)
    pendw = []
    for (aa, e, c) in order:
        for p in range(NP):
            mf(1, aa, e, c, p)
            if fill: a(fill.pop(0))
            pendw = [(cc, n - 1) for cc, n in pendw]
            for cc, n in [x for x in pendw if x[1] <= 0]:
                q.issue(f"ds_write_b128 v{VW}, v[{ACC+4*cc}:{ACC+4*cc+3}] offset:{cc*1024}", [])
            pendw = [x for x in pendw if x[1] > 0]
        if aa == c: pendw.append((c, 5))
    for f in fill: a(f)
    for cc, n in pendw:
        q.issue(f"ds_write_b128 v{VW}, v[{ACC+4*cc}:{ACC+4*cc+3}] offset:{cc*1024}", [])
    a("s_waitcnt lgkmcnt(0)")
    st()
    a("s_barrier")
    st()
    for w in range(8):
        b = VC if w < 4 else VC2
        a(f"ds_read_b128 v[{48+4*w}:{51+4*w}], v{b} offset:{(w&3)*PWSTR}")
        if w & 3:
            b = VP if w < 4 else VP2
            a(f"ds_read_b128 v[{80+4*w}:{83+4*w}], v{b} offset:{(w&3)*PWSTR}")
    for ch in range(2):
        a(f"s_waitcnt lgkmcnt({7 if ch == 0 else 0})")
        cur = lambda d, i: 48 + 4 * (4 * ch + d) + i
        prv = lambda d, i: 80 + 4 * (4 * ch + d) + i
        for r in range(4):
            t = [cur(0, r)]
            for d in range(1, 4):
                t.append(cur(d, r - d) if r - d >= 0 else prv(d, 4 + r - d))
            y = 16 + 4 * ch + r
            a(f"v_add_f32 v{y}, v{t[0]}, v{t[1]}")
            a(f"v_add_f32 v{24+r}, v{t[2]}, v{t[3]}")
            a(f"v_add_f32 v{y}, v{y}, v{24+r}")
    for r in range(4):
        T = 28 + 4 * r
        a(f"v_cvt_pk_bf16_f32 v{T}, v{16+r}, v{20+r}")
        lo(a, T + 1, T); hi(a, T + 2, T)
        a(f"v_add_f32 v{T+1}, v{T+1}, v{TD+2*r}")
        a(f"v_add_f32 v{T+2}, v{T+2}, v{TD+2*r+1}")
        if kind == "A":
            a(f"v_cvt_pk_bf16_f32 v{44+r}, v{T+1}, v{T+2}")
            if FUSE_X1:
                lo(a, T + 1, 44 + r); hi(a, T + 2, 44 + r)
                a(f"v_mul_f32 v{T+1}, v{T+1}, v{QU+2*r}")
                a(f"v_mul_f32 v{T+2}, v{T+2}, v{QU+2*r+1}")
                a(f"v_cvt_pk_bf16_f32 v{T}, v{T+1}, v{T+2}")
                lo(a, T + 1, T); hi(a, T + 2, T)
                a(f"v_add_f32 v{T+1}, v{T+1}, v{XU+2*r}")
                a(f"v_add_f32 v{T+2}, v{T+2}, v{XU+2*r+1}")
                a(f"v_cvt_pk_bf16_f32 v{48+r}, v{T+1}, v{T+2}")
                if r == 3:
                    a(f"s_add_u32 s34, s13, {X1}")
                    a("buffer_store_dwordx4 v[48:51], v14, s[28:31], s34 offen")
        else:
            a(f"v_cvt_pk_bf16_f32 v{T}, v{T+1}, v{T+2}")
            lo(a, T + 1, T); hi(a, T + 2, T)
            a(f"v_add_f32 v{T+1}, v{T+1}, v{XU+2*r}")
            a(f"v_add_f32 v{T+2}, v{T+2}, v{XU+2*r+1}")
            a(f"v_cvt_pk_bf16_f32 v{44+r}, v{T+1}, v{T+2}")
        if kind in ("A", "B1"):
            if r == 3:
                dst = YA if kind == "A" else X2
                a(f"s_add_u32 s32, s13, {dst}")
                a("buffer_store_dwordx4 v[44:47], v14, s[28:31], s32 offen")
        else:
            a(f"buffer_store_dword v{44+r}, v3, s[20:23], s15 offen offset:{1024*r}")
    st()
    st.finish(28)
    return XR + 36

def k_conv(kind, NP, dbuf=True, optp=False):
    name = {"A": "convA_kernel", "B1": "convB1_kernel", "B2": "convB2_kernel"}[kind]
    if kind == "A": NP = 1
    a = Asm()
    E = f"L_{name}"
    a(f"""s_cmp_ge_u32 s2, 256
s_cbranch_scc1 {E}_end
s_load_dwordx2 s[10:11], s[0:1], 120""")
    st = Stamps(a, {"A": 2, "B1": 4, "B2": 6}[kind])
    nv = conv_body_p(a, kind, NP, st, E) if optp else conv_body(a, kind, NP, st, E, dbuf)
    a(f"""{E}_end:
s_endpgm""")
    return kernel_text(name, a.text(), nv, SG(64))

def row_reduce(a, S1, S2, T, waddr, ldsoff):
    a(f"""v_permlane32_swap_b32 v{S1}, v{S2}
v_add_f32 v{S1}, v{S1}, v{S2}
v_mov_b32 v{T}, v{S1}
v_permlane16_swap_b32 v{S1}, v{T}
v_add_f32 v{S1}, v{S1}, v{T}
v_add_f32_dpp v{S1}, v{S1}, v{S1} row_ror:8 row_mask:0xf bank_mask:0xf
s_mov_b64 exec, s[48:49]
ds_write_b32 v{waddr}, v{S1} offset:{ldsoff}
s_mov_b64 exec, -1
s_waitcnt lgkmcnt(0)
s_barrier""")

def row_stats(a, raddr, ldsoff, piv, T, o_mean, o_m, o_den):
    a(f"""ds_read_b128 v[{T}:{T+3}], v{raddr} offset:{ldsoff}
ds_read_b128 v[{T+4}:{T+7}], v{raddr} offset:{ldsoff+16}
ds_read_b128 v[{T+8}:{T+11}], v{raddr} offset:{ldsoff+256}
ds_read_b128 v[{T+12}:{T+15}], v{raddr} offset:{ldsoff+272}
s_waitcnt lgkmcnt(2)""")
    for b in (0, 8):
        if b == 8: a("s_waitcnt lgkmcnt(0)")
        a(f"""v_add_f32 v{T+b}, v{T+b}, v{T+b+1}
v_add_f32 v{T+b+2}, v{T+b+2}, v{T+b+3}
v_add_f32 v{T+b+4}, v{T+b+4}, v{T+b+5}
v_add_f32 v{T+b+6}, v{T+b+6}, v{T+b+7}
v_add_f32 v{T+b}, v{T+b}, v{T+b+2}
v_add_f32 v{T+b+4}, v{T+b+4}, v{T+b+6}
v_add_f32 v{T+b}, v{T+b}, v{T+b+4}""")
    a(f"""v_mul_f32 v{T}, 0x3b000000, v{T}
v_mul_f32 v{T+1}, 0x3b000000, v{T+8}
v_add_f32 v{o_mean}, v{piv}, v{T}
v_fma_f32 v{T+1}, -v{T}, v{T}, v{T+1}
v_max_f32 v{T+1}, 0, v{T+1}
v_cvt_pk_bf16_f32 v{T+2}, v{o_mean}, v{T+1}
v_lshlrev_b32 v{o_m}, 16, v{T+2}
v_and_b32 v{T+1}, 0xffff0000, v{T+2}
v_add_f32 v{T+1}, 0x3727c5ac, v{T+1}
v_cvt_pk_bf16_f32 v{T+1}, v{T+1}, v{T+1}
v_and_b32 v{T+1}, 0xffff0000, v{T+1}
v_sqrt_f32 v{T+1}, v{T+1}
v_cvt_pk_bf16_f32 v{T+1}, v{T+1}, v{T+1}
v_and_b32 v{o_den}, 0xffff0000, v{T+1}""")

def row_partial(a, P):
    for k in range(8):
        a(f"v_sub_f32 v{48+k}, v{24+k}, v{P}")
    a("v_add_f32 v40, v48, v49")
    a("v_mul_f32 v41, v48, v48")
    a("v_mul_f32 v42, v49, v49")
    for k in range(2, 8, 2):
        a(f"v_add_f32 v43, v{48+k}, v{49+k}")
        a(f"v_fmac_f32 v41, v{48+k}, v{48+k}")
        a(f"v_fmac_f32 v42, v{49+k}, v{49+k}")
        a("v_add_f32 v40, v40, v43")
    a("v_add_f32 v41, v41, v42")

def row_setup(a, rb_sgpr):
    a(f"""v_and_b32 v1, 7, v0
v_lshrrev_b32 v2, 3, v0
s_lshl_b32 s13, s{rb_sgpr}, 3
v_add_u32 v3, s13, v1
v_lshlrev_b32 v9, 15, v2
v_lshl_add_u32 v8, v3, 2, v9
s_mov_b32 s48, 0xff
s_mov_b32 s49, 0xff
v_lshlrev_b32 v11, 5, v1
v_bfe_u32 v10, v0, 5, 1
v_lshl_add_u32 v10, v10, 8, v11
v_lshrrev_b32 v5, 6, v0
v_lshl_add_u32 v10, v5, 2, v10""")

def ln0_compute(a):
    row_setup(a, 3)
    a("v_lshlrev_b32 v20, 16, v74")
    for k in range(4):
        lo(a, 24 + 2 * k, 70 + k); hi(a, 25 + 2 * k, 70 + k)
    row_partial(a, 20)
    row_reduce(a, 40, 41, 42, 10, 0)
    row_stats(a, 11, 0, 20, 48, 21, 22, 23)
    a("v_rcp_f32 v36, v23")
    for k in range(4):
        x0, x1 = 24 + 2 * k, 25 + 2 * k
        a(f"v_sub_f32 v51, v{x0}, v22")
        a(f"v_sub_f32 v52, v{x1}, v22")
        a("v_cvt_pk_bf16_f32 v53, v51, v52")
        lo(a, 51, 53); hi(a, 52, 53)
        for x in (51, 52):
            a(f"v_mul_f32 v54, v{x}, v36")
            a(f"v_fma_f32 v55, -v54, v23, v{x}")
            a(f"v_fma_f32 v{x}, v55, v36, v54")
        a(f"v_cvt_pk_bf16_f32 v{56+k}, v51, v52")
        a(f"s_mov_b32 s34, {QH + 8192*k}")
        a(f"buffer_store_dword v{56+k}, v8, s[28:31], s34 offen")

def k_stat1():
    name = "row1_kernel"
    E = f"L_{name}_end"
    a = Asm()
    a(f"""s_cmp_ge_u32 s2, 256
s_cbranch_scc1 {E}
s_load_dwordx2 s[10:11], s[0:1], 120""")
    st = Stamps(a, 3); st()
    xcd_remap(a, 3, 12)
    row_setup(a, 3)
    a("s_waitcnt lgkmcnt(0)")
    srd(a, 28, 10, WSBYTES)
    a(f"""s_mov_b32 s33, {X1}
v_lshlrev_b32 v7, 2, v3""")
    for k in range(4):
        a(f"s_add_u32 s34, s33, {8192*k}")
        a(f"buffer_load_dword v{16+k}, v8, s[28:31], s34 offen")
    a("""buffer_load_dword v20, v7, s[28:31], s33 offen
s_waitcnt vmcnt(0)
v_lshlrev_b32 v20, 16, v20""")
    st()
    for k in range(4):
        lo(a, 24 + 2 * k, 16 + k); hi(a, 25 + 2 * k, 16 + k)
    row_partial(a, 20)
    row_reduce(a, 40, 41, 42, 10, 0)
    a(f"""v_cmp_gt_u32 vcc, 8, v0
s_and_saveexec_b64 s[36:37], vcc
s_cbranch_execz {E}""")
    row_stats(a, 11, 0, 20, 64, 60, 61, 62)
    a(f"""v_lshrrev_b32 v61, 16, v61
v_or_b32 v61, v61, v62
s_mov_b32 s35, {ST1}
buffer_store_dword v61, v7, s[28:31], s35 offen""")
    st.finish(28)
    a(f"""{E}:
s_endpgm""")
    return kernel_text(name, a.text(), 80, SG(56))

def k_row(kind, NP=1, nk=0, ch0=0):
    name = {"R1": "row1_kernel", "R2": "row2_kernel"}[kind]
    E = f"L_{name}_end"
    a = Asm()
    if nk:
        a(f"""s_add_u32 s60, s2, 256
s_sub_u32 s61, s2, {nk}
s_cmp_lt_u32 s2, {nk}
s_cselect_b32 s61, s60, s61
s_cmp_lt_u32 s2, {nk+256}
s_cselect_b32 s2, s61, s2""")
    a(f"""s_cmp_ge_u32 s2, 256
s_cbranch_scc1 {E}_kgen
s_setprio 3
s_load_dwordx2 s[10:11], s[0:1], 120
s_load_dwordx2 s[4:5], s[0:1], 0""")
    st = Stamps(a, {"R1": 3, "R2": 5}[kind]); st()
    xcd_remap(a, 3, 12)
    a("""v_and_b32 v1, 7, v0
v_lshrrev_b32 v2, 3, v0
s_lshl_b32 s13, s3, 3
v_add_u32 v3, s13, v1
v_lshlrev_b32 v9, 15, v2
v_lshl_add_u32 v8, v3, 2, v9
v_lshl_add_u32 v9, v3, 4, v9
s_waitcnt lgkmcnt(0)""")
    srd(a, 28, 10, WSBYTES)
    a(f"s_mov_b32 s32, {YA}")
    if kind == "R1":
        srd(a, 16, 4, MB2)
        a("""v_lshlrev_b32 v7, 10, v3
v_lshl_add_u32 v4, v2, 4, v7
buffer_load_dwordx4 v[16:19], v4, s[16:19], 0 offen
buffer_load_dword v20, v7, s[16:19], 0 offen""")
    else:
        a(f"""s_mov_b32 s33, {X2}
v_lshlrev_b32 v7, 2, v3""")
        for k in range(4):
            a(f"s_add_u32 s34, s33, {8192*k}")
            a(f"buffer_load_dword v{16+k}, v8, s[28:31], s34 offen")
        a("buffer_load_dword v20, v7, s[28:31], s33 offen")
    for k in range(4):
        a(f"s_add_u32 s34, s32, {8192*k}")
        a(f"buffer_load_dword v{12+k}, v8, s[28:31], s34 offen")
    if PF_K:
        a(f"""s_lshl_b32 s44, s3, {12+NP}
s_add_u32 s44, s44, {KW}
v_lshrrev_b32 v22, 6, v0
v_lshl_add_u32 v22, v22, 3, v1
v_lshlrev_b32 v22, 7, v22
s_mov_b64 exec, 0xff
buffer_load_dword v38, v22, s[28:31], s44 offen
s_mov_b64 exec, -1""")
    a("""s_mov_b32 s48, 0xff
s_mov_b32 s49, 0xff
v_lshlrev_b32 v11, 5, v1
v_bfe_u32 v10, v0, 5, 1
v_lshl_add_u32 v10, v10, 8, v11
v_lshrrev_b32 v5, 6, v0
v_lshl_add_u32 v10, v5, 2, v10
""" + f"s_waitcnt vmcnt({5 if PF_K else 4})" + """
v_lshlrev_b32 v20, 16, v20""")
    st()
    for k in range(4):
        lo(a, 24 + 2 * k, 16 + k); hi(a, 25 + 2 * k, 16 + k)
    def partial(P):
        for k in range(8):
            a(f"v_sub_f32 v{48+k}, v{24+k}, v{P}")
        a("v_add_f32 v40, v48, v49")
        a("v_mul_f32 v41, v48, v48")
        a("v_mul_f32 v42, v49, v49")
        for k in range(2, 8, 2):
            a(f"v_add_f32 v43, v{48+k}, v{49+k}")
            a(f"v_fmac_f32 v41, v{48+k}, v{48+k}")
            a(f"v_fmac_f32 v42, v{49+k}, v{49+k}")
            a("v_add_f32 v40, v40, v43")
        a("v_add_f32 v41, v41, v42")
    partial(20)
    row_reduce(a, 40, 41, 42, 10, 0)
    row_stats(a, 11, 0, 20, 48, 21, 22, 23)
    st()
    a("v_rcp_f32 v36, v23")
    a(f"s_waitcnt vmcnt({1 if PF_K else 0})")
    for k in range(4):
        x0, x1 = 24 + 2 * k, 25 + 2 * k
        a(f"v_sub_f32 v51, v{x0}, v22")
        a(f"v_sub_f32 v52, v{x1}, v22")
        a("v_cvt_pk_bf16_f32 v53, v51, v52")
        lo(a, 51, 53); hi(a, 52, 53)
        for x in (51, 52):
            a(f"v_mul_f32 v54, v{x}, v36")
            a(f"v_fma_f32 v55, -v54, v23, v{x}")
            a(f"v_fma_f32 v{x}, v55, v36, v54")
        a("v_cvt_pk_bf16_f32 v53, v51, v52")
        lo(a, 51, 53); hi(a, 52, 53)
        lo(a, 54, 12 + k); hi(a, 55, 12 + k)
        a("v_mul_f32 v51, v51, v54")
        a("v_mul_f32 v52, v52, v55")
        a("v_cvt_pk_bf16_f32 v53, v51, v52")
        lo(a, 51, 53); hi(a, 52, 53)
        a(f"v_add_f32 v51, v51, v{x0}")
        a(f"v_add_f32 v52, v52, v{x1}")
        a(f"v_cvt_pk_bf16_f32 v{56+k}, v51, v52")
        lo(a, x0, 56 + k); hi(a, x1, 56 + k)
    dst = X1 if kind == "R1" else X3
    if ROW_OUT_T2:
        for k in range(4):
            a(f"s_mov_b32 s34, {dst + 8192*k}")
            a(f"buffer_store_dword v{56+k}, v8, s[28:31], s34 offen")
    else:
        a(f"s_mov_b32 s34, {dst}")
        a("buffer_store_dwordx4 v[56:59], v9, s[28:31], s34 offen")
    st()
    partial(21)
    row_reduce(a, 40, 41, 42, 10, 512)
    stt = ST1 if kind == "R1" else ST3
    a(f"""v_cmp_gt_u32 vcc, 8, v0
s_and_saveexec_b64 s[36:37], vcc
s_cbranch_execz {E}""")
    row_stats(a, 11, 512, 21, 64, 60, 61, 62)
    a(f"""v_lshrrev_b32 v61, 16, v61
v_or_b32 v61, v61, v62
v_lshlrev_b32 v7, 2, v3
s_mov_b32 s35, {stt}
buffer_store_dword v61, v7, s[28:31], s35 offen""")
    st.finish(28)
    a(f"""s_endpgm
{E}_kgen:
s_cmp_ge_u32 s2, {256+nk}
s_cbranch_scc1 {E}""")
    nv = 80
    if nk:
        a(f"s_add_u32 s55, s2, {ch0-256}")
        st2 = Stamps(a, 3)
        nv = kgen_body(a, NP, st2, 55)
    a(f"""{E}:
s_endpgm""")
    return kernel_text(name, a.text(), nv, SG(64))

KPART = 0
KPRM = 8 * 3072
KTAB0 = KPRM + 8 * 256
KGEN_LDS = KTAB0 + 2176 * 4
def kgen_body(a, NP, st, ch_sgpr):
    a(f"""s_load_dwordx8 s[4:11], s[0:1], 56
s_load_dwordx2 s[12:13], s[0:1], 88
s_load_dwordx2 s[14:15], s[0:1], 120
v_and_b32 v1, 15, v0
v_bfe_u32 v2, v0, 4, 2
v_lshrrev_b32 v3, 6, v0
s_lshl_b32 s3, s{ch_sgpr}, 8
v_lshlrev_b32 v4, 5, v3
v_lshl_add_u32 v4, v1, 1, v4
s_mov_b32 s50, 0x3fb8aa3b
s_mov_b32 s51, 0x32a57060
s_mov_b32 s52, 0x3f317218
s_mov_b32 s53, 0x3e22f983
s_mov_b32 s54, 0x07060302
v_readfirstlane_b32 s56, v3
s_waitcnt lgkmcnt(0)""")
    st()
    for i in range(4): srd(a, 16 + 4 * i, 4 + 2 * i, 131072)
    srd(a, 32, 14, WSBYTES)
    for i in range(4):
        a(f"buffer_load_ushort v{8+i}, v4, s[{16+4*i}:{19+4*i}], s3 offen")
    a(f"""s_lshr_b32 s36, s{ch_sgpr}, 1
s_lshl_b32 s36, s36, 2
s_add_u32 s12, s12, s36
s_addc_u32 s13, s13, 0
s_load_dword s37, s[12:13], 0""")
    a(f"""v_lshrrev_b32 v28, 3, v1
v_lshlrev_b32 v28, 7, v28
v_and_b32 v29, 7, v1
v_or_b32 v24, v28, v29
v_lshrrev_b32 v28, 2, v1
v_lshlrev_b32 v28, 7, v28
v_and_b32 v29, 3, v1
v_lshl_add_u32 v28, v29, 1, v28
v_add_u32 v28, 256, v28
v_bfe_u32 v29, v1, 1, 2
v_lshlrev_b32 v29, 7, v29
v_and_b32 v30, 1, v1
v_lshl_add_u32 v29, v30, 2, v29
v_add_u32 v29, 512, v29
v_cmp_gt_u32 vcc, 8, v1
v_cndmask_b32 v25, v29, v28, vcc
v_lshlrev_b32 v28, 7, v1
v_add_u32 v28, 1024, v28
v_min_u32 v26, 2048, v28
v_lshlrev_b32 v27, 3, v1
v_cvt_f32_u32 v24, v24
v_cvt_f32_u32 v25, v25
v_cvt_f32_u32 v26, v26
v_cvt_f32_u32 v27, v27
v_lshlrev_b32 v5, 8, v3
v_lshl_add_u32 v6, v1, 4, v5
v_lshl_add_u32 v5, v2, 6, v5
s_waitcnt lgkmcnt(0)
s_lshl_b32 s38, s37, 16
s_and_b32 s39, s37, 0xffff0000
s_bitcmp1_b32 s{ch_sgpr}, 0
s_cselect_b32 s38, s39, s38
v_mov_b32 v28, s38""")
    exp_acc(a, 29, 28, 30, 31)
    a("""v_cvt_pk_bf16_f32 v29, v29, v29
v_and_b32 v29, 0xffff0000, v29""")
    a("s_waitcnt vmcnt(0)")
    st()
    for i in range(4): lo(a, 8 + i, 8 + i)
    exp_acc(a, 12, 8, 30, 31)
    a(f"""v_cvt_pk_bf16_f32 v12, v12, v12
v_and_b32 v12, 0xffff0000, v12
v_mul_f32 v12, v12, v29
v_mul_f32 v12, s50, v12
v_mul_f32 v13, v9, v29
v_mul_f32 v13, s53, v13
v_mul_f32 v14, v10, v29
v_mul_f32 v15, v11, v29
v_add_f32 v14, v14, v14
v_add_f32 v15, v15, v15
ds_write_b128 v6, v[12:15] offset:{KPRM}
s_waitcnt lgkmcnt(0)""")
    for m in range(4):
        a(f"ds_read_b128 v[{8+4*m}:{11+4*m}], v5 offset:{KPRM + 16*m}")
    for m in range(4):
        a(f"s_waitcnt lgkmcnt({3-m})")
        A_, B_, CR, CI = 8 + 4 * m, 9 + 4 * m, 10 + 4 * m, 11 + 4 * m
        for T0 in (0, 2):
            for T in (T0, T0 + 1):
                b = 32 + 8 * (T & 1)
                a(f"v_mul_f32 v{b}, -v{A_}, v{24+T}")
                a(f"v_mul_f32 v{b+1}, v{B_}, v{24+T}")
                a(f"v_fract_f32 v{b+1}, v{b+1}")
            for T in (T0, T0 + 1):
                b = 32 + 8 * (T & 1)
                a(f"v_exp_f32 v{b}, v{b}")
                a(f"v_cos_f32 v{b+2}, v{b+1}")
                a(f"v_sin_f32 v{b+3}, v{b+1}")
            for T in (T0, T0 + 1):
                b = 32 + 8 * (T & 1)
                if T < 3:
                    a(f"v_mul_f32 v{b+2}, v{b+2}, v{b}")
                    a(f"v_mul_f32 v{b+3}, v{b+3}, v{b}")
                    H, L = 48 + 4 * T + m, 60 + 4 * T + m
                else:
                    a(f"v_mul_f32 v{b+4}, v{CR}, v{b}")
                    a(f"v_mul_f32 v{b+5}, v{CI}, v{b}")
                    a(f"v_mul_f32 v{b+6}, v{b+5}, v{b+3}")
                    a(f"v_mul_f32 v{b+7}, v{b+5}, v{b+2}")
                    a(f"v_fma_f32 v{b+2}, v{b+4}, v{b+2}, -v{b+6}")
                    a(f"v_fma_f32 v{b+3}, -v{b+4}, v{b+3}, -v{b+7}")
                    H, L = 72 + m, 76 + m
                a(f"v_and_b32 v{b+4}, 0xffff0000, v{b+2}")
                a(f"v_and_b32 v{b+5}, 0xffff0000, v{b+3}")
                a(f"v_perm_b32 v{H}, v{b+3}, v{b+2}, s54")
                a(f"v_sub_f32 v{b+2}, v{b+2}, v{b+4}")
                a(f"v_sub_f32 v{b+3}, v{b+3}, v{b+5}")
                a(f"v_cvt_pk_bf16_f32 v{L}, v{b+2}, v{b+3}")
    for T in range(3):
        D = 32 + 4 * T
        a(f"v_mfma_f32_16x16x32_bf16 v[{D}:{D+3}], v[{60+4*T}:{63+4*T}], v[72:75], 0")
        a(f"v_mfma_f32_16x16x32_bf16 v[{D}:{D+3}], v[{48+4*T}:{51+4*T}], v[76:79], v[{D}:{D+3}]")
        a(f"v_mfma_f32_16x16x32_bf16 v[{D}:{D+3}], v[{48+4*T}:{51+4*T}], v[72:75], v[{D}:{D+3}]")
    a("""v_and_b32 v30, 63, v0
v_lshlrev_b32 v30, 4, v30
v_mul_u32_u24 v31, 3072, v3
v_add_u32 v31, v31, v30""")
    a("""v_and_b32 v7, 3, v0
v_lshrrev_b32 v5, 2, v0
v_lshl_add_u32 v4, v5, 3, v7""")
    for it in range(2):
        a(f"v_add_u32 v{8+2*it}, {1024*it}, v4")
        a(f"v_add_u32 v{9+2*it}, {1024*it+4}, v4")
    for k in range(4): a(f"v_cvt_f32_u32 v{8+k}, v{8+k}")
    for k in range(0, 4, 2):
        a(f"v_cvt_pk_bf16_f32 v17, v{8+k}, v{9+k}")
        lo(a, 8 + k, 17); hi(a, 9 + k, 17)
    for k in range(4):
        a(f"v_cvt_u32_f32 v{8+k}, v{8+k}")
        a(f"v_lshlrev_b32 v{8+k}, 2, v{8+k}")
    a(f"""s_lshl_b32 s42, s{ch_sgpr}, {11+NP}
s_add_u32 s42, s42, {KW}
v_lshlrev_b32 v4, 10, v7
v_lshl_add_u32 v4, v5, 2, v4""")
    for T in range(3):
        a(f"ds_write_b128 v31, v[{32+4*T}:{35+4*T}] offset:{KPART + 1024*T}")
    a("""s_waitcnt lgkmcnt(0)
s_barrier""")
    st()
    global _LBL
    _LBL += 1
    L = f"L_kg{_LBL}"
    a(f"""s_cmp_ge_u32 s56, 3
s_cbranch_scc1 {L}_skip
s_lshl_b32 s57, s56, 10
v_add_u32 v30, s57, v30""")
    for w in range(8):
        a(f"ds_read_b128 v[{32+4*w}:{35+4*w}], v30 offset:{KPART + 3072*w}")
    a("v_lshlrev_b32 v65, 5, v1")
    a("s_waitcnt lgkmcnt(0)")
    for r in range(4):
        a(f"""v_add_f32 v{32+r}, v{32+r}, v{36+r}
v_add_f32 v{40+r}, v{40+r}, v{44+r}
v_add_f32 v{48+r}, v{48+r}, v{52+r}
v_add_f32 v{56+r}, v{56+r}, v{60+r}
v_add_f32 v{32+r}, v{32+r}, v{40+r}
v_add_f32 v{48+r}, v{48+r}, v{56+r}
v_add_f32 v{32+r}, v{32+r}, v{48+r}""")
    a(f"""s_cmp_eq_u32 s56, 1
s_cbranch_scc1 {L}_t1
s_cmp_eq_u32 s56, 2
s_cbranch_scc1 {L}_t2
v_lshrrev_b32 v64, 1, v2
v_lshlrev_b32 v64, 9, v64
v_and_b32 v66, 1, v2
v_lshl_add_u32 v64, v66, 4, v64
v_add_u32 v64, v65, v64
ds_write_b128 v64, v[32:35] offset:{KTAB0}
s_branch {L}_skip
{L}_t1:
v_lshlrev_b32 v64, 9, v2
v_add_u32 v64, 1024, v64
v_lshlrev_b32 v66, 10, v2
v_cmp_gt_u32 vcc, 2, v2
v_cndmask_b32 v64, v66, v64, vcc
v_add_u32 v64, v65, v64
ds_write_b32 v64, v32 offset:{KTAB0}
v_mov_b32 v67, 16
v_cndmask_b32 v66, v67, 8, vcc
v_add_u32 v66, v64, v66
ds_write_b32 v66, v33 offset:{KTAB0}
v_mov_b32 v67, 512
v_cndmask_b32 v66, v67, 16, vcc
v_add_u32 v66, v64, v66
ds_write_b32 v66, v34 offset:{KTAB0}
v_mov_b32 v67, 528
v_cndmask_b32 v66, v67, 24, vcc
v_add_u32 v66, v64, v66
ds_write_b32 v66, v35 offset:{KTAB0}
s_branch {L}_skip
{L}_t2:
v_lshlrev_b32 v64, 11, v2
v_add_u32 v64, v65, v64
v_cmp_gt_u32 vcc, 3, v2
s_and_saveexec_b64 s[40:41], vcc
ds_write_b32 v64, v32 offset:{KTAB0+4096}
s_mov_b64 exec, s[40:41]
v_cmp_gt_u32 vcc, 2, v2
s_and_saveexec_b64 s[40:41], vcc
ds_write_b32 v64, v33 offset:{KTAB0+4608}
ds_write_b32 v64, v34 offset:{KTAB0+5120}
ds_write_b32 v64, v35 offset:{KTAB0+5632}
s_mov_b64 exec, s[40:41]
{L}_skip:
s_waitcnt lgkmcnt(0)
s_barrier""")
    st()
    for k in range(4):
        a(f"ds_read_b32 v{20+k}, v{8+k} offset:{KTAB0}")
    a("s_waitcnt lgkmcnt(0)")
    for it in range(2):
        a(f"v_cvt_pk_bf16_f32 v{16+it}, v{20+2*it}, v{21+2*it}")
        a(f"buffer_store_dword v{16+it}, v4, s[32:35], s42 offen offset:{512*it}")
        if NP == 2:
            lo(a, 24, 16 + it); hi(a, 25, 16 + it)
            a(f"v_sub_f32 v24, v{20+2*it}, v24")
            a(f"v_sub_f32 v25, v{21+2*it}, v25")
            a(f"v_cvt_pk_bf16_f32 v{18+it}, v24, v25")
    if NP == 2:
        a("s_add_u32 s42, s42, 4096")
        for it in range(2):
            a(f"buffer_store_dword v{18+it}, v4, s[32:35], s42 offen offset:{512*it}")
    st.finish(32)
    return 80

def k_front(NP, nk=256, ch0=256, kfirst=False):
    name = "front_kernel"
    a = Asm()
    E = f"L_{name}"
    if kfirst and nk:
        a(f"""s_add_u32 s60, s2, 256
s_sub_u32 s61, s2, {nk}
s_cmp_lt_u32 s2, {nk}
s_cselect_b32 s61, s60, s61
s_cmp_lt_u32 s2, {nk+256}
s_cselect_b32 s2, s61, s2""")
    a(f"""s_cmp_ge_u32 s2, 256
s_cbranch_scc1 {E}_kgen
s_setprio 3
s_load_dwordx2 s[10:11], s[0:1], 120""")
    st = Stamps(a, 2)
    nv1 = conv_body(a, "A", 1, st, E, False)
    a(f"""s_endpgm
{E}_kgen:
s_cmp_ge_u32 s2, {256+nk}
s_cbranch_scc1 {E}_end
s_add_u32 s55, s2, {ch0-256}""")
    st2 = Stamps(a, 1)
    nv2 = kgen_body(a, NP, st2, 55)
    a(f"""{E}_end:
s_endpgm""")
    return kernel_text(name, a.text(), max(nv1, nv2), SG(64))
```

```python
import sys
import kern
from asmlib import *
def build(path, NP=2, merged=True, diag=False, dbufB=True, nk1=256, kf1=False, kf2=False, nk3=0, optp=True, kvprio=True, stmod='', pf=0, dpf=False, tlb=False, fx1=False, pfd=False, pfk=False):
    kern.DIAG = diag
    import kern2 as k2
    k2.ROW_OUT_T2 = optp
    k2.KV_T2 = True
    k2.KV_PRIO = kvprio
    k2.CODE_PREFETCH = pf
    k2.DATA_PREFETCH = dpf
    k2.TLB_WARM = tlb
    k2.FUSE_X1 = fx1
    k2.PF_D = pfd; k2.PF_K = pfk
    hdr = [l.rstrip("\n") for l in open("header.txt") if "Override launch" not in l and "grid=ceil" not in l]
    FL = max(k2.CONV_LDS(1), k2.KGEN_LDS)
    BL = k2.PCONV_LDS(NP) if optp else k2.CONV_LDS(NP)
    ks = [k2.k_kv(NP, nk1, kf1)]
    L = [("kv_kernel", 256 + nk1, 512, k2.KGEN_LDS if nk1 else 1024)]
    if nk1 + nk3 == 512:
        ks.append(k2.k_conv("A", 1, True, True)); L.append(("convA_kernel", 256, 512, k2.PCONV_LDS(1)))
    else:
      ks.append(k2.k_front(NP, 512 - nk1 - nk3, nk1, kf2)); L.append(("front_kernel", 256 + 512 - nk1 - nk3, 512, FL))
    ks += [(k2.k_stat1() if fx1 else k2.k_row("R1", NP, nk3, 512 - nk3)), k2.k_conv("B1", NP, dbufB, optp), k2.k_row("R2", NP), k2.k_conv("B2", NP, dbufB, optp)]
    L += [("row1_kernel", 256 + nk3, 512, k2.KGEN_LDS if nk3 else 1024), ("convB1_kernel", 256, 512, BL), ("row2_kernel", 256, 512, 1024), ("convB2_kernel", 256, 512, BL)]
    txt = file_text(hdr, L, ks)
    if stmod:
        import re
        txt = re.sub(r"(buffer_store_dword\S* [^\n]*)", lambda m: m.group(1) + " " + stmod, txt)
    open(path, "w").write(txt)
if __name__ == "__main__":
    build("v4_dpf.s", NP=1, kf1=True, nk1=512, pf=1, dpf=True)
    build("v9a.s", NP=1, kf1=True, nk1=512, pf=1, dpf=True, pfd=True)
    build("v9b.s", NP=1, kf1=True, nk1=512, pf=1, dpf=True, pfd=True, pfk=True)
```

```python
from asmlib import *

KVT, YA, X1, X2, X3, ST1, ST3, KW = 0x0, 0x200000, 0x400000, 0x600000, 0x800000, 0xA00000, 0xA10000, 0xC00000
WSBYTES = 0x10000000
MB2 = 2097152

def srd(a, d, base, nbytes):
    a(f"""s_mov_b32 s{d}, s{base}
s_and_b32 s{d+1}, s{base+1}, 0xffff
s_mov_b32 s{d+2}, {nbytes}
s_mov_b32 s{d+3}, 0x00020000""")

def lo(a, d, s): a(f"v_lshlrev_b32 v{d}, 16, v{s}")
def hi(a, d, s): a(f"v_and_b32 v{d}, 0xffff0000, v{s}")

def xcd_remap(a, sd, stmp):
    a(f"""s_and_b32 s{sd}, s2, 7
s_lshl_b32 s{sd}, s{sd}, 5
s_lshr_b32 s{stmp}, s2, 3
s_add_u32 s{sd}, s{sd}, s{stmp}""")

DIAG = False
DIAGBASE = 0x1000000
class Stamps:
    def __init__(self, a, kid):
        self.a = a; self.kid = kid; self.n = 0
        if DIAG: a("s_memrealtime s[72:73]")
    def __call__(self):
        if DIAG:
            self.a(f"s_memtime s[{76+2*self.n}:{77+2*self.n}]"); self.a("s_waitcnt lgkmcnt(0)"); self.n += 1
    def finish(self, ws_srd):
        if not DIAG: return
        a = self.a
        a("s_waitcnt vmcnt(0)")
        self()
        a("s_memrealtime s[74:75]")
        a("s_waitcnt lgkmcnt(0)")
        a("s_mov_b64 exec, 1")
        a(f"s_lshl_b32 s62, s2, 7")
        a(f"s_add_u32 s62, s62, {DIAGBASE + self.kid * 0x20000}")
        a("v_lshrrev_b32 v1, 6, v0")
        a("v_lshlrev_b32 v1, 24, v1")
        a("v_lshlrev_b32 v1, 4, v1")
        regs = [72, 74] + [76 + 2 * i for i in range(self.n)]
        for i, r in enumerate(regs):
            a(f"v_mov_b32 v2, s{r}")
            a(f"buffer_store_dword v2, v1, s[{ws_srd}:{ws_srd+3}], s62 offen offset:{4*i}")
        a("s_getreg_b32 s63, hwreg(HW_REG_HW_ID)")
        a("v_mov_b32 v2, s63")
        a(f"buffer_store_dword v2, v1, s[{ws_srd}:{ws_srd+3}], s62 offen offset:120")
        a("s_getreg_b32 s63, hwreg(HW_REG_XCC_ID)")
        a("v_mov_b32 v2, s63")
        a(f"buffer_store_dword v2, v1, s[{ws_srd}:{ws_srd+3}], s62 offen offset:124")
        if self.kid == 6:
            a("""s_cmp_lg_u32 s2, 0
s_cbranch_scc1 L_dbgdone
s_load_dwordx2 s[98:99], s[0:1], 112
s_waitcnt lgkmcnt(0)
s_mov_b32 s92, s98
s_and_b32 s93, s99, 0xffff
s_mov_b32 s94, 256
s_mov_b32 s95, 0x00020000""")
            srcs = [(0, 0), (0, 256), (2, 0), (3, 0), (4, 0), (5, 0)]
            for i, (kid, wg) in enumerate(srcs):
                a(f"s_mov_b32 s62, {DIAGBASE + kid * 0x20000 + wg * 128}")
                a(f"buffer_load_dwordx2 v[4:5], v1, s[{ws_srd}:{ws_srd+3}], s62 offen")
                a("s_waitcnt vmcnt(0)")
                a(f"buffer_store_dwordx2 v[4:5], v1, s[92:95], 0 offen offset:{8*i}")
                a("s_waitcnt vmcnt(0)")
            a("v_mov_b32 v4, s72")
            a("v_mov_b32 v5, s74")
            a(f"buffer_store_dwordx2 v[4:5], v1, s[92:95], 0 offen offset:{8*len(srcs)}")
            a("L_dbgdone:")

def k_kv():
    a = Asm()
    a("""s_cmp_ge_u32 s2, 256
s_cbranch_scc1 L_kv_end
s_load_dwordx4 s[4:7], s[0:1], 8
s_load_dwordx2 s[8:9], s[0:1], 24
s_load_dwordx2 s[10:11], s[0:1], 120""")
    st = Stamps(a, 0); st()
    xcd_remap(a, 3, 12)
    a("""v_and_b32 v1, 255, v0
v_lshrrev_b32 v2, 8, v0
s_lshl_b32 s13, s3, 3
v_lshl_add_u32 v3, v2, 2, s13
v_lshlrev_b32 v4, 10, v3
v_lshl_add_u32 v4, v1, 2, v4
v_subrev_u32 v5, 3072, v4
v_subrev_u32 v6, 2048, v4
v_subrev_u32 v7, 1024, v4
v_lshlrev_b32 v8, 4, v1
v_lshlrev_b32 v9, 13, v1
v_lshl_add_u32 v9, v3, 2, v9
s_waitcnt lgkmcnt(0)""")
    srd(a, 16, 4, MB2); srd(a, 20, 6, MB2); srd(a, 24, 8, 4096); srd(a, 28, 10, WSBYTES)
    a("""buffer_load_dwordx4 v[24:27], v8, s[24:27], 0 offen
buffer_load_dword v10, v5, s[16:19], 0 offen
buffer_load_dword v11, v6, s[16:19], 0 offen
buffer_load_dword v12, v7, s[16:19], 0 offen
buffer_load_dword v13, v4, s[16:19], 0 offen
buffer_load_dword v14, v4, s[16:19], 0 offen offset:1024
buffer_load_dword v15, v4, s[16:19], 0 offen offset:2048
buffer_load_dword v16, v4, s[16:19], 0 offen offset:3072
buffer_load_dword v17, v4, s[20:23], 0 offen
buffer_load_dword v18, v4, s[20:23], 0 offen offset:1024
buffer_load_dword v19, v4, s[20:23], 0 offen offset:2048
buffer_load_dword v20, v4, s[20:23], 0 offen offset:3072
s_waitcnt vmcnt(11)""")
    for ch in range(2):
        lo(a, 28 + 4 * ch + 0, 24 + 2 * ch); hi(a, 28 + 4 * ch + 1, 24 + 2 * ch)
        lo(a, 28 + 4 * ch + 2, 25 + 2 * ch); hi(a, 28 + 4 * ch + 3, 25 + 2 * ch)
    a("s_waitcnt vmcnt(4)")
    for i in range(7):
        lo(a, 36 + i, 10 + i); hi(a, 44 + i, 10 + i)
    a("s_waitcnt vmcnt(0)")
    st()
    for r in range(4):
        for t in range(4):
            w = 3 - t
            a(f"v_mul_f32 v54, v{36+r+t}, v{28+w}")
            a(f"v_mul_f32 v55, v{44+r+t}, v{32+w}")
            a("v_cvt_pk_bf16_f32 v56, v54, v55")
            if t == 0:
                lo(a, 52, 56); hi(a, 53, 56)
            else:
                lo(a, 54, 56); hi(a, 55, 56)
                a("v_add_f32 v52, v52, v54")
                a("v_add_f32 v53, v53, v55")
                a("v_cvt_pk_bf16_f32 v56, v52, v53")
                lo(a, 52, 56); hi(a, 53, 56)
        lo(a, 54, 17 + r); hi(a, 55, 17 + r)
        a("v_mul_f32 v52, v52, v54")
        a("v_mul_f32 v53, v53, v55")
        a(f"v_cvt_pk_bf16_f32 v{60+r}, v52, v53")
    st()
    a("buffer_store_dwordx4 v[60:63], v9, s[28:31], 0 offen")
    st.finish(28)
    a("""L_kv_end:
s_endpgm""")
    return kernel_text("kv_kernel", a.text(), 64, 100 if DIAG else 40)

XLS = 4160
WL0 = 2 * XLS
WAS = 1152
EX0 = 26880
TS = 1216
WSTR = 8 * TS
CONV_LDS = EX0 + 8 * WSTR

class LdsQ:
    def __init__(self, a):
        self.a = a; self.q = []; self.done = 0
    def issue(self, text, dst):
        self.a(text); self.q.append(set(dst))
    def need(self, regs):
        regs = set(regs)
        idx = -1
        for i, d in enumerate(self.q):
            if d & regs: idx = i
        if idx >= self.done:
            n = len(self.q) - 1 - idx
            n = min(n, 15)
            self.a(f"s_waitcnt lgkmcnt({n})")
            self.done = len(self.q) - n

def k_conv(kind, NP):
    name = {"A": "convA_kernel", "B1": "convB1_kernel", "B2": "convB2_kernel"}[kind]
    if kind == "A": NP = 1
    a = Asm()
    E = f"L_{name}_end"
    a(f"""s_cmp_ge_u32 s2, 256
s_cbranch_scc1 {E}
s_load_dwordx2 s[10:11], s[0:1], 120""")
    if kind == "A":
        a("s_load_dwordx4 s[4:7], s[0:1], 32")
    else:
        a("s_load_dwordx4 s[4:7], s[0:1], 96")
    st = Stamps(a, {"A": 2, "B1": 4, "B2": 6}[kind]); st()
    xcd_remap(a, 3, 12)
    a("""v_lshrrev_b32 v1, 6, v0
v_and_b32 v2, 63, v0
v_lshlrev_b32 v3, 4, v0
s_nop 0
v_readfirstlane_b32 s14, v1
s_lshl_b32 s13, s3, 13
s_lshl_b32 s15, s3, 2
s_waitcnt lgkmcnt(0)""")
    srd(a, 28, 10, WSBYTES)
    src = {"A": KVT, "B1": X1, "B2": X3}[kind]
    a(f"s_add_u32 s32, s13, {src}")
    a("buffer_load_dwordx4 v[4:7], v3, s[28:31], s32 offen")
    if kind == "A":
        srd(a, 16, 4, MB2)
        a("buffer_load_dwordx4 v[48:51], v3, s[16:19], s13 offen")
        a("s_add_u32 s6, s6, s15")
        a("s_addc_u32 s7, s7, 0")
        a("s_load_dword s33, s[6:7], 0")
    else:
        stt = {"B1": ST1, "B2": ST3}[kind]
        a(f"s_mov_b32 s34, {stt}")
        a("buffer_load_dwordx4 v[48:51], v3, s[28:31], s34 offen")
        a("s_lshl_b32 s35, s3, 14")
        a(f"s_add_u32 s35, s35, {KW}")
        if NP == 2:
            a("v_lshlrev_b32 v60, 5, v0")
            a("buffer_load_dwordx4 v[52:55], v60, s[28:31], s35 offen")
            a("buffer_load_dwordx4 v[56:59], v60, s[28:31], s35 offen offset:16")
        else:
            a("""v_lshrrev_b32 v60, 8, v0
v_lshlrev_b32 v60, 13, v60
v_and_b32 v61, 255, v0
v_lshl_add_u32 v60, v61, 4, v60
buffer_load_dwordx4 v[52:55], v60, s[28:31], s35 offen""")
        a("s_add_u32 s4, s4, s15")
        a("s_addc_u32 s5, s5, 0")
        a("s_load_dword s33, s[4:5], 0")
        if kind == "B2":
            srd(a, 20, 6, MB2)
    na = 8 * NP
    a(f"""v_mov_b32 v64, 0
v_mov_b32 v65, 0
v_mov_b32 v66, 0
v_mov_b32 v67, 0
v_lshrrev_b32 v61, 3, v0
v_mul_u32_u24 v61, {WAS}, v61
v_and_b32 v62, 7, v0
v_lshl_add_u32 v61, v62, 4, v61
v_add_u32 v61, {WL0}, v61
v_cmp_gt_u32 vcc, {na*8}, v0
s_and_saveexec_b64 s[36:37], vcc
ds_write_b128 v61, v[64:67]
s_mov_b64 exec, s[36:37]
v_lshrrev_b32 v61, 1, v0
v_mul_u32_u24 v61, {XLS}, v61
v_and_b32 v62, 1, v0
v_lshl_add_u32 v61, v62, 4, v61
v_cmp_gt_u32 vcc, 4, v0
s_and_saveexec_b64 s[36:37], vcc
ds_write_b128 v61, v[64:67]
s_mov_b64 exec, s[36:37]
v_mul_u32_u24 v61, {WSTR}, v1
v_add_u32 v61, {EX0 + 16*16}, v61
v_cmp_eq_u32 vcc, 0, v2
s_and_saveexec_b64 s[36:37], vcc
ds_write_b128 v61, v[64:67]
s_mov_b64 exec, s[36:37]
s_mov_b32 s38, 0x05040100
s_mov_b32 s39, 0x07060302""")
    a(f"""s_lshr_b32 s40, s14, 2
s_and_b32 s41, s14, 3
s_mul_i32 s42, s40, {XLS}
s_mul_i32 s43, s40, {NP*4*WAS}
s_mul_i32 s44, s41, {WAS}
s_add_u32 s43, s43, s44
s_add_u32 s43, s43, {WL0 + 56}
s_add_u32 s42, s42, 32
v_lshrrev_b32 v70, 4, v2
v_and_b32 v71, 3, v2
v_bfe_u32 v72, v2, 2, 2
v_sub_u32 v71, v71, v72
v_lshlrev_b32 v71, 3, v71
v_lshl_add_u32 v71, v70, 6, v71
v_add_u32 v12, s42, v71
v_and_b32 v71, 15, v2
v_lshlrev_b32 v71, 3, v71
v_lshlrev_b32 v72, 4, v70
v_sub_u32 v71, v71, v72
v_add_u32 v13, s43, v71""")
    VXA, VWB, ACC = 12, 13, 16
    for i in range(32): a(f"v_mov_b32 v{ACC+i}, 0")
    if kind == "A":
        a("s_waitcnt vmcnt(0)")
        st()
        XS = 4
        a(f"""v_perm_b32 v64, v50, v48, s38
v_perm_b32 v65, v50, v48, s39
v_perm_b32 v66, v51, v49, s38
v_perm_b32 v67, v51, v49, s39
v_lshrrev_b32 v61, 8, v0
v_mul_u32_u24 v61, {4*WAS}, v61
v_and_b32 v62, 255, v0
v_lshl_add_u32 v61, v62, 2, v61
ds_write_b32 v61, v64 offset:{WL0+128}
ds_write_b32 v61, v65 offset:{WL0+128+WAS}
ds_write_b32 v61, v66 offset:{WL0+128+2*WAS}
ds_write_b32 v61, v67 offset:{WL0+128+3*WAS}""")
    else:
        if NP == 2:
            a(f"""v_lshrrev_b32 v61, 5, v0
v_mul_u32_u24 v61, {WAS}, v61
v_and_b32 v62, 31, v0
v_lshl_add_u32 v61, v62, 5, v61
s_waitcnt vmcnt(2)""")
        else:
            a(f"""v_lshrrev_b32 v61, 6, v0
v_mul_u32_u24 v61, {WAS}, v61
v_lshl_add_u32 v61, v2, 4, v61
s_waitcnt vmcnt(1)""")
        st()
        for r in range(4):
            lo(a, 72, 48 + r); hi(a, 73, 48 + r)
            a("v_rcp_f32 v74, v73")
            lo(a, 75, 4 + r); hi(a, 76, 4 + r)
            a("v_sub_f32 v75, v75, v72")
            a("v_sub_f32 v76, v76, v72")
            a("v_cvt_pk_bf16_f32 v77, v75, v76")
            lo(a, 75, 77); hi(a, 76, 77)
            for x in (75, 76):
                a(f"v_mul_f32 v78, v{x}, v74")
                a(f"v_fma_f32 v79, -v78, v73, v{x}")
                a(f"v_fma_f32 v{x}, v79, v74, v78")
            a(f"v_cvt_pk_bf16_f32 v{8+r}, v75, v76")
        XS = 8
        a(f"""s_waitcnt vmcnt(0)
ds_write_b128 v61, v[52:55] offset:{WL0+128}""")
        if NP == 2:
            a(f"ds_write_b128 v61, v[56:59] offset:{WL0+128+16}")
    a(f"""v_perm_b32 v64, v{XS+1}, v{XS}, s38
v_perm_b32 v65, v{XS+3}, v{XS+2}, s38
v_perm_b32 v66, v{XS+1}, v{XS}, s39
v_perm_b32 v67, v{XS+3}, v{XS+2}, s39
v_lshlrev_b32 v61, 3, v0
ds_write_b64 v61, v[64:65] offset:32
ds_write_b64 v61, v[66:67] offset:{XLS+32}
s_waitcnt lgkmcnt(0)
s_barrier""")
    st()
    F0 = 48
    FA = [F0, F0 + 32 + 32 * NP]
    FB = [F0 + 32, F0 + 32 + 32 * NP + 32]
    q = LdsQ(a)
    def rdA(rho, aa):
        out = []
        for hh in range(2):
            d = FA[rho] + 4 * aa + 2 * hh
            out.append((f"ds_read_b64_tr_b16 v[{d}:{d+1}], v{VXA} offset:{512*aa + 256*rho + 32*hh}", [d, d + 1]))
        return out
    def rdB(rho, e, p):
        out = []
        for hh in range(2):
            d = FB[rho] + 32 * p + 4 * e + 2 * hh
            out.append((f"ds_read_b64 v[{d}:{d+1}], v{VWB} offset:{128*e + 64*(1-rho) + 8*(1-hh) + p*4*WAS}", [d, d + 1]))
        return out
    def reads(rho):
        r = rdA(rho, 0)
        for e in range(8):
            for p in range(NP): r += rdB(rho, e, p)
        for aa in range(1, 8): r += rdA(rho, aa)
        return r
    def mfmas(rho):
        m = []
        for aa in range(8):
            for e in range(8 - aa):
                for p in range(NP):
                    c = aa + e
                    A = FA[rho] + 4 * aa; B = FB[rho] + 32 * p + 4 * e; D = ACC + 4 * c
                    m.append((f"v_mfma_f32_16x16x32_bf16 v[{D}:{D+3}], v[{A}:{A+3}], v[{B}:{B+3}], v[{D}:{D+3}]", list(range(A, A + 4)) + list(range(B, B + 4))))
        return m
    for t, d in reads(0): q.issue(t, d)
    r1 = reads(1)
    for t, d in mfmas(0):
        q.need(d); a(t)
        for _ in range(2):
            if r1:
                tt, dd = r1.pop(0); q.issue(tt, dd)
    for tt, dd in r1: q.issue(tt, dd)
    for t, d in mfmas(1):
        q.need(d); a(t)
    st()
    a(f"""v_and_b32 v48, 15, v2
v_lshrrev_b32 v49, 4, v2
v_mul_u32_u24 v49, 20, v49
v_add_u32 v48, v48, v49
v_lshlrev_b32 v48, 4, v48
s_mul_i32 s44, s14, {WSTR}
v_add_u32 v48, s44, v48""")
    for c in range(8):
        a(f"ds_write_b128 v48, v[{ACC+4*c}:{ACC+4*c+3}] offset:{EX0 + c*TS}")
    a(f"""v_lshrrev_b32 v50, 2, v2
v_and_b32 v51, 3, v2
v_mul_u32_u24 v51, 20, v51
v_add_u32 v50, v50, v51
v_lshlrev_b32 v50, 4, v50
s_mul_i32 s44, s14, {TS}
v_add_u32 v50, s44, v50
v_subrev_u32 v52, 1, v2
v_lshrrev_b32 v51, 2, v52
v_and_b32 v52, 3, v52
v_mul_u32_u24 v52, 20, v52
v_add_u32 v51, v51, v52
v_lshlrev_b32 v51, 4, v51
v_add_u32 v51, s44, v51
s_sub_u32 s45, s44, {TS - 75*16}
s_cmp_eq_u32 s14, 0
s_cselect_b32 s45, {16*16}, s45
v_mov_b32 v52, s45
v_cmp_eq_u32 vcc, 0, v2
v_cndmask_b32 v51, v51, v52, vcc
v_add_u32 v50, {EX0}, v50
v_add_u32 v51, {EX0}, v51
v_add_u32 v52, {4*WSTR}, v50
v_add_u32 v53, {4*WSTR}, v51
s_waitcnt lgkmcnt(0)
s_barrier""")
    st()
    for w in range(8):
        b = 50 if w < 4 else 52
        a(f"ds_read_b128 v[{80+4*w}:{83+4*w}], v{b} offset:{(w&3)*WSTR}")
    for w in range(8):
        if w & 3 == 0: continue
        b = 51 if w < 4 else 53
        a(f"ds_read_b128 v[{112+4*w}:{115+4*w}], v{b} offset:{(w&3)*WSTR}")
    a("s_waitcnt lgkmcnt(0)")
    for ch in range(2):
        cur = lambda d, i: 80 + 4 * (4 * ch + d) + i
        prv = lambda d, i: 112 + 4 * (4 * ch + d) + i
        for r in range(4):
            t = [cur(0, r)]
            for d in range(1, 4):
                t.append(cur(d, r - d) if r - d >= 0 else prv(d, 4 + r - d))
            y = 48 + 4 * ch + r
            a(f"v_add_f32 v{y}, v{t[0]}, v{t[1]}")
            a(f"v_add_f32 v60, v{t[2]}, v{t[3]}")
            a(f"v_add_f32 v{y}, v{y}, v60")
    a("""s_lshl_b32 s46, s33, 16
s_and_b32 s47, s33, 0xffff0000""")
    for r in range(4):
        a(f"v_cvt_pk_bf16_f32 v60, v{48+r}, v{52+r}")
        lo(a, 61, 60); hi(a, 62, 60)
        lo(a, 63, XS + r); hi(a, 64, XS + r)
        a("v_mul_f32 v63, s46, v63")
        a("v_mul_f32 v64, s47, v64")
        a("v_cvt_pk_bf16_f32 v60, v63, v64")
        lo(a, 63, 60); hi(a, 64, 60)
        a("v_add_f32 v61, v61, v63")
        a("v_add_f32 v62, v62, v64")
        if kind == "A":
            a(f"v_cvt_pk_bf16_f32 v{68+r}, v61, v62")
        else:
            a("v_cvt_pk_bf16_f32 v60, v61, v62")
            lo(a, 61, 60); hi(a, 62, 60)
            lo(a, 63, 4 + r); hi(a, 64, 4 + r)
            a("v_add_f32 v61, v61, v63")
            a("v_add_f32 v62, v62, v64")
            a(f"v_cvt_pk_bf16_f32 v{68+r}, v61, v62")
    st()
    if kind in ("A", "B1"):
        dst = YA if kind == "A" else X2
        a(f"s_add_u32 s32, s13, {dst}")
        a("buffer_store_dwordx4 v[68:71], v3, s[28:31], s32 offen")
    else:
        a("v_lshlrev_b32 v60, 12, v0")
        for r in range(4):
            a(f"buffer_store_dword v{68+r}, v60, s[20:23], s15 offen offset:{1024*r}")
    st.finish(28)
    a(f"""{E}:
s_endpgm""")
    nv = max(F0 + 2 * (32 + 32 * NP), 144)
    return kernel_text(name, a.text(), nv, 100 if DIAG else 64)

def reduce8(a, V, tmpaddr, ldsoff):
    for i in range(4):
        a(f"v_permlane32_swap_b32 v{V+i}, v{V+i+4}")
        a(f"v_add_f32 v{V+i}, v{V+i}, v{V+i+4}")
    for i in range(2):
        a(f"v_permlane16_swap_b32 v{V+i}, v{V+i+2}")
        a(f"v_add_f32 v{V+i}, v{V+i}, v{V+i+2}")
    for sh in (8, 4, 2, 1):
        for i in range(2):
            a(f"v_add_f32_dpp v{V+i}, v{V+i}, v{V+i} row_ror:{sh} row_mask:0xf bank_mask:0xf")
    a(f"""s_mov_b64 exec, s[48:49]
ds_write_b64 v{tmpaddr}, v[{V}:{V+1}] offset:{ldsoff}
s_mov_b64 exec, -1
s_waitcnt lgkmcnt(0)
s_barrier""")

def stats_from_lds(a, rdaddr, ldsoff, piv, T, out_mean_f32, out_m, out_den):
    for w in range(4):
        a(f"ds_read2_b32 v[{T+2*w}:{T+2*w+1}], v{rdaddr} offset0:{(ldsoff + 32*w)//4} offset1:{(ldsoff + 32*w)//4 + 4}")
    a(f"""s_waitcnt lgkmcnt(0)
v_add_f32 v{T}, v{T}, v{T+2}
v_add_f32 v{T+4}, v{T+4}, v{T+6}
v_add_f32 v{T+1}, v{T+1}, v{T+3}
v_add_f32 v{T+5}, v{T+5}, v{T+7}
v_add_f32 v{T}, v{T}, v{T+4}
v_add_f32 v{T+1}, v{T+1}, v{T+5}
v_mul_f32 v{T}, 0x3b000000, v{T}
v_mul_f32 v{T+1}, 0x3b000000, v{T+1}
v_add_f32 v{out_mean_f32}, v{piv}, v{T}
v_fma_f32 v{T+1}, -v{T}, v{T}, v{T+1}
v_max_f32 v{T+1}, 0, v{T+1}
v_cvt_pk_bf16_f32 v{T+2}, v{out_mean_f32}, v{T+1}
v_lshlrev_b32 v{out_m}, 16, v{T+2}
v_and_b32 v{T+1}, 0xffff0000, v{T+2}
v_add_f32 v{T+1}, 0x3727c5ac, v{T+1}
v_cvt_pk_bf16_f32 v{T+1}, v{T+1}, v{T+1}
v_and_b32 v{T+1}, 0xffff0000, v{T+1}
v_sqrt_f32 v{T+1}, v{T+1}
v_cvt_pk_bf16_f32 v{T+1}, v{T+1}, v{T+1}
v_and_b32 v{out_den}, 0xffff0000, v{T+1}""")

def bcast_quad(a, dst, src, r):
    a(f"v_mov_b32_dpp v{dst}, v{src} quad_perm:[{r},{r},{r},{r}] row_mask:0xf bank_mask:0xf")

def k_row(kind):
    name = {"R1": "row1_kernel", "R2": "row2_kernel"}[kind]
    E = f"L_{name}_end"
    a = Asm()
    a(f"""s_cmp_ge_u32 s2, 256
s_cbranch_scc1 {E}
s_load_dwordx2 s[10:11], s[0:1], 120
s_load_dwordx2 s[4:5], s[0:1], 0""")
    st = Stamps(a, {"R1": 3, "R2": 5}[kind]); st()
    xcd_remap(a, 3, 12)
    a("""v_and_b32 v1, 255, v0
v_lshrrev_b32 v2, 8, v0
s_lshl_b32 s13, s3, 3
v_lshl_add_u32 v3, v2, 2, s13
v_lshlrev_b32 v9, 13, v1
v_lshl_add_u32 v9, v3, 2, v9
v_and_b32 v5, 3, v0
v_add_u32 v6, v3, v5
s_waitcnt lgkmcnt(0)""")
    srd(a, 28, 10, WSBYTES)
    a(f"s_mov_b32 s32, {YA}")
    a("buffer_load_dwordx4 v[12:15], v9, s[28:31], s32 offen")
    if kind == "R1":
        srd(a, 16, 4, MB2)
        a("""v_lshlrev_b32 v4, 10, v3
v_lshl_add_u32 v4, v1, 2, v4
buffer_load_dword v16, v4, s[16:19], 0 offen
buffer_load_dword v17, v4, s[16:19], 0 offen offset:1024
buffer_load_dword v18, v4, s[16:19], 0 offen offset:2048
buffer_load_dword v19, v4, s[16:19], 0 offen offset:3072
v_lshlrev_b32 v7, 10, v6
buffer_load_dword v20, v7, s[16:19], 0 offen""")
    else:
        a(f"""s_mov_b32 s33, {X2}
buffer_load_dwordx4 v[16:19], v9, s[28:31], s33 offen
v_lshlrev_b32 v7, 2, v6
buffer_load_dword v20, v7, s[28:31], s33 offen""")
    a("""s_mov_b32 s48, 0x00010001
s_mov_b32 s49, 0x00010001
v_lshrrev_b32 v10, 4, v0
v_lshlrev_b32 v10, 3, v10
v_lshlrev_b32 v11, 7, v2
v_lshl_add_u32 v11, v5, 2, v11
s_waitcnt vmcnt(0)
v_lshlrev_b32 v20, 16, v20""")
    st()
    for r in range(4): bcast_quad(a, 24 + r, 20, r)
    for r in range(4):
        lo(a, 28 + r, 16 + r); hi(a, 32 + r, 16 + r)
    def partial(P):
        for r in range(4):
            a(f"v_sub_f32 v48, v{28+r}, v{P+r}")
            a(f"v_sub_f32 v49, v{32+r}, v{P+r}")
            a(f"v_add_f32 v{40+r}, v48, v49")
            a(f"v_mul_f32 v{44+r}, v48, v48")
            a(f"v_fmac_f32 v{44+r}, v49, v49")
    partial(24)
    reduce8(a, 40, 10, 0)
    stats_from_lds(a, 11, 0, 20, 48, 21, 22, 23)
    st()
    a("v_rcp_f32 v36, v23")
    for r in range(4):
        bcast_quad(a, 24 + r, 21, r)
    for r in range(4):
        bcast_quad(a, 48, 22, r); bcast_quad(a, 49, 23, r); bcast_quad(a, 50, 36, r)
        a(f"v_sub_f32 v51, v{28+r}, v48")
        a(f"v_sub_f32 v52, v{32+r}, v48")
        a("v_cvt_pk_bf16_f32 v53, v51, v52")
        lo(a, 51, 53); hi(a, 52, 53)
        for x in (51, 52):
            a(f"v_mul_f32 v54, v{x}, v50")
            a(f"v_fma_f32 v55, -v54, v49, v{x}")
            a(f"v_fma_f32 v{x}, v55, v50, v54")
        a("v_cvt_pk_bf16_f32 v53, v51, v52")
        lo(a, 51, 53); hi(a, 52, 53)
        lo(a, 54, 12 + r); hi(a, 55, 12 + r)
        a("v_mul_f32 v51, v51, v54")
        a("v_mul_f32 v52, v52, v55")
        a("v_cvt_pk_bf16_f32 v53, v51, v52")
        lo(a, 51, 53); hi(a, 52, 53)
        a(f"v_add_f32 v51, v51, v{28+r}")
        a(f"v_add_f32 v52, v52, v{32+r}")
        a(f"v_cvt_pk_bf16_f32 v{56+r}, v51, v52")
        lo(a, 28 + r, 56 + r); hi(a, 32 + r, 56 + r)
    dst = X1 if kind == "R1" else X3
    a(f"s_mov_b32 s34, {dst}")
    a("buffer_store_dwordx4 v[56:59], v9, s[28:31], s34 offen")
    st()
    partial(24)
    reduce8(a, 40, 10, 256)
    stats_from_lds(a, 11, 256, 21, 48, 60, 61, 62)
    stt = ST1 if kind == "R1" else ST3
    a(f"""v_lshrrev_b32 v61, 16, v61
v_or_b32 v61, v61, v62
v_lshlrev_b32 v7, 2, v6
s_mov_b32 s35, {stt}
v_cmp_gt_u32 vcc, 4, v1
s_and_saveexec_b64 s[36:37], vcc
s_cbranch_execz {E}
buffer_store_dword v61, v7, s[28:31], s35 offen""")
    st.finish(28)
    a(f"""{E}:
s_endpgm""")
    return kernel_text(name, a.text(), 64, 100 if DIAG else 56)

KTAB = 2176 * 4
KGEN_LDS = 4 * KTAB
def exp_acc(a, dst, x, t1, t2):
    a(f"""v_mul_f32 v{t1}, s50, v{x}
v_fma_f32 v{t2}, v{x}, s50, -v{t1}
v_fmac_f32 v{t2}, s51, v{x}
v_exp_f32 v{t1}, v{t1}
v_fma_f32 v{t2}, v{t2}, s52, 1.0
v_mul_f32 v{dst}, v{t1}, v{t2}""")

def k_kgen(first_wg=0):
    name = "kgen_kernel"
    E = f"L_{name}_end"
    a = Asm()
    a(f"""s_cmp_ge_u32 s2, 512
s_cbranch_scc1 {E}
s_load_dwordx8 s[4:11], s[0:1], 56
s_load_dwordx2 s[12:13], s[0:1], 88
s_load_dwordx2 s[14:15], s[0:1], 120
v_and_b32 v1, 15, v0
v_bfe_u32 v2, v0, 4, 2
v_lshrrev_b32 v3, 6, v0
s_lshl_b32 s3, s2, 8
v_lshlrev_b32 v4, 6, v3
v_lshl_add_u32 v4, v2, 3, v4
s_mov_b32 s50, 0x3fb8aa3b
s_mov_b32 s51, 0x32a57060
s_mov_b32 s52, 0x3f317218
s_mov_b32 s53, 0x3e22f983
s_waitcnt lgkmcnt(0)""")
    st = Stamps(a, 1); st()
    for i in range(4): srd(a, 16 + 4 * i, 4 + 2 * i, 131072)
    srd(a, 32, 14, WSBYTES)
    for i in range(4):
        for kk in range(2):
            d = 8 + 4 * i + 2 * kk
            a(f"buffer_load_dwordx2 v[{d}:{d+1}], v4, s[{16+4*i}:{19+4*i}], s3 offen offset:{32*kk}")
    a("""s_lshr_b32 s36, s2, 1
s_lshl_b32 s36, s36, 2
s_add_u32 s12, s12, s36
s_addc_u32 s13, s13, 0
s_load_dword s37, s[12:13], 0""")
    a("""v_lshrrev_b32 v28, 3, v1
v_lshlrev_b32 v28, 7, v28
v_and_b32 v29, 7, v1
v_or_b32 v24, v28, v29
v_lshrrev_b32 v28, 2, v1
v_lshlrev_b32 v28, 7, v28
v_and_b32 v29, 3, v1
v_lshl_add_u32 v28, v29, 1, v28
v_add_u32 v28, 256, v28
v_bfe_u32 v29, v1, 1, 2
v_lshlrev_b32 v29, 7, v29
v_and_b32 v30, 1, v1
v_lshl_add_u32 v29, v30, 2, v29
v_add_u32 v29, 512, v29
v_cmp_gt_u32 vcc, 8, v1
v_cndmask_b32 v25, v29, v28, vcc
v_lshlrev_b32 v28, 7, v1
v_add_u32 v28, 1024, v28
v_min_u32 v26, 2048, v28
v_lshlrev_b32 v27, 3, v1
v_cvt_f32_u32 v24, v24
v_cvt_f32_u32 v25, v25
v_cvt_f32_u32 v26, v26
v_cvt_f32_u32 v27, v27
s_waitcnt lgkmcnt(0)
s_lshl_b32 s38, s37, 16
s_and_b32 s39, s37, 0xffff0000
s_bitcmp1_b32 s2, 0
s_cselect_b32 s38, s39, s38
v_mov_b32 v28, s38""")
    exp_acc(a, 29, 28, 30, 31)
    a("""v_cvt_pk_bf16_f32 v29, v29, v29
v_and_b32 v29, 0xffff0000, v29""")
    for i in range(12): a(f"v_mov_b32 v{32+i}, 0")
    a("s_waitcnt vmcnt(0)")
    st()
    for kk in range(2):
        for m in range(4):
            un = lo if m % 2 == 0 else hi
            src = lambda i: 8 + 4 * i + 2 * kk + m // 2
            un(a, 76, src(0))
            exp_acc(a, 77, 76, 78, 79)
            a("v_cvt_pk_bf16_f32 v77, v77, v77")
            a("v_and_b32 v77, 0xffff0000, v77")
            a("v_mul_f32 v77, v77, v29")
            a("v_mul_f32 v77, s50, v77")
            un(a, 78, src(1))
            a("v_mul_f32 v78, v78, v29")
            a("v_mul_f32 v78, s53, v78")
            un(a, 79, src(2)); un(a, 80, src(3))
            a("v_mul_f32 v79, v79, v29")
            a("v_mul_f32 v80, v80, v29")
            a("v_add_f32 v79, v79, v79")
            a("v_add_f32 v80, v80, v80")
            for T in range(4):
                P = 24 + T
                a(f"v_mul_f32 v81, -v77, v{P}")
                a(f"v_mul_f32 v82, v78, v{P}")
                a("v_exp_f32 v81, v81")
                a("v_fract_f32 v82, v82")
                a("v_cos_f32 v83, v82")
                a("v_sin_f32 v84, v82")
                if T < 3:
                    a("v_mul_f32 v83, v83, v81")
                    a("v_mul_f32 v84, v84, v81")
                    H, L = 44 + 4 * T + m, 56 + 4 * T + m
                else:
                    a("v_mul_f32 v85, v79, v81")
                    a("v_mul_f32 v86, v80, v81")
                    a("v_mul_f32 v87, v86, v84")
                    a("v_mul_f32 v88, v86, v83")
                    a("v_fma_f32 v83, v85, v83, -v87")
                    a("v_fma_f32 v84, -v85, v84, -v88")
                    H, L = 68 + m, 72 + m
                a(f"v_cvt_pk_bf16_f32 v{H}, v83, v84")
                lo(a, 85, H); hi(a, 86, H)
                a("v_sub_f32 v83, v83, v85")
                a("v_sub_f32 v84, v84, v86")
                a(f"v_cvt_pk_bf16_f32 v{L}, v83, v84")
        for T in range(3):
            D = 32 + 4 * T
            a(f"v_mfma_f32_16x16x32_bf16 v[{D}:{D+3}], v[{56+4*T}:{59+4*T}], v[68:71], v[{D}:{D+3}]")
            a(f"v_mfma_f32_16x16x32_bf16 v[{D}:{D+3}], v[{44+4*T}:{47+4*T}], v[72:75], v[{D}:{D+3}]")
            a(f"v_mfma_f32_16x16x32_bf16 v[{D}:{D+3}], v[{44+4*T}:{47+4*T}], v[68:71], v[{D}:{D+3}]")
    st()
    a(f"""v_mul_u32_u24 v76, {KTAB}, v3
v_lshl_add_u32 v76, v1, 5, v76
v_lshrrev_b32 v77, 1, v2
v_lshlrev_b32 v77, 9, v77
v_and_b32 v78, 1, v2
v_lshl_add_u32 v77, v78, 4, v77
v_add_u32 v77, v76, v77
ds_write_b128 v77, v[32:35]""")
    a("""v_lshlrev_b32 v77, 9, v2
v_add_u32 v77, 1024, v77
v_lshlrev_b32 v78, 10, v2
v_cmp_gt_u32 vcc, 2, v2
v_cndmask_b32 v77, v78, v77, vcc
v_add_u32 v77, v76, v77
ds_write_b32 v77, v36
v_mov_b32 v79, 16
v_cndmask_b32 v78, v79, 8, vcc
v_add_u32 v78, v77, v78
ds_write_b32 v78, v37
v_mov_b32 v79, 512
v_cndmask_b32 v78, v79, 16, vcc
v_add_u32 v78, v77, v78
ds_write_b32 v78, v38
v_mov_b32 v79, 528
v_cndmask_b32 v78, v79, 24, vcc
v_add_u32 v78, v77, v78
ds_write_b32 v78, v39""")
    a("""v_lshlrev_b32 v77, 11, v2
v_add_u32 v77, v76, v77
v_cmp_gt_u32 vcc, 3, v2
s_and_saveexec_b64 s[40:41], vcc
ds_write_b32 v77, v40 offset:4096
s_mov_b64 exec, s[40:41]
v_cmp_gt_u32 vcc, 2, v2
s_and_saveexec_b64 s[40:41], vcc
ds_write_b32 v77, v41 offset:4608
ds_write_b32 v77, v42 offset:5120
ds_write_b32 v77, v43 offset:5632
s_mov_b64 exec, s[40:41]
s_waitcnt lgkmcnt(0)
s_barrier""")
    st()
    a("v_lshlrev_b32 v4, 3, v0")
    for k in range(8):
        a(f"v_add_u32 v{8+k}, {k}, v4")
        a(f"v_cvt_f32_u32 v{8+k}, v{8+k}")
    for k in range(0, 8, 2):
        a(f"v_cvt_pk_bf16_f32 v16, v{8+k}, v{9+k}")
        lo(a, 8 + k, 16); hi(a, 9 + k, 16)
    for k in range(8):
        a(f"v_cvt_u32_f32 v{8+k}, v{8+k}")
        a(f"v_lshlrev_b32 v{8+k}, 2, v{8+k}")
    for k in range(8):
        for w in range(4):
            a(f"ds_read_b32 v{16+4*k+w}, v{8+k} offset:{w*KTAB}")
        if k % 2 == 1 and k < 7: pass
    a("s_waitcnt lgkmcnt(0)")
    for k in range(8):
        b = 16 + 4 * k
        a(f"v_add_f32 v{b}, v{b}, v{b+1}")
        a(f"v_add_f32 v{b+2}, v{b+2}, v{b+3}")
        a(f"v_add_f32 v{8+k}, v{b}, v{b+2}")
    a(f"""s_lshl_b32 s42, s2, 13
s_add_u32 s42, s42, {KW}
v_lshlrev_b32 v4, 2, v0""")
    for f in range(4):
        a(f"v_cvt_pk_bf16_f32 v{16+f}, v{8+f}, v{12+f}")
        lo(a, 24, 16 + f); hi(a, 25, 16 + f)
        a(f"v_sub_f32 v24, v{8+f}, v24")
        a(f"v_sub_f32 v25, v{12+f}, v25")
        a(f"v_cvt_pk_bf16_f32 v{20+f}, v24, v25")
        a(f"buffer_store_dword v{16+f}, v4, s[32:35], s42 offen offset:{1024*f}")
    a("s_add_u32 s42, s42, 4096")
    for f in range(4):
        a(f"buffer_store_dword v{20+f}, v4, s[32:35], s42 offen offset:{1024*f}")
    st.finish(32)
    a(f"""{E}:
s_endpgm""")
    return kernel_text(name, a.text(), 96, 100 if DIAG else 64)
```

```python
from asmlib import *
import kern
from kern import srd, lo, hi, xcd_remap, Stamps, LdsQ, exp_acc, MB2, WSBYTES

KVT, YA, X1, X2, X3, ST1, ST3, KW = 0x0, 0x200000, 0x400000, 0x600000, 0x800000, 0xA00000, 0xA10000, 0xC00000
ROW_OUT_T2 = True
_LBL = 0
KV_T2 = False
QH, X0T = 0x1400000, 0x1600000
FUSE_X1 = False
def SG(n): return 102 if kern.DIAG else max(n, 72)

KV_PRIO = True
CODE_PREFETCH = 0
KG_TAB = False
KV_WFIRST = False
KG_SMEM = False
PF_LATE = False
KG_FLUSH = False
PF_D = False
PF_K = False
TLB_WARM = False
DATA_PREFETCH = False
def k_kv(NP=1, nk=0, kfirst=False):
    a = Asm()
    if CODE_PREFETCH:
        a(f"""s_cmp_ge_u32 s2, 8
s_cbranch_scc1 L_kv_nopf
s_getpc_b64 s[58:59]
L_pf_base:
v_lshlrev_b32 v1, 7, v0
v_cmp_gt_u32 vcc, L_code_end-L_pf_base-4, v1
s_and_saveexec_b64 s[60:61], vcc
s_cbranch_execz L_kv_pfdone
global_load_dword v40, v1, s[58:59]
L_kv_pfdone:
s_mov_b64 exec, s[60:61]""")
        if TLB_WARM:
            a("""s_load_dwordx4 s[4:7], s[0:1], 96
s_load_dwordx2 s[8:9], s[0:1], 120
s_load_dwordx2 s[10:11], s[0:1], 40
v_lshlrev_b32 v1, 15, v0
v_lshlrev_b32 v2, 12, v0
v_mov_b32 v3, 0
s_waitcnt lgkmcnt(0)
global_load_dword v41, v1, s[8:9]
global_load_dword v42, v2, s[6:7]
global_load_dword v43, v3, s[4:5]
global_load_dword v44, v3, s[10:11]""")
        a("L_kv_nopf:")
    if kfirst and nk:
        a(f"""s_add_u32 s60, s2, 256
s_sub_u32 s61, s2, {nk}
s_cmp_lt_u32 s2, {nk}
s_cselect_b32 s61, s60, s61
s_cmp_lt_u32 s2, {nk+256}
s_cselect_b32 s2, s61, s2""")
    a("""s_cmp_ge_u32 s2, 256
s_cbranch_scc1 L_kv_kgen
""" + ("s_setprio 3" if KV_PRIO else "") + """
s_load_dwordx4 s[4:7], s[0:1], 8
s_load_dwordx2 s[8:9], s[0:1], 24
s_load_dwordx2 s[10:11], s[0:1], 120
s_load_dwordx2 s[32:33], s[0:1], 0
s_load_dwordx2 s[34:35], s[0:1], 32
s_load_dwordx2 s[50:51], s[0:1], 40
s_load_dwordx2 s[52:53], s[0:1], 96""")
    st = Stamps(a, 0); st()
    xcd_remap(a, 3, 12)
    a("""v_and_b32 v1, 255, v0
v_lshrrev_b32 v2, 8, v0
s_lshl_b32 s13, s3, 3
v_lshl_add_u32 v3, v2, 2, s13
v_lshlrev_b32 v4, 10, v3
v_lshl_add_u32 v4, v1, 2, v4
v_subrev_u32 v5, 3072, v4
v_subrev_u32 v6, 2048, v4
v_subrev_u32 v7, 1024, v4
v_lshlrev_b32 v8, 4, v1
v_lshrrev_b32 v9, 2, v1
v_lshlrev_b32 v9, 15, v9
v_lshl_add_u32 v9, v3, 4, v9
v_and_b32 v21, 3, v1
v_lshl_add_u32 v9, v21, 2, v9
s_waitcnt lgkmcnt(0)""")
    srd(a, 16, 4, MB2); srd(a, 20, 6, MB2); srd(a, 24, 8, 4096); srd(a, 28, 10, WSBYTES)
    a("buffer_load_dwordx4 v[24:27], v8, s[24:27], 0 offen")
    if KV_WFIRST:
        a("s_waitcnt vmcnt(0)")
        for ch in range(2):
            lo(a, 28 + 4 * ch + 0, 24 + 2 * ch); hi(a, 28 + 4 * ch + 1, 24 + 2 * ch)
            lo(a, 28 + 4 * ch + 2, 25 + 2 * ch); hi(a, 28 + 4 * ch + 3, 25 + 2 * ch)
    a("""buffer_load_dword v10, v5, s[16:19], 0 offen
buffer_load_dword v11, v6, s[16:19], 0 offen
buffer_load_dword v12, v7, s[16:19], 0 offen
buffer_load_dword v13, v4, s[16:19], 0 offen
buffer_load_dword v14, v4, s[16:19], 0 offen offset:1024
buffer_load_dword v15, v4, s[16:19], 0 offen offset:2048
buffer_load_dword v16, v4, s[16:19], 0 offen offset:3072
buffer_load_dword v17, v4, s[20:23], 0 offen
buffer_load_dword v18, v4, s[20:23], 0 offen offset:1024
buffer_load_dword v19, v4, s[20:23], 0 offen offset:2048
buffer_load_dword v20, v4, s[20:23], 0 offen offset:3072""")
    npf = 0
    if FUSE_X1:
        srd(a, 36, 32, MB2); srd(a, 40, 34, MB2)
        for r in range(4):
            a(f"buffer_load_dword v{64+r}, v4, s[36:39], 0 offen offset:{1024*r}")
        a("""s_lshl_b32 s44, s3, 13
v_lshrrev_b32 v22, 6, v0
v_and_b32 v23, 7, v0
v_lshl_add_u32 v22, v22, 3, v23
v_lshlrev_b32 v22, 7, v22
s_mov_b64 exec, 0xff
buffer_load_dword v68, v22, s[40:43], s44 offen
s_mov_b64 exec, -1
v_and_b32 v75, 7, v0
v_add_u32 v75, s13, v75
v_lshlrev_b32 v75, 10, v75
v_lshrrev_b32 v76, 3, v0
v_lshl_add_u32 v76, v76, 4, v75
buffer_load_dwordx4 v[70:73], v76, s[36:39], 0 offen
buffer_load_dword v74, v75, s[36:39], 0 offen""")
        npf = 7
    elif DATA_PREFETCH and not PF_LATE:
        srd(a, 36, 32, MB2); srd(a, 40, 34, MB2)
        a("""s_lshl_b32 s44, s3, 13
v_lshrrev_b32 v22, 6, v0
v_and_b32 v23, 7, v0
v_lshl_add_u32 v22, v22, 3, v23
v_lshlrev_b32 v22, 7, v22
s_mov_b64 exec, 0xff
buffer_load_dword v64, v22, s[40:43], s44 offen
buffer_load_dword v65, v22, s[36:39], s44 offen
s_mov_b64 exec, -1""")
        npf = 2
        if PF_D:
            a("""s_lshl_b32 s45, s3, 2
s_add_u32 s50, s50, s45
s_addc_u32 s51, s51, 0
s_add_u32 s52, s52, s45
s_addc_u32 s53, s53, 0
s_load_dword s54, s[50:51], 0
s_load_dword s55, s[52:53], 0""")
    if not KV_WFIRST:
        a(f"s_waitcnt vmcnt({11+npf})")
        for ch in range(2):
            lo(a, 28 + 4 * ch + 0, 24 + 2 * ch); hi(a, 28 + 4 * ch + 1, 24 + 2 * ch)
            lo(a, 28 + 4 * ch + 2, 25 + 2 * ch); hi(a, 28 + 4 * ch + 3, 25 + 2 * ch)
    a(f"s_waitcnt vmcnt({4+npf})")
    for i in range(7):
        lo(a, 36 + i, 10 + i); hi(a, 44 + i, 10 + i)
    a(f"s_waitcnt vmcnt({npf})")
    if DATA_PREFETCH and PF_LATE and not FUSE_X1:
        srd(a, 36, 32, MB2); srd(a, 40, 34, MB2)
        a("""s_lshl_b32 s44, s3, 13
v_lshrrev_b32 v22, 6, v0
v_and_b32 v23, 7, v0
v_lshl_add_u32 v22, v22, 3, v23
v_lshlrev_b32 v22, 7, v22
s_mov_b64 exec, 0xff
buffer_load_dword v64, v22, s[40:43], s44 offen
buffer_load_dword v65, v22, s[36:39], s44 offen
s_mov_b64 exec, -1""")
    st()
    for r in range(4):
        for t in range(4):
            w = 3 - t
            a(f"v_mul_f32 v54, v{36+r+t}, v{28+w}")
            a(f"v_mul_f32 v55, v{44+r+t}, v{32+w}")
            a("v_cvt_pk_bf16_f32 v56, v54, v55")
            if t == 0:
                lo(a, 52, 56); hi(a, 53, 56)
            else:
                lo(a, 54, 56); hi(a, 55, 56)
                a("v_add_f32 v52, v52, v54")
                a("v_add_f32 v53, v53, v55")
                a("v_cvt_pk_bf16_f32 v56, v52, v53")
                lo(a, 52, 56); hi(a, 53, 56)
        lo(a, 54, 17 + r); hi(a, 55, 17 + r)
        a("v_mul_f32 v52, v52, v54")
        a("v_mul_f32 v53, v53, v55")
        a(f"v_cvt_pk_bf16_f32 v{60+r}, v52, v53")
        if not KV_T2: a(f"buffer_store_dword v{60+r}, v9, s[28:31], 0 offen offset:{16*r}")
    if KV_T2:
        a("""v_lshlrev_b32 v9, 13, v1
v_lshl_add_u32 v9, v3, 2, v9
buffer_store_dwordx4 v[60:63], v9, s[28:31], 0 offen""")
        if FUSE_X1:
            a(f"""s_mov_b32 s45, {X0T}
s_waitcnt vmcnt(4)
buffer_store_dwordx4 v[64:67], v9, s[28:31], s45 offen
s_waitcnt vmcnt(2)""")
            ln0_compute(a)
    st.finish(28)
    a(f"""s_endpgm
L_kv_kgen:
s_cmp_ge_u32 s2, {256+nk}
s_cbranch_scc1 L_kv_ln0""")
    nv = 72
    if nk:
        a("s_sub_u32 s55, s2, 256")
        st2 = Stamps(a, 0)
        nv = kgen_body(a, NP, st2, 55)
    a("""s_endpgm
L_kv_ln0:""")
    a("""L_kv_end:
s_endpgm""")
    return kernel_text("kv_kernel", a.text(), max(nv, 80), SG(64))

XLS = 4160
WL0 = 8 * XLS
WAS = 1152
def EX0(NP): return WL0 + 8 * NP * WAS
def CONV_LDS(NP): return EX0(NP) + 32768
SSETS = [[7, 4, 3, 0], [6, 5, 2, 1]]

def conv_body(a, kind, NP, st, E, dbuf):
    ex0 = EX0(NP)
    if kind == "A":
        a("s_load_dwordx4 s[4:7], s[0:1], 32")
    else:
        a("s_load_dwordx4 s[4:7], s[0:1], 96")
    st()
    xcd_remap(a, 3, 12)
    a("""v_lshrrev_b32 v1, 6, v0
v_and_b32 v2, 63, v0
v_lshlrev_b32 v3, 6, v0
v_lshlrev_b32 v14, 4, v0
v_readfirstlane_b32 s14, v1
s_lshr_b32 s13, s3, 2
s_lshl_b32 s13, s13, 15
s_and_b32 s12, s3, 3
s_lshl_b32 s12, s12, 2
s_add_u32 s13, s13, s12
s_lshl_b32 s15, s3, 2
s_waitcnt lgkmcnt(0)""")
    srd(a, 28, 10, WSBYTES)
    src = {"A": KVT, "B1": X1, "B2": X3}[kind]
    a(f"""s_lshl_b32 s13, s3, 13
s_add_u32 s32, s13, {src}
buffer_load_dwordx4 v[4:7], v14, s[28:31], s32 offen""")
    if kind == "A":
        srd(a, 16, 4, MB2)
        a("s_lshl_b32 s35, s3, 13")
        a("buffer_load_dwordx4 v[48:51], v14, s[16:19], s35 offen")
        if FUSE_X1:
            a(f"s_add_u32 s34, s13, {QH}")
            a("buffer_load_dwordx4 v[8:11], v14, s[28:31], s34 offen")
            a(f"s_add_u32 s34, s13, {X0T}")
            a("buffer_load_dwordx4 v[100:103], v14, s[28:31], s34 offen")
        a("s_add_u32 s6, s6, s15")
        a("s_addc_u32 s7, s7, 0")
        a("s_load_dword s33, s[6:7], 0")
    else:
        stt = {"B1": ST1, "B2": ST3}[kind]
        a(f"s_mov_b32 s34, {stt}")
        a("buffer_load_dwordx4 v[48:51], v14, s[28:31], s34 offen")
        a(f"s_lshl_b32 s35, s3, {12 + NP}")
        a(f"s_add_u32 s35, s35, {KW}")
        if NP == 2:
            a("v_lshlrev_b32 v60, 5, v0")
            a("buffer_load_dwordx4 v[52:55], v60, s[28:31], s35 offen")
            a("buffer_load_dwordx4 v[56:59], v60, s[28:31], s35 offen offset:16")
        else:
            a("buffer_load_dwordx4 v[52:55], v14, s[28:31], s35 offen")
        a("s_add_u32 s4, s4, s15")
        a("s_addc_u32 s5, s5, 0")
        a("s_load_dword s33, s[4:5], 0")
        if kind == "B2":
            srd(a, 20, 6, MB2)
    na = 8 * NP
    a(f"""v_mov_b32 v64, 0
v_mov_b32 v65, 0
v_mov_b32 v66, 0
v_mov_b32 v67, 0
v_lshrrev_b32 v61, 3, v0
v_mul_u32_u24 v61, {WAS}, v61
v_and_b32 v62, 7, v0
v_lshl_add_u32 v61, v62, 4, v61
v_cmp_gt_u32 vcc, {na*8}, v0
s_and_saveexec_b64 s[36:37], vcc
ds_write_b128 v61, v[64:67] offset:{WL0}
s_mov_b64 exec, s[36:37]
v_lshrrev_b32 v61, 1, v0
v_mul_u32_u24 v61, {XLS}, v61
v_and_b32 v62, 1, v0
v_lshl_add_u32 v61, v62, 4, v61
v_cmp_gt_u32 vcc, 16, v0
s_and_saveexec_b64 s[36:37], vcc
ds_write_b128 v61, v[64:67]
s_mov_b64 exec, s[36:37]
v_cmp_eq_u32 vcc, 0, v0
s_and_saveexec_b64 s[36:37], vcc""")
    for ch in range(2):
        b = ch * 4 * XLS
        a(f"ds_write_b16 v64, v64 offset:{b + 1*XLS + 32}")
        a(f"ds_write_b32 v64, v64 offset:{b + 2*XLS + 32}")
        a(f"ds_write_b32 v64, v64 offset:{b + 3*XLS + 32}")
        a(f"ds_write_b16 v64, v64 offset:{b + 3*XLS + 36}")
    a("""s_mov_b64 exec, s[36:37]
s_mov_b32 s38, 0x05040100
s_mov_b32 s39, 0x07060302""")
    a(f"""s_lshr_b32 s40, s14, 2
s_bfe_u32 s41, s14, 0x10001
s_lshl_b32 s41, s41, 1
s_lshl_b32 s42, s40, 2
s_add_u32 s42, s42, s41
s_mul_i32 s42, s42, {XLS}
s_add_u32 s42, s42, 32
s_mul_i32 s43, s40, {NP*4}
s_add_u32 s43, s43, s41
s_mul_i32 s43, s43, {WAS}
s_add_u32 s43, s43, {WL0 + 56}
v_lshrrev_b32 v70, 4, v2
v_and_b32 v71, 3, v2
v_bfe_u32 v72, v2, 2, 2
v_sub_u32 v71, v71, v72
v_lshlrev_b32 v71, 3, v71
v_lshl_add_u32 v71, v70, 6, v71
v_add_u32 v12, s42, v71
v_and_b32 v71, 15, v2
v_lshlrev_b32 v71, 3, v71
v_lshlrev_b32 v72, 4, v70
v_sub_u32 v71, v71, v72
v_add_u32 v13, s43, v71""")
    VXA, VWB, ACC = 12, 13, 16
    for i in range(16): a(f"v_mov_b32 v{ACC+i}, 0")
    if kind == "A":
        a(f"""v_lshrrev_b32 v61, 8, v0
v_mul_u32_u24 v61, {4*WAS}, v61
v_and_b32 v62, 255, v0
v_lshl_add_u32 v61, v62, 2, v61
s_waitcnt vmcnt({2 if FUSE_X1 else 0})""")
        st()
        XS = 4
        a(f"""v_perm_b32 v64, v50, v48, s38
v_perm_b32 v65, v50, v48, s39
v_perm_b32 v66, v51, v49, s38
v_perm_b32 v67, v51, v49, s39
ds_write_b32 v61, v64 offset:{WL0+128}
ds_write_b32 v61, v65 offset:{WL0+128+WAS}
ds_write_b32 v61, v66 offset:{WL0+128+2*WAS}
ds_write_b32 v61, v67 offset:{WL0+128+3*WAS}""")
    else:
        if NP == 2:
            a(f"""v_lshrrev_b32 v61, 5, v0
v_mul_u32_u24 v61, {WAS}, v61
v_and_b32 v62, 31, v0
v_lshl_add_u32 v61, v62, 5, v61
s_waitcnt vmcnt(2)""")
        else:
            a(f"""v_mul_u32_u24 v61, {WAS}, v1
v_lshl_add_u32 v61, v2, 4, v61
s_waitcnt vmcnt(1)""")
        st()
        for r in range(4):
            lo(a, 72, 48 + r); hi(a, 73, 48 + r)
            a("v_rcp_f32 v74, v73")
            lo(a, 75, 4 + r); hi(a, 76, 4 + r)
            a("v_sub_f32 v75, v75, v72")
            a("v_sub_f32 v76, v76, v72")
            a("v_cvt_pk_bf16_f32 v77, v75, v76")
            lo(a, 75, 77); hi(a, 76, 77)
            for x in (75, 76):
                a(f"v_mul_f32 v78, v{x}, v74")
                a(f"v_fma_f32 v79, -v78, v73, v{x}")
                a(f"v_fma_f32 v{x}, v79, v74, v78")
            a(f"v_cvt_pk_bf16_f32 v{8+r}, v75, v76")
        XS = 8
    a("v_lshlrev_b32 v62, 3, v0")
    for ch in range(2):
        sel = "s38" if ch == 0 else "s39"
        b = ch * 4 * XLS + 32
        e0, e1, o1 = 64 + 4 * ch, 65 + 4 * ch, 66 + 4 * ch
        a(f"""v_perm_b32 v{e0}, v{XS+1}, v{XS}, {sel}
v_perm_b32 v{e1}, v{XS+3}, v{XS+2}, {sel}
v_perm_b32 v{o1}, v{XS+2}, v{XS+1}, {sel}
ds_write_b64 v62, v[{e0}:{e1}] offset:{b}
ds_write_b16 v62, v{e0} offset:{b + XLS + 2}
ds_write_b32 v62, v{o1} offset:{b + XLS + 4}
ds_write_b16_d16_hi v62, v{e1} offset:{b + XLS + 8}
ds_write_b32 v62, v{e0} offset:{b + 2*XLS + 4}
ds_write_b32 v62, v{e1} offset:{b + 2*XLS + 8}
ds_write_b16 v62, v{e0} offset:{b + 3*XLS + 6}
ds_write_b32 v62, v{o1} offset:{b + 3*XLS + 8}
ds_write_b16_d16_hi v62, v{e1} offset:{b + 3*XLS + 12}""")
    if kind != "A":
        a(f"""s_waitcnt vmcnt(0)
ds_write_b128 v61, v[52:55] offset:{WL0+128}""")
        if NP == 2:
            a(f"ds_write_b128 v61, v[56:59] offset:{WL0+128+16}")
    a("""s_waitcnt lgkmcnt(0)
s_barrier""")
    st()
    a(f"""s_bitcmp1_b32 s14, 0
s_cbranch_scc1 {E}_S1""")
    F0 = 32
    FSZ = 32 + 32 * NP
    for S in range(2):
        if S == 1: a(f"{E}_S1:")
        q = LdsQ(a)
        tiles = SSETS[S]
        pairs = [(aa, c - aa, ti) for aa in range(8) for ti, c in enumerate(tiles) if c >= aa]
        steps = [(dl, rho) for dl in range(2) for rho in range(2)]
        def regA(si, aa): return F0 + (FSZ * (si & 1) if dbuf else 0) + 4 * aa
        def regB(si, e, p): return F0 + (FSZ * (si & 1) if dbuf else 0) + 32 + 32 * p + 4 * e
        def rdA(si, aa):
            dl, rho = steps[si]
            return [(f"ds_read_b64_tr_b16 v[{regA(si,aa)+2*hh}:{regA(si,aa)+2*hh+1}], v{VXA} offset:{512*aa + 256*rho + 32*hh + dl*XLS}",
                     [regA(si, aa) + 2 * hh, regA(si, aa) + 2 * hh + 1]) for hh in range(2)]
        def rdB(si, e, p):
            dl, rho = steps[si]
            return [(f"ds_read_b64 v[{regB(si,e,p)+2*hh}:{regB(si,e,p)+2*hh+1}], v{VWB} offset:{128*e + 64*(1-rho) + 8*(1-hh) + (p*4+dl)*WAS}",
                     [regB(si, e, p) + 2 * hh, regB(si, e, p) + 2 * hh + 1]) for hh in range(2)]
        def order(si):
            return pairs
        def frag_first_use(ordr):
            seen, out = set(), []
            for (aa, e, ti) in ordr:
                for f in (("A", aa), ("B", e)):
                    if f not in seen: seen.add(f); out.append(f)
            return out
        def reads_for(si, f):
            if f[0] == "A": return rdA(si, f[1])
            r = []
            for p in range(NP): r += rdB(si, f[1], p)
            return r
        ordrs = [pairs]
        for si in range(3):
            if dbuf:
                ordrs.append(pairs); continue
            lu = {}
            for k, (aa, e, ti) in enumerate(ordrs[si]):
                lu[("A", aa)] = k; lu[("B", e)] = k
            ordrs.append(sorted(pairs, key=lambda p: max(lu[("A", p[0])], lu[("B", p[1])])))
        for f in frag_first_use(ordrs[0]):
            for t, d in reads_for(0, f): q.issue(t, d)
        for si in range(4):
            o = ordrs[si]
            pend = frag_first_use(ordrs[si + 1]) if si < 3 else []
            lastuse = {}
            for k, (aa, e, ti) in enumerate(o):
                lastuse[("A", aa)] = k; lastuse[("B", e)] = k
            for k, (aa, e, ti) in enumerate(o):
                for p in range(NP):
                    A = regA(si, aa); B = regB(si, e, p); D = ACC + 4 * ti
                    q.need(list(range(A, A + 4)) + list(range(B, B + 4)))
                    a(f"v_mfma_f32_16x16x32_bf16 v[{D}:{D+3}], v[{A}:{A+3}], v[{B}:{B+3}], v[{D}:{D+3}]")
                if dbuf:
                    if pend:
                        f = pend.pop(0)
                        for t, d in reads_for(si + 1, f): q.issue(t, d)
                else:
                    for f in [f for f in pend if lastuse[f] <= k]:
                        pend.remove(f)
                        for t, d in reads_for(si + 1, f): q.issue(t, d)
            for f in pend:
                for t, d in reads_for(si + 1, f): q.issue(t, d)
        a(f"""v_and_b32 v32, 15, v2
v_lshrrev_b32 v33, 4, v2
v_lshlrev_b32 v34, 2, v33
v_xor_b32 v32, v32, v34
v_lshl_add_u32 v32, v33, 4, v32
v_lshlrev_b32 v32, 4, v32
s_lshr_b32 s44, s14, 1
s_lshl_b32 s44, s44, 13
v_add_u32 v32, s44, v32""")
        for ti, c in enumerate(tiles):
            a(f"ds_write_b128 v32, v[{ACC+4*ti}:{ACC+4*ti+3}] offset:{ex0 + c*1024}")
        if S == 0: a(f"s_branch {E}_J")
    a(f"{E}_J:")
    a(f"""v_lshrrev_b32 v32, 2, v2
v_and_b32 v33, 3, v2
v_lshlrev_b32 v34, 2, v33
v_xor_b32 v32, v32, v34
v_lshl_add_u32 v32, v33, 4, v32
v_lshlrev_b32 v32, 4, v32
s_lshl_b32 s44, s14, 10
s_add_u32 s44, s44, {ex0}
v_add_u32 v32, s44, v32
s_lshl_b32 s46, s33, 16
s_and_b32 s47, s33, 0xffff0000
s_waitcnt lgkmcnt(0)""")
    st()
    a("s_barrier")
    st()
    for k in range(4):
        a(f"ds_read_b128 v[{36+4*k}:{39+4*k}], v32 offset:{k*8192}")
    a("s_waitcnt lgkmcnt(0)")
    for r in range(4):
        a(f"v_add_f32 v52, v{36+r}, v{40+r}")
        a(f"v_add_f32 v53, v{44+r}, v{48+r}")
        a("v_cvt_pk_bf16_f32 v60, v52, v53")
        lo(a, 61, 60); hi(a, 62, 60)
        lo(a, 63, XS + r); hi(a, 64, XS + r)
        a("v_mul_f32 v63, s46, v63")
        a("v_mul_f32 v64, s47, v64")
        a("v_cvt_pk_bf16_f32 v60, v63, v64")
        lo(a, 63, 60); hi(a, 64, 60)
        a("v_add_f32 v61, v61, v63")
        a("v_add_f32 v62, v62, v64")
        if kind == "A":
            a(f"v_cvt_pk_bf16_f32 v{68+r}, v61, v62")
            if FUSE_X1:
                if r == 0: a("s_waitcnt vmcnt(0)")
                lo(a, 61, 68 + r); hi(a, 62, 68 + r)
                lo(a, 63, 8 + r); hi(a, 64, 8 + r)
                a("v_mul_f32 v61, v61, v63")
                a("v_mul_f32 v62, v62, v64")
                a("v_cvt_pk_bf16_f32 v60, v61, v62")
                lo(a, 61, 60); hi(a, 62, 60)
                lo(a, 63, 100 + r); hi(a, 64, 100 + r)
                a("v_add_f32 v61, v61, v63")
                a("v_add_f32 v62, v62, v64")
                a(f"v_cvt_pk_bf16_f32 v{72+r}, v61, v62")
                if r == 3:
                    a(f"s_add_u32 s34, s13, {X1}")
                    a("buffer_store_dwordx4 v[72:75], v14, s[28:31], s34 offen")
        else:
            a("v_cvt_pk_bf16_f32 v60, v61, v62")
            lo(a, 61, 60); hi(a, 62, 60)
            lo(a, 63, 4 + r); hi(a, 64, 4 + r)
            a("v_add_f32 v61, v61, v63")
            a("v_add_f32 v62, v62, v64")
            a(f"v_cvt_pk_bf16_f32 v{68+r}, v61, v62")
        if kind in ("A", "B1"):
            if r == 3:
                dst = YA if kind == "A" else X2
                a("s_lshl_b32 s32, s3, 13")
                a(f"s_add_u32 s32, s32, {dst}")
                a("buffer_store_dwordx4 v[68:71], v14, s[28:31], s32 offen")
        else:
            if r == 0: a("v_lshlrev_b32 v59, 12, v0")
            a(f"buffer_store_dword v{68+r}, v59, s[20:23], s15 offen offset:{1024*r}")
    st()
    st.finish(28)
    return max(F0 + FSZ * (2 if dbuf else 1), 104)

PXLS = 4160
PWL0 = 2 * PXLS
def PCO(NP): return 8 * NP * WAS + 128 - (8 * NP * WAS) % 256
def PEX0(NP): return (PWL0 + PCO(NP) + 8 * NP * WAS + 16 + 255) // 256 * 256
PWSTR = 8192 + 16
def PCONV_LDS(NP): return PEX0(NP) + 8 * PWSTR

def sw_barrier(a, cnt_addr, target, vA, vB, sT, lbl):
    a(f"""s_waitcnt lgkmcnt(0)
v_mov_b32 v{vA}, {cnt_addr}
v_mov_b32 v{vB}, 1
s_mov_b64 exec, 1
ds_add_u32 v{vA}, v{vB}
s_mov_b64 exec, -1
{lbl}:
ds_read_b32 v{vB}, v{vA}
s_waitcnt lgkmcnt(0)
v_readfirstlane_b32 s{sT}, v{vB}
s_cmp_ge_u32 s{sT}, {target}
s_cbranch_scc1 {lbl}_done
s_sleep 1
s_branch {lbl}
{lbl}_done:""")

def conv_body_p(a, kind, NP, st, E, sbuf=False, swbar=None, cbase=0):
    ex0 = PEX0(NP) + cbase; CO = PCO(NP)
    PWL0 = globals()['PWL0'] + cbase
    F0 = 48
    FSZ = 32 + 32 * NP
    XR = F0 + (1 if sbuf else 2) * FSZ
    VW, VC, VP, VC2, VP2 = XR, XR + 1, XR + 2, XR + 3, XR + 4
    TD, XU = XR + (6 if sbuf else 8), XR + 16
    if kind == "A":
        a("s_load_dwordx4 s[4:7], s[0:1], 32")
    else:
        a("s_load_dwordx4 s[4:7], s[0:1], 96")
    st()
    xcd_remap(a, 3, 12)
    a("""v_lshrrev_b32 v1, 6, v0
v_and_b32 v2, 63, v0
v_lshlrev_b32 v14, 4, v0
v_readfirstlane_b32 s14, v1
s_lshl_b32 s13, s3, 13
s_lshl_b32 s15, s3, 2
s_waitcnt lgkmcnt(0)""")
    srd(a, 28, 10, WSBYTES)
    src = {"A": KVT, "B1": X1, "B2": X3}[kind]
    a(f"s_add_u32 s32, s13, {src}")
    a("buffer_load_dwordx4 v[4:7], v14, s[28:31], s32 offen")
    if kind == "A":
        srd(a, 16, 4, MB2)
        a("buffer_load_dwordx4 v[48:51], v14, s[16:19], s13 offen")
        if FUSE_X1:
            a(f"s_add_u32 s34, s13, {QH}")
            a("buffer_load_dwordx4 v[8:11], v14, s[28:31], s34 offen")
            a(f"s_add_u32 s34, s13, {X0T}")
            a(f"buffer_load_dwordx4 v[{XR+24}:{XR+27}], v14, s[28:31], s34 offen")
        a("s_add_u32 s6, s6, s15")
        a("s_addc_u32 s7, s7, 0")
        a("s_load_dword s33, s[6:7], 0")
    else:
        stt = {"B1": ST1, "B2": ST3}[kind]
        a(f"s_mov_b32 s34, {stt}")
        a("buffer_load_dwordx4 v[48:51], v14, s[28:31], s34 offen")
        a(f"s_lshl_b32 s35, s3, {12 + NP}")
        a(f"s_add_u32 s35, s35, {KW}")
        if NP == 2:
            a("v_lshlrev_b32 v60, 5, v0")
            a("buffer_load_dwordx4 v[52:55], v60, s[28:31], s35 offen")
            a("buffer_load_dwordx4 v[56:59], v60, s[28:31], s35 offen offset:16")
        else:
            a("buffer_load_dwordx4 v[52:55], v14, s[28:31], s35 offen")
        a("s_add_u32 s4, s4, s15")
        a("s_addc_u32 s5, s5, 0")
        a("s_load_dword s33, s[4:5], 0")
        if kind == "B2":
            srd(a, 20, 6, MB2)
    na = 8 * NP
    a(f"""v_mov_b32 v64, 0
v_mov_b32 v65, 0
v_mov_b32 v66, 0
v_mov_b32 v67, 0
v_lshrrev_b32 v61, 4, v0
v_mul_u32_u24 v61, {WAS}, v61
v_and_b32 v62, 15, v0
v_lshl_add_u32 v61, v62, 3, v61
v_cmp_gt_u32 vcc, {na*16}, v0
s_and_saveexec_b64 s[36:37], vcc
ds_write_b64 v61, v[64:65] offset:{PWL0}
ds_write_b64 v61, v[64:65] offset:{PWL0 + CO + 8}
s_mov_b64 exec, s[36:37]
v_lshrrev_b32 v61, 1, v0
v_mul_u32_u24 v61, {PXLS}, v61
v_and_b32 v62, 1, v0
v_lshl_add_u32 v61, v62, 4, v61
v_cmp_gt_u32 vcc, 4, v0
s_and_saveexec_b64 s[36:37], vcc
ds_write_b128 v61, v[64:67] offset:{cbase}
s_mov_b64 exec, s[36:37]
s_mov_b32 s38, 0x05040100
s_mov_b32 s39, 0x07060302""")
    a(f"""s_lshr_b32 s40, s14, 2
s_and_b32 s41, s14, 3
s_mul_i32 s42, s40, {PXLS}
s_add_u32 s42, s42, {32 + cbase}
s_mul_i32 s43, s40, {NP*4}
s_add_u32 s43, s43, s41
s_mul_i32 s43, s43, {WAS}
s_add_u32 s43, s43, {PWL0 + 56}
v_lshrrev_b32 v70, 4, v2
v_and_b32 v71, 3, v2
v_bfe_u32 v72, v2, 2, 2
v_sub_u32 v71, v71, v72
v_lshlrev_b32 v71, 3, v71
v_lshl_add_u32 v71, v70, 6, v71
v_add_u32 v12, s42, v71
v_and_b32 v71, 15, v2
v_lshlrev_b32 v71, 3, v71
v_lshlrev_b32 v72, 4, v70
v_sub_u32 v71, v71, v72
v_add_u32 v13, s43, v71
v_and_b32 v71, 1, v2
v_xor_b32 v71, 1, v71
v_mul_u32_u24 v71, {CO + 8}, v71
v_add_u32 v13, v13, v71""")
    VXA, VWB, ACC = 12, 13, 16
    for i in range(32): a(f"v_mov_b32 v{ACC+i}, 0")
    a(f"""v_and_b32 v70, 15, v2
v_lshrrev_b32 v71, 4, v2
v_lshlrev_b32 v72, 2, v71
v_xor_b32 v70, v70, v72
v_lshl_add_u32 v70, v71, 4, v70
v_lshlrev_b32 v70, 4, v70
s_mul_i32 s44, s14, {PWSTR}
s_add_u32 s44, s44, {ex0}
v_add_u32 v{VW}, s44, v70
v_mov_b32 v70, s44
s_mov_b64 exec, 1
ds_write_b128 v70, v[64:67] offset:8192
s_mov_b64 exec, -1
v_lshrrev_b32 v70, 2, v2
v_and_b32 v71, 3, v2
v_lshlrev_b32 v72, 2, v71
v_xor_b32 v70, v70, v72
v_lshl_add_u32 v70, v71, 4, v70
v_lshlrev_b32 v70, 4, v70
s_lshl_b32 s44, s14, 10
s_add_u32 s44, s44, {ex0}
v_add_u32 v{VC}, s44, v70
v_subrev_u32 v73, 1, v2
v_lshrrev_b32 v71, 2, v73
v_and_b32 v73, 3, v73
v_lshlrev_b32 v72, 2, v73
v_xor_b32 v71, v71, v72
v_lshl_add_u32 v71, v73, 4, v71
v_lshlrev_b32 v71, 4, v71
v_add_u32 v71, s44, v71
s_sub_u32 s45, s44, {1024 - 51*16}
s_cmp_eq_u32 s14, 0
s_cselect_b32 s45, {ex0 + 8192}, s45
v_mov_b32 v72, s45
v_cmp_eq_u32 vcc, 0, v2
v_cndmask_b32 v{VP}, v71, v72, vcc
v_add_u32 v{VC2}, {4*PWSTR}, v{VC}
v_add_u32 v{VP2}, {4*PWSTR}, v{VP}
v_lshlrev_b32 v62, 3, v0""")
    if kind == "A":
        a(f"""v_lshrrev_b32 v61, 8, v0
v_mul_u32_u24 v61, {4*WAS}, v61
v_and_b32 v63, 255, v0
v_lshl_add_u32 v61, v63, 2, v61
s_waitcnt vmcnt({3 if FUSE_X1 else 1})""")
        st()
        XS = 4
    else:
        if NP == 2:
            a(f"""v_lshrrev_b32 v61, 5, v0
v_mul_u32_u24 v61, {WAS}, v61
v_and_b32 v63, 31, v0
v_lshl_add_u32 v61, v63, 5, v61
s_waitcnt vmcnt(2)""")
        else:
            a(f"""v_mul_u32_u24 v61, {WAS}, v1
v_lshl_add_u32 v61, v2, 4, v61
s_waitcnt vmcnt(1)""")
        st()
        for r in range(4):
            T = 72 + 8 * r
            lo(a, T, 48 + r); hi(a, T + 1, 48 + r)
            a(f"v_rcp_f32 v{T+2}, v{T+1}")
            lo(a, XU + 2 * r, 4 + r); hi(a, XU + 2 * r + 1, 4 + r)
        for r in range(4):
            T = 72 + 8 * r
            a(f"v_sub_f32 v{T+3}, v{XU+2*r}, v{T}")
            a(f"v_sub_f32 v{T+4}, v{XU+2*r+1}, v{T}")
            a(f"v_cvt_pk_bf16_f32 v{T+5}, v{T+3}, v{T+4}")
            lo(a, T + 3, T + 5); hi(a, T + 4, T + 5)
            for x in (T + 3, T + 4):
                a(f"v_mul_f32 v{T+6}, v{x}, v{T+2}")
                a(f"v_fma_f32 v{T+7}, -v{T+6}, v{T+1}, v{x}")
                a(f"v_fma_f32 v{x}, v{T+7}, v{T+2}, v{T+6}")
            a(f"v_cvt_pk_bf16_f32 v{8+r}, v{T+3}, v{T+4}")
        XS = 8
    a(f"""v_perm_b32 v64, v{XS+1}, v{XS}, s38
v_perm_b32 v65, v{XS+3}, v{XS+2}, s38
v_perm_b32 v66, v{XS+1}, v{XS}, s39
v_perm_b32 v67, v{XS+3}, v{XS+2}, s39
ds_write_b64 v62, v[64:65] offset:{32 + cbase}
ds_write_b64 v62, v[66:67] offset:{PXLS+32+cbase}
s_waitcnt vmcnt({2 if (kind == "A" and FUSE_X1) else 0})""")
    if kind == "A":
        a("""v_perm_b32 v68, v50, v48, s38
v_perm_b32 v69, v50, v48, s39
v_perm_b32 v70, v51, v49, s38
v_perm_b32 v71, v51, v49, s39""")
        for f in range(4):
            a(f"ds_write_b32 v61, v{68+f} offset:{PWL0+128+f*WAS}")
            a(f"ds_write_b32 v61, v{68+f} offset:{PWL0+128+f*WAS+CO+8}")
    else:
        for h in range(NP):
            b = 52 + 4 * h
            a(f"ds_write_b128 v61, v[{b}:{b+3}] offset:{PWL0+128+16*h}")
            a(f"ds_write_b64 v61, v[{b}:{b+1}] offset:{PWL0+128+16*h+CO+8}")
            a(f"ds_write_b64 v61, v[{b+2}:{b+3}] offset:{PWL0+128+16*h+CO+16}")
    a("""s_waitcnt lgkmcnt(0)
s_lshl_b32 s46, s33, 16
s_and_b32 s47, s33, 0xffff0000""")
    if swbar is None: a("s_barrier")
    else: sw_barrier(a, swbar, 8, 64, 65, 48, f"{E}_sb1")
    st()
    FA = [F0, F0 + (0 if sbuf else FSZ)]
    FB = [F0 + 32, F0 + (0 if sbuf else FSZ) + 32]
    q = LdsQ(a)
    def rdA(rho, aa):
        return [(f"ds_read_b64_tr_b16 v[{FA[rho]+4*aa+2*hh}:{FA[rho]+4*aa+2*hh+1}], v{VXA} offset:{512*aa + 256*rho + 32*(1-hh)}",
                 [FA[rho] + 4 * aa + 2 * hh, FA[rho] + 4 * aa + 2 * hh + 1]) for hh in range(2)]
    def rdB(rho, e, p):
        d = FB[rho] + 32 * p + 4 * e
        return [(f"ds_read_b128 v[{d}:{d+3}], v{VWB} offset:{128*e + 64*(1-rho) + p*4*WAS}", list(range(d, d + 4)))]
    order = [(aa, c - aa, c) for c in range(8) for aa in range(c + 1)]
    def reads(rho):
        seen, r = set(), []
        for (aa, e, c) in order:
            if ("A", aa) not in seen: seen.add(("A", aa)); r += rdA(rho, aa)
            if ("B", e) not in seen:
                seen.add(("B", e))
                for p in range(NP): r += rdB(rho, e, p)
        return r
    def mf(rho, aa, e, c, p):
        A = FA[rho] + 4 * aa; B = FB[rho] + 32 * p + 4 * e; D = ACC + 4 * c
        q.need(list(range(A, A + 4)) + list(range(B, B + 4)))
        a(f"v_mfma_f32_16x16x32_bf16 v[{D}:{D+3}], v[{A}:{A+3}], v[{B}:{B+3}], v[{D}:{D+3}]")
    fill = []
    for r in range(4):
        fill += [f"v_lshlrev_b32 v{TD+2*r}, 16, v{XS+r}", f"v_and_b32 v{TD+2*r+1}, 0xffff0000, v{XS+r}",
                 f"v_mul_f32 v{TD+2*r}, s46, v{TD+2*r}", f"v_mul_f32 v{TD+2*r+1}, s47, v{TD+2*r+1}",
                 f"v_cvt_pk_bf16_f32 v15, v{TD+2*r}, v{TD+2*r+1}",
                 f"v_lshlrev_b32 v{TD+2*r}, 16, v15", f"v_and_b32 v{TD+2*r+1}, 0xffff0000, v15"]
    if kind == "B2": fill.append("v_lshlrev_b32 v3, 12, v0")
    QU = XR + 28
    if kind == "A" and FUSE_X1:
        fill.append("s_waitcnt vmcnt(0)")
        for r in range(4):
            fill += [f"v_lshlrev_b32 v{QU+2*r}, 16, v{8+r}", f"v_and_b32 v{QU+2*r+1}, 0xffff0000, v{8+r}",
                     f"v_lshlrev_b32 v{XU+2*r}, 16, v{XR+24+r}", f"v_and_b32 v{XU+2*r+1}, 0xffff0000, v{XR+24+r}"]
    if not sbuf:
        for t, d in reads(0): q.issue(t, d)
        r1 = reads(1)
        for (aa, e, c) in order:
            for p in range(NP):
                mf(0, aa, e, c, p)
                if r1:
                    tt, dd = r1.pop(0); q.issue(tt, dd)
                elif fill: a(fill.pop(0))
        for tt, dd in r1: q.issue(tt, dd)
    else:
        order0 = sorted(order, key=lambda x: (min(x[0], x[1]), x[2]))
        def frs(o):
            seen, out = set(), []
            for (aa, e, c) in o:
                for f in (("A", aa), ("B", e)):
                    if f not in seen: seen.add(f); out.append(f)
            return out
        def rds(rho, f):
            if f[0] == "A": return rdA(rho, f[1])
            r = []
            for p in range(NP): r += rdB(rho, f[1], p)
            return r
        for f in frs(order0):
            for t, d in rds(0, f): q.issue(t, d)
        lastuse = {}
        for k, (aa, e, c) in enumerate(order0):
            lastuse[("A", aa)] = k; lastuse[("B", e)] = k
        pend = frs(order)
        for k, (aa, e, c) in enumerate(order0):
            for p in range(NP): mf(0, aa, e, c, p)
            dead = [f for f in pend if lastuse[f] <= k]
            for f in dead:
                pend.remove(f)
                for t, d in rds(1, f): q.issue(t, d)
            if not dead and fill: a(fill.pop(0))
        assert not pend
    pendw = []
    for (aa, e, c) in order:
        for p in range(NP):
            mf(1, aa, e, c, p)
            if fill: a(fill.pop(0))
            pendw = [(cc, n - 1) for cc, n in pendw]
            for cc, n in [x for x in pendw if x[1] <= 0]:
                q.issue(f"ds_write_b128 v{VW}, v[{ACC+4*cc}:{ACC+4*cc+3}] offset:{cc*1024}", [])
            pendw = [x for x in pendw if x[1] > 0]
        if aa == c: pendw.append((c, 5))
    for f in fill: a(f)
    for cc, n in pendw:
        q.issue(f"ds_write_b128 v{VW}, v[{ACC+4*cc}:{ACC+4*cc+3}] offset:{cc*1024}", [])
    a("s_waitcnt lgkmcnt(0)")
    st()
    if swbar is None: a("s_barrier")
    else: sw_barrier(a, swbar + 4, 8, 48, 49, 48, f"{E}_sb2")
    st()
    for w in range(8):
        b = VC if w < 4 else VC2
        a(f"ds_read_b128 v[{48+4*w}:{51+4*w}], v{b} offset:{(w&3)*PWSTR}")
        if w & 3:
            b = VP if w < 4 else VP2
            a(f"ds_read_b128 v[{80+4*w}:{83+4*w}], v{b} offset:{(w&3)*PWSTR}")
    for ch in range(2):
        a(f"s_waitcnt lgkmcnt({7 if ch == 0 else 0})")
        cur = lambda d, i: 48 + 4 * (4 * ch + d) + i
        prv = lambda d, i: 80 + 4 * (4 * ch + d) + i
        for r in range(4):
            t = [cur(0, r)]
            for d in range(1, 4):
                t.append(cur(d, r - d) if r - d >= 0 else prv(d, 4 + r - d))
            y = 16 + 4 * ch + r
            a(f"v_add_f32 v{y}, v{t[0]}, v{t[1]}")
            a(f"v_add_f32 v{24+r}, v{t[2]}, v{t[3]}")
            a(f"v_add_f32 v{y}, v{y}, v{24+r}")
    for r in range(4):
        T = 28 + 4 * r
        a(f"v_cvt_pk_bf16_f32 v{T}, v{16+r}, v{20+r}")
        lo(a, T + 1, T); hi(a, T + 2, T)
        a(f"v_add_f32 v{T+1}, v{T+1}, v{TD+2*r}")
        a(f"v_add_f32 v{T+2}, v{T+2}, v{TD+2*r+1}")
        if kind == "A":
            a(f"v_cvt_pk_bf16_f32 v{44+r}, v{T+1}, v{T+2}")
            if FUSE_X1:
                lo(a, T + 1, 44 + r); hi(a, T + 2, 44 + r)
                a(f"v_mul_f32 v{T+1}, v{T+1}, v{QU+2*r}")
                a(f"v_mul_f32 v{T+2}, v{T+2}, v{QU+2*r+1}")
                a(f"v_cvt_pk_bf16_f32 v{T}, v{T+1}, v{T+2}")
                lo(a, T + 1, T); hi(a, T + 2, T)
                a(f"v_add_f32 v{T+1}, v{T+1}, v{XU+2*r}")
                a(f"v_add_f32 v{T+2}, v{T+2}, v{XU+2*r+1}")
                a(f"v_cvt_pk_bf16_f32 v{48+r}, v{T+1}, v{T+2}")
                if r == 3:
                    a(f"s_add_u32 s34, s13, {X1}")
                    a("buffer_store_dwordx4 v[48:51], v14, s[28:31], s34 offen")
        else:
            a(f"v_cvt_pk_bf16_f32 v{T}, v{T+1}, v{T+2}")
            lo(a, T + 1, T); hi(a, T + 2, T)
            a(f"v_add_f32 v{T+1}, v{T+1}, v{XU+2*r}")
            a(f"v_add_f32 v{T+2}, v{T+2}, v{XU+2*r+1}")
            a(f"v_cvt_pk_bf16_f32 v{44+r}, v{T+1}, v{T+2}")
        if kind in ("A", "B1"):
            if r == 3:
                dst = YA if kind == "A" else X2
                a(f"s_add_u32 s32, s13, {dst}")
                a("buffer_store_dwordx4 v[44:47], v14, s[28:31], s32 offen")
        else:
            a(f"buffer_store_dword v{44+r}, v3, s[20:23], s15 offen offset:{1024*r}")
    st()
    st.finish(28)
    return (XR + 14) if sbuf else (XR + 36)

def k_conv(kind, NP, dbuf=True, optp=False):
    name = {"A": "convA_kernel", "B1": "convB1_kernel", "B2": "convB2_kernel"}[kind]
    if kind == "A": NP = 1
    a = Asm()
    E = f"L_{name}"
    a(f"""s_cmp_ge_u32 s2, 256
s_cbranch_scc1 {E}_end
s_load_dwordx2 s[10:11], s[0:1], 120""")
    st = Stamps(a, {"A": 2, "B1": 4, "B2": 6}[kind])
    nv = conv_body_p(a, kind, NP, st, E) if optp else conv_body(a, kind, NP, st, E, dbuf)
    a(f"""{E}_end:
s_endpgm""")
    return kernel_text(name, a.text(), nv, SG(64))

def row_reduce(a, S1, S2, T, waddr, ldsoff):
    a(f"""v_permlane32_swap_b32 v{S1}, v{S2}
v_add_f32 v{S1}, v{S1}, v{S2}
v_mov_b32 v{T}, v{S1}
v_permlane16_swap_b32 v{S1}, v{T}
v_add_f32 v{S1}, v{S1}, v{T}
v_add_f32_dpp v{S1}, v{S1}, v{S1} row_ror:8 row_mask:0xf bank_mask:0xf
s_mov_b64 exec, s[48:49]
ds_write_b32 v{waddr}, v{S1} offset:{ldsoff}
s_mov_b64 exec, -1
s_waitcnt lgkmcnt(0)
s_barrier""")

def row_stats(a, raddr, ldsoff, piv, T, o_mean, o_m, o_den):
    a(f"""ds_read_b128 v[{T}:{T+3}], v{raddr} offset:{ldsoff}
ds_read_b128 v[{T+4}:{T+7}], v{raddr} offset:{ldsoff+16}
ds_read_b128 v[{T+8}:{T+11}], v{raddr} offset:{ldsoff+256}
ds_read_b128 v[{T+12}:{T+15}], v{raddr} offset:{ldsoff+272}
s_waitcnt lgkmcnt(2)""")
    for b in (0, 8):
        if b == 8: a("s_waitcnt lgkmcnt(0)")
        a(f"""v_add_f32 v{T+b}, v{T+b}, v{T+b+1}
v_add_f32 v{T+b+2}, v{T+b+2}, v{T+b+3}
v_add_f32 v{T+b+4}, v{T+b+4}, v{T+b+5}
v_add_f32 v{T+b+6}, v{T+b+6}, v{T+b+7}
v_add_f32 v{T+b}, v{T+b}, v{T+b+2}
v_add_f32 v{T+b+4}, v{T+b+4}, v{T+b+6}
v_add_f32 v{T+b}, v{T+b}, v{T+b+4}""")
    a(f"""v_mul_f32 v{T}, 0x3b000000, v{T}
v_mul_f32 v{T+1}, 0x3b000000, v{T+8}
v_add_f32 v{o_mean}, v{piv}, v{T}
v_fma_f32 v{T+1}, -v{T}, v{T}, v{T+1}
v_max_f32 v{T+1}, 0, v{T+1}
v_cvt_pk_bf16_f32 v{T+2}, v{o_mean}, v{T+1}
v_lshlrev_b32 v{o_m}, 16, v{T+2}
v_and_b32 v{T+1}, 0xffff0000, v{T+2}
v_add_f32 v{T+1}, 0x3727c5ac, v{T+1}
v_cvt_pk_bf16_f32 v{T+1}, v{T+1}, v{T+1}
v_and_b32 v{T+1}, 0xffff0000, v{T+1}
v_sqrt_f32 v{T+1}, v{T+1}
v_cvt_pk_bf16_f32 v{T+1}, v{T+1}, v{T+1}
v_and_b32 v{o_den}, 0xffff0000, v{T+1}""")

def row_partial(a, P):
    for k in range(8):
        a(f"v_sub_f32 v{48+k}, v{24+k}, v{P}")
    a("v_add_f32 v40, v48, v49")
    a("v_mul_f32 v41, v48, v48")
    a("v_mul_f32 v42, v49, v49")
    for k in range(2, 8, 2):
        a(f"v_add_f32 v43, v{48+k}, v{49+k}")
        a(f"v_fmac_f32 v41, v{48+k}, v{48+k}")
        a(f"v_fmac_f32 v42, v{49+k}, v{49+k}")
        a("v_add_f32 v40, v40, v43")
    a("v_add_f32 v41, v41, v42")

def row_setup(a, rb_sgpr):
    a(f"""v_and_b32 v1, 7, v0
v_lshrrev_b32 v2, 3, v0
s_lshl_b32 s13, s{rb_sgpr}, 3
v_add_u32 v3, s13, v1
v_lshlrev_b32 v9, 15, v2
v_lshl_add_u32 v8, v3, 2, v9
s_mov_b32 s48, 0xff
s_mov_b32 s49, 0xff
v_lshlrev_b32 v11, 5, v1
v_bfe_u32 v10, v0, 5, 1
v_lshl_add_u32 v10, v10, 8, v11
v_lshrrev_b32 v5, 6, v0
v_lshl_add_u32 v10, v5, 2, v10""")

def ln0_compute(a):
    row_setup(a, 3)
    a("v_lshlrev_b32 v20, 16, v74")
    for k in range(4):
        lo(a, 24 + 2 * k, 70 + k); hi(a, 25 + 2 * k, 70 + k)
    row_partial(a, 20)
    row_reduce(a, 40, 41, 42, 10, 0)
    row_stats(a, 11, 0, 20, 48, 21, 22, 23)
    a("v_rcp_f32 v36, v23")
    for k in range(4):
        x0, x1 = 24 + 2 * k, 25 + 2 * k
        a(f"v_sub_f32 v51, v{x0}, v22")
        a(f"v_sub_f32 v52, v{x1}, v22")
        a("v_cvt_pk_bf16_f32 v53, v51, v52")
        lo(a, 51, 53); hi(a, 52, 53)
        for x in (51, 52):
            a(f"v_mul_f32 v54, v{x}, v36")
            a(f"v_fma_f32 v55, -v54, v23, v{x}")
            a(f"v_fma_f32 v{x}, v55, v36, v54")
        a(f"v_cvt_pk_bf16_f32 v{56+k}, v51, v52")
        a(f"s_mov_b32 s34, {QH + 8192*k}")
        a(f"buffer_store_dword v{56+k}, v8, s[28:31], s34 offen")

def k_stat1():
    name = "row1_kernel"
    E = f"L_{name}_end"
    a = Asm()
    a(f"""s_cmp_ge_u32 s2, 256
s_cbranch_scc1 {E}
s_load_dwordx2 s[10:11], s[0:1], 120""")
    st = Stamps(a, 3); st()
    xcd_remap(a, 3, 12)
    row_setup(a, 3)
    a("s_waitcnt lgkmcnt(0)")
    srd(a, 28, 10, WSBYTES)
    a(f"""s_mov_b32 s33, {X1}
v_lshlrev_b32 v7, 2, v3""")
    for k in range(4):
        a(f"s_add_u32 s34, s33, {8192*k}")
        a(f"buffer_load_dword v{16+k}, v8, s[28:31], s34 offen")
    a("""buffer_load_dword v20, v7, s[28:31], s33 offen
s_waitcnt vmcnt(0)
v_lshlrev_b32 v20, 16, v20""")
    st()
    for k in range(4):
        lo(a, 24 + 2 * k, 16 + k); hi(a, 25 + 2 * k, 16 + k)
    row_partial(a, 20)
    row_reduce(a, 40, 41, 42, 10, 0)
    a(f"""v_cmp_gt_u32 vcc, 8, v0
s_and_saveexec_b64 s[36:37], vcc
s_cbranch_execz {E}""")
    row_stats(a, 11, 0, 20, 64, 60, 61, 62)
    a(f"""v_lshrrev_b32 v61, 16, v61
v_or_b32 v61, v61, v62
s_mov_b32 s35, {ST1}
buffer_store_dword v61, v7, s[28:31], s35 offen""")
    st.finish(28)
    a(f"""{E}:
s_endpgm""")
    return kernel_text(name, a.text(), 80, SG(56))

def k_row(kind, NP=1, nk=0, ch0=0):
    name = {"R1": "row1_kernel", "R2": "row2_kernel"}[kind]
    E = f"L_{name}_end"
    a = Asm()
    if nk:
        a(f"""s_add_u32 s60, s2, 256
s_sub_u32 s61, s2, {nk}
s_cmp_lt_u32 s2, {nk}
s_cselect_b32 s61, s60, s61
s_cmp_lt_u32 s2, {nk+256}
s_cselect_b32 s2, s61, s2""")
    a(f"""s_cmp_ge_u32 s2, 256
s_cbranch_scc1 {E}_kgen
s_setprio 3
s_load_dwordx2 s[10:11], s[0:1], 120
s_load_dwordx2 s[4:5], s[0:1], 0""")
    st = Stamps(a, {"R1": 3, "R2": 5}[kind]); st()
    xcd_remap(a, 3, 12)
    a("""v_and_b32 v1, 7, v0
v_lshrrev_b32 v2, 3, v0
s_lshl_b32 s13, s3, 3
v_add_u32 v3, s13, v1
v_lshlrev_b32 v9, 15, v2
v_lshl_add_u32 v8, v3, 2, v9
v_lshl_add_u32 v9, v3, 4, v9
s_waitcnt lgkmcnt(0)""")
    srd(a, 28, 10, WSBYTES)
    a(f"s_mov_b32 s32, {YA}")
    if kind == "R1":
        srd(a, 16, 4, MB2)
        a("""v_lshlrev_b32 v7, 10, v3
v_lshl_add_u32 v4, v2, 4, v7
buffer_load_dwordx4 v[16:19], v4, s[16:19], 0 offen
buffer_load_dword v20, v7, s[16:19], 0 offen""")
    else:
        a(f"""s_mov_b32 s33, {X2}
v_lshlrev_b32 v7, 2, v3""")
        for k in range(4):
            a(f"s_add_u32 s34, s33, {8192*k}")
            a(f"buffer_load_dword v{16+k}, v8, s[28:31], s34 offen")
        a("buffer_load_dword v20, v7, s[28:31], s33 offen")
    for k in range(4):
        a(f"s_add_u32 s34, s32, {8192*k}")
        a(f"buffer_load_dword v{12+k}, v8, s[28:31], s34 offen")
    if PF_K:
        a(f"""s_lshl_b32 s44, s3, {12+NP}
s_add_u32 s44, s44, {KW}
v_lshrrev_b32 v22, 6, v0
v_lshl_add_u32 v22, v22, 3, v1
v_lshlrev_b32 v22, 7, v22
s_mov_b64 exec, 0xff
buffer_load_dword v38, v22, s[28:31], s44 offen
s_mov_b64 exec, -1""")
    a("""s_mov_b32 s48, 0xff
s_mov_b32 s49, 0xff
v_lshlrev_b32 v11, 5, v1
v_bfe_u32 v10, v0, 5, 1
v_lshl_add_u32 v10, v10, 8, v11
v_lshrrev_b32 v5, 6, v0
v_lshl_add_u32 v10, v5, 2, v10
""" + f"s_waitcnt vmcnt({5 if PF_K else 4})" + """
v_lshlrev_b32 v20, 16, v20""")
    st()
    for k in range(4):
        lo(a, 24 + 2 * k, 16 + k); hi(a, 25 + 2 * k, 16 + k)
    def partial(P):
        for k in range(8):
            a(f"v_sub_f32 v{48+k}, v{24+k}, v{P}")
        a("v_add_f32 v40, v48, v49")
        a("v_mul_f32 v41, v48, v48")
        a("v_mul_f32 v42, v49, v49")
        for k in range(2, 8, 2):
            a(f"v_add_f32 v43, v{48+k}, v{49+k}")
            a(f"v_fmac_f32 v41, v{48+k}, v{48+k}")
            a(f"v_fmac_f32 v42, v{49+k}, v{49+k}")
            a("v_add_f32 v40, v40, v43")
        a("v_add_f32 v41, v41, v42")
    partial(20)
    row_reduce(a, 40, 41, 42, 10, 0)
    row_stats(a, 11, 0, 20, 48, 21, 22, 23)
    st()
    a("v_rcp_f32 v36, v23")
    a(f"s_waitcnt vmcnt({1 if PF_K else 0})")
    for k in range(4):
        x0, x1 = 24 + 2 * k, 25 + 2 * k
        a(f"v_sub_f32 v51, v{x0}, v22")
        a(f"v_sub_f32 v52, v{x1}, v22")
        a("v_cvt_pk_bf16_f32 v53, v51, v52")
        lo(a, 51, 53); hi(a, 52, 53)
        for x in (51, 52):
            a(f"v_mul_f32 v54, v{x}, v36")
            a(f"v_fma_f32 v55, -v54, v23, v{x}")
            a(f"v_fma_f32 v{x}, v55, v36, v54")
        a("v_cvt_pk_bf16_f32 v53, v51, v52")
        lo(a, 51, 53); hi(a, 52, 53)
        lo(a, 54, 12 + k); hi(a, 55, 12 + k)
        a("v_mul_f32 v51, v51, v54")
        a("v_mul_f32 v52, v52, v55")
        a("v_cvt_pk_bf16_f32 v53, v51, v52")
        lo(a, 51, 53); hi(a, 52, 53)
        a(f"v_add_f32 v51, v51, v{x0}")
        a(f"v_add_f32 v52, v52, v{x1}")
        a(f"v_cvt_pk_bf16_f32 v{56+k}, v51, v52")
        lo(a, x0, 56 + k); hi(a, x1, 56 + k)
    dst = X1 if kind == "R1" else X3
    if ROW_OUT_T2:
        for k in range(4):
            a(f"s_mov_b32 s34, {dst + 8192*k}")
            a(f"buffer_store_dword v{56+k}, v8, s[28:31], s34 offen")
    else:
        a(f"s_mov_b32 s34, {dst}")
        a("buffer_store_dwordx4 v[56:59], v9, s[28:31], s34 offen")
    st()
    partial(21)
    row_reduce(a, 40, 41, 42, 10, 512)
    stt = ST1 if kind == "R1" else ST3
    a(f"""v_cmp_gt_u32 vcc, 8, v0
s_and_saveexec_b64 s[36:37], vcc
s_cbranch_execz {E}""")
    row_stats(a, 11, 512, 21, 64, 60, 61, 62)
    a(f"""v_lshrrev_b32 v61, 16, v61
v_or_b32 v61, v61, v62
v_lshlrev_b32 v7, 2, v3
s_mov_b32 s35, {stt}
buffer_store_dword v61, v7, s[28:31], s35 offen""")
    st.finish(28)
    a(f"""s_endpgm
{E}_kgen:
s_cmp_ge_u32 s2, {256+nk}
s_cbranch_scc1 {E}""")
    nv = 80
    if nk:
        a(f"s_add_u32 s55, s2, {ch0-256}")
        st2 = Stamps(a, 3)
        nv = kgen_body(a, NP, st2, 55)
    a(f"""{E}:
s_endpgm""")
    return kernel_text(name, a.text(), nv, SG(64))

KPART = 0
KPRM = 8 * 3072
KTAB0 = KPRM + 8 * 256
KGEN_LDS = KTAB0 + 2176 * 4
def kgen_body(a, NP, st, ch_sgpr, lbase=0, swbar=None):
    KPART, KPRM, KTAB0 = globals()["KPART"] + lbase, globals()["KPRM"] + lbase, globals()["KTAB0"] + lbase
    if KG_FLUSH: a("s_setreg_imm32_b32 hwreg(HW_REG_MODE, 4, 2), 0")
    a(f"""s_load_dwordx8 s[4:11], s[0:1], 56
s_load_dwordx2 s[12:13], s[0:1], 88
s_load_dwordx2 s[14:15], s[0:1], 120
v_and_b32 v1, 15, v0
v_bfe_u32 v2, v0, 4, 2
v_lshrrev_b32 v3, 6, v0
s_lshl_b32 s3, s{ch_sgpr}, 8
v_lshlrev_b32 v4, 5, v3
v_lshl_add_u32 v4, v1, 1, v4
s_mov_b32 s50, 0x3fb8aa3b
s_mov_b32 s51, 0x32a57060
s_mov_b32 s52, 0x3f317218
s_mov_b32 s53, 0x3e22f983
s_mov_b32 s54, 0x07060302
v_readfirstlane_b32 s56, v3
s_waitcnt lgkmcnt(0)""")
    st()
    PS = [16, 24, 40, 64]
    if KG_SMEM:
        a("""s_lshl_b32 s57, s56, 5
s_add_u32 s3, s3, s57""")
        for i in range(4):
            a(f"""s_add_u32 s{4+2*i}, s{4+2*i}, s3
    s_addc_u32 s{5+2*i}, s{5+2*i}, 0
    s_load_dwordx8 s[{PS[i]}:{PS[i]+7}], s[{4+2*i}:{5+2*i}], 0""")
        srd(a, 32, 14, WSBYTES)

    else:
        for i in range(4): srd(a, 16 + 4 * i, 4 + 2 * i, 131072)
        srd(a, 32, 14, WSBYTES)
        for i in range(4):
            a(f"buffer_load_ushort v{8+i}, v4, s[{16+4*i}:{19+4*i}], s3 offen")
    a(f"""s_lshr_b32 s36, s{ch_sgpr}, 1
s_lshl_b32 s36, s36, 2
s_add_u32 s12, s12, s36
s_addc_u32 s13, s13, 0
s_load_dword s37, s[12:13], 0""")
    global _LBL
    _LBL += 1
    if KG_TAB:
        a(f"""s_getpc_b64 s[58:59]
L_ktref{_LBL}:
s_add_u32 s58, s58, L_ktab-L_ktref{_LBL}
s_addc_u32 s59, s59, 0
v_lshlrev_b32 v28, 4, v1
global_load_dwordx4 v[24:27], v28, s[58:59]""")
    else:
        a(f"""v_lshrrev_b32 v28, 3, v1
v_lshlrev_b32 v28, 7, v28
v_and_b32 v29, 7, v1
v_or_b32 v24, v28, v29
v_lshrrev_b32 v28, 2, v1
v_lshlrev_b32 v28, 7, v28
v_and_b32 v29, 3, v1
v_lshl_add_u32 v28, v29, 1, v28
v_add_u32 v28, 256, v28
v_bfe_u32 v29, v1, 1, 2
v_lshlrev_b32 v29, 7, v29
v_and_b32 v30, 1, v1
v_lshl_add_u32 v29, v30, 2, v29
v_add_u32 v29, 512, v29
v_cmp_gt_u32 vcc, 8, v1
v_cndmask_b32 v25, v29, v28, vcc
v_lshlrev_b32 v28, 7, v1
v_add_u32 v28, 1024, v28
v_min_u32 v26, 2048, v28
v_lshlrev_b32 v27, 3, v1
v_cvt_f32_u32 v24, v24
v_cvt_f32_u32 v25, v25
v_cvt_f32_u32 v26, v26
v_cvt_f32_u32 v27, v27""")
    a(f"""v_lshlrev_b32 v5, 8, v3
v_lshl_add_u32 v6, v1, 4, v5
v_lshl_add_u32 v5, v2, 6, v5
s_waitcnt lgkmcnt(0)
s_lshl_b32 s38, s37, 16
s_and_b32 s39, s37, 0xffff0000
s_bitcmp1_b32 s{ch_sgpr}, 0
s_cselect_b32 s38, s39, s38
v_mov_b32 v28, s38""")
    exp_acc(a, 29, 28, 30, 31)
    a("""v_cvt_pk_bf16_f32 v29, v29, v29
v_and_b32 v29, 0xffff0000, v29""")
    if not KG_SMEM:
        a("s_waitcnt vmcnt(0)")
        st()
        for i in range(4): lo(a, 8 + i, 8 + i)
    else:
        st()
        for i in range(4):
            for kk in range(8):
                a(f"v_writelane_b32 v{8+i}, s{PS[i]+kk}, {kk}")
        a("""v_lshrrev_b32 v16, 1, v1
v_lshlrev_b32 v16, 2, v16
v_and_b32 v17, 1, v1
v_xor_b32 v17, 1, v17
v_lshlrev_b32 v17, 4, v17""")
        for i in range(4): a(f"ds_bpermute_b32 v{8+i}, v16, v{8+i}")
        a("s_waitcnt lgkmcnt(0)")
        for i in range(4):
            a(f"v_lshlrev_b32 v{8+i}, v17, v{8+i}")
            a(f"v_and_b32 v{8+i}, 0xffff0000, v{8+i}")
    exp_acc(a, 12, 8, 30, 31)
    a(f"""v_cvt_pk_bf16_f32 v12, v12, v12
v_and_b32 v12, 0xffff0000, v12
v_mul_f32 v12, v12, v29
v_mul_f32 v12, 0xbfb8aa3b, v12
v_mul_f32 v13, v9, v29
v_mul_f32 v13, s53, v13
v_mul_f32 v14, v10, v29
v_mul_f32 v15, v11, v29
v_add_f32 v14, v14, v14
v_add_f32 v15, v15, v15
ds_write_b128 v6, v[12:15] offset:{KPRM}
s_waitcnt lgkmcnt(0)""")
    a("s_waitcnt vmcnt(0)")
    st()
    a("v_mov_b32 v7, 0x07060302")
    tmp = list(range(16, 24)) + list(range(28, 44))
    XS_ = [44, 45, 46, 47]
    for bt in range(2):
        for mm in range(2):
            a(f"ds_read_b128 v[{8+4*mm}:{11+4*mm}], v5 offset:{KPRM + 16*(2*bt+mm)}")
        a("s_waitcnt lgkmcnt(0)")
        items = [(mm, T) for mm in range(2) for T in range(4)]
        Er = {it: tmp[3 * k] for k, it in enumerate(items)}
        Sr = {it: tmp[3 * k + 1] for k, it in enumerate(items)}
        Cr = {it: tmp[3 * k + 2] for k, it in enumerate(items)}
        for it in items: a(f"v_mul_f32 v{Sr[it]}, v{9+4*it[0]}, v{24+it[1]}")
        for it in items: a(f"v_mul_f32 v{Er[it]}, v{8+4*it[0]}, v{24+it[1]}")
        for it in items: a(f"v_fract_f32 v{Sr[it]}, v{Sr[it]}")
        for it in items: a(f"v_exp_f32 v{Er[it]}, v{Er[it]}")
        for it in items: a(f"v_cos_f32 v{Cr[it]}, v{Sr[it]}")
        for it in items: a(f"v_sin_f32 v{Sr[it]}, v{Sr[it]}")
        for it in items:
            if it[1] < 3:
                a(f"v_mul_f32 v{Cr[it]}, v{Cr[it]}, v{Er[it]}")
                a(f"v_mul_f32 v{Sr[it]}, v{Sr[it]}, v{Er[it]}")
        cols = [it for it in items if it[1] == 3]
        for n, it in enumerate(cols):
            a(f"v_mul_f32 v{XS_[2*n]}, v{10+4*it[0]}, v{Er[it]}")
            a(f"v_mul_f32 v{Er[it]}, v{11+4*it[0]}, v{Er[it]}")
        for n, it in enumerate(cols):
            a(f"v_mul_f32 v{XS_[2*n+1]}, v{Er[it]}, v{Sr[it]}")
            a(f"v_mul_f32 v{Er[it]}, v{Er[it]}, v{Cr[it]}")
        for n, it in enumerate(cols):
            a(f"v_fma_f32 v{Cr[it]}, v{XS_[2*n]}, v{Cr[it]}, -v{XS_[2*n+1]}")
            a(f"v_fma_f32 v{Sr[it]}, -v{XS_[2*n]}, v{Sr[it]}, -v{Er[it]}")
        def HL(it):
            m = 2 * bt + it[0]
            return (48 + 4 * it[1] + m, 60 + 4 * it[1] + m) if it[1] < 3 else (72 + m, 76 + m)
        for it in items: a(f"v_perm_b32 v{HL(it)[0]}, v{Sr[it]}, v{Cr[it]}, v7")
        for it in items: a(f"v_and_b32 v{Er[it]}, 0xffff0000, v{Cr[it]}")
        for it in items: a(f"v_sub_f32 v{Cr[it]}, v{Cr[it]}, v{Er[it]}")
        for it in items: a(f"v_and_b32 v{Er[it]}, 0xffff0000, v{Sr[it]}")
        for it in items: a(f"v_sub_f32 v{Sr[it]}, v{Sr[it]}, v{Er[it]}")
        for it in items: a(f"v_cvt_pk_bf16_f32 v{HL(it)[1]}, v{Cr[it]}, v{Sr[it]}")
    st()
    if KG_TAB:
        a("""v_lshlrev_b32 v16, 4, v0
global_load_dwordx4 v[8:11], v16, s[58:59] offset:256""")
    for T in range(3):
        D = 32 + 4 * T
        a(f"v_mfma_f32_16x16x32_bf16 v[{D}:{D+3}], v[{60+4*T}:{63+4*T}], v[72:75], 0")
        a(f"v_mfma_f32_16x16x32_bf16 v[{D}:{D+3}], v[{48+4*T}:{51+4*T}], v[76:79], v[{D}:{D+3}]")
        a(f"v_mfma_f32_16x16x32_bf16 v[{D}:{D+3}], v[{48+4*T}:{51+4*T}], v[72:75], v[{D}:{D+3}]")
    a("""v_and_b32 v30, 63, v0
v_lshlrev_b32 v30, 4, v30
v_mul_u32_u24 v31, 3072, v3
v_add_u32 v31, v31, v30""")
    a("""v_and_b32 v7, 3, v0
v_lshrrev_b32 v5, 2, v0""")
    if not KG_TAB:
        a("v_lshl_add_u32 v4, v5, 3, v7")
        for it in range(2):
            a(f"v_add_u32 v{8+2*it}, {1024*it}, v4")
            a(f"v_add_u32 v{9+2*it}, {1024*it+4}, v4")
        for k in range(4): a(f"v_cvt_f32_u32 v{8+k}, v{8+k}")
        for k in range(0, 4, 2):
            a(f"v_cvt_pk_bf16_f32 v17, v{8+k}, v{9+k}")
            lo(a, 8 + k, 17); hi(a, 9 + k, 17)
        for k in range(4):
            a(f"v_cvt_u32_f32 v{8+k}, v{8+k}")
            a(f"v_lshlrev_b32 v{8+k}, 2, v{8+k}")
    a(f"""s_lshl_b32 s42, s{ch_sgpr}, {11+NP}
s_add_u32 s42, s42, {KW}
v_lshlrev_b32 v4, 10, v7
v_lshl_add_u32 v4, v5, 2, v4""")
    for T in range(3):
        a(f"ds_write_b128 v31, v[{32+4*T}:{35+4*T}] offset:{KPART + 1024*T}")
    st()
    _LBL += 1
    L = f"L_kg{_LBL}"
    if swbar is None:
        a("""s_waitcnt lgkmcnt(0)
s_barrier""")
    else: sw_barrier(a, swbar, 8, 64, 65, 58, f"{L}_sb1")
    st()
    a(f"""s_cmp_ge_u32 s56, 3
s_cbranch_scc1 {L}_skip
s_lshl_b32 s57, s56, 10
v_add_u32 v30, s57, v30""")
    for w in range(8):
        a(f"ds_read_b128 v[{32+4*w}:{35+4*w}], v30 offset:{KPART + 3072*w}")
    a("v_lshlrev_b32 v65, 5, v1")
    a("s_waitcnt lgkmcnt(0)")
    for r in range(4):
        a(f"""v_add_f32 v{32+r}, v{32+r}, v{36+r}
v_add_f32 v{40+r}, v{40+r}, v{44+r}
v_add_f32 v{48+r}, v{48+r}, v{52+r}
v_add_f32 v{56+r}, v{56+r}, v{60+r}
v_add_f32 v{32+r}, v{32+r}, v{40+r}
v_add_f32 v{48+r}, v{48+r}, v{56+r}
v_add_f32 v{32+r}, v{32+r}, v{48+r}""")
    a(f"""s_cmp_eq_u32 s56, 1
s_cbranch_scc1 {L}_t1
s_cmp_eq_u32 s56, 2
s_cbranch_scc1 {L}_t2
v_lshrrev_b32 v64, 1, v2
v_lshlrev_b32 v64, 9, v64
v_and_b32 v66, 1, v2
v_lshl_add_u32 v64, v66, 4, v64
v_add_u32 v64, v65, v64
ds_write_b128 v64, v[32:35] offset:{KTAB0}
s_branch {L}_skip
{L}_t1:
v_lshlrev_b32 v64, 9, v2
v_add_u32 v64, 1024, v64
v_lshlrev_b32 v66, 10, v2
v_cmp_gt_u32 vcc, 2, v2
v_cndmask_b32 v64, v66, v64, vcc
v_add_u32 v64, v65, v64
ds_write_b32 v64, v32 offset:{KTAB0}
v_mov_b32 v67, 16
v_cndmask_b32 v66, v67, 8, vcc
v_add_u32 v66, v64, v66
ds_write_b32 v66, v33 offset:{KTAB0}
v_mov_b32 v67, 512
v_cndmask_b32 v66, v67, 16, vcc
v_add_u32 v66, v64, v66
ds_write_b32 v66, v34 offset:{KTAB0}
v_mov_b32 v67, 528
v_cndmask_b32 v66, v67, 24, vcc
v_add_u32 v66, v64, v66
ds_write_b32 v66, v35 offset:{KTAB0}
s_branch {L}_skip
{L}_t2:
v_lshlrev_b32 v64, 11, v2
v_add_u32 v64, v65, v64
v_cmp_gt_u32 vcc, 3, v2
s_and_saveexec_b64 s[40:41], vcc
ds_write_b32 v64, v32 offset:{KTAB0+4096}
s_mov_b64 exec, s[40:41]
v_cmp_gt_u32 vcc, 2, v2
s_and_saveexec_b64 s[40:41], vcc
ds_write_b32 v64, v33 offset:{KTAB0+4608}
ds_write_b32 v64, v34 offset:{KTAB0+5120}
ds_write_b32 v64, v35 offset:{KTAB0+5632}
s_mov_b64 exec, s[40:41]
{L}_skip:""")
    if swbar is None:
        a("""s_waitcnt lgkmcnt(0)
s_barrier""")
    else: sw_barrier(a, swbar + 4, 8, 64, 65, 58, f"{L}_sb2")
    st()
    if KG_TAB: a("s_waitcnt vmcnt(0)")
    for k in range(4):
        a(f"ds_read_b32 v{20+k}, v{8+k} offset:{KTAB0}")
    a("s_waitcnt lgkmcnt(0)")
    for it in range(2):
        a(f"v_cvt_pk_bf16_f32 v{16+it}, v{20+2*it}, v{21+2*it}")
        a(f"buffer_store_dword v{16+it}, v4, s[32:35], s42 offen offset:{512*it}")
        if NP == 2:
            lo(a, 24, 16 + it); hi(a, 25, 16 + it)
            a(f"v_sub_f32 v24, v{20+2*it}, v24")
            a(f"v_sub_f32 v25, v{21+2*it}, v25")
            a(f"v_cvt_pk_bf16_f32 v{18+it}, v24, v25")
    if NP == 2:
        a("s_add_u32 s42, s42, 4096")
        for it in range(2):
            a(f"buffer_store_dword v{18+it}, v4, s[32:35], s42 offen offset:{512*it}")
    st.finish(32)
    return 80

def k_front(NP, nk=256, ch0=256, kfirst=False):
    name = "front_kernel"
    a = Asm()
    E = f"L_{name}"
    if kfirst and nk:
        a(f"""s_add_u32 s60, s2, 256
s_sub_u32 s61, s2, {nk}
s_cmp_lt_u32 s2, {nk}
s_cselect_b32 s61, s60, s61
s_cmp_lt_u32 s2, {nk+256}
s_cselect_b32 s2, s61, s2""")
    a(f"""s_cmp_ge_u32 s2, 256
s_cbranch_scc1 {E}_kgen
s_setprio 3
s_load_dwordx2 s[10:11], s[0:1], 120""")
    st = Stamps(a, 2)
    nv1 = conv_body(a, "A", 1, st, E, False)
    a(f"""s_endpgm
{E}_kgen:
s_cmp_ge_u32 s2, {256+nk}
s_cbranch_scc1 {E}_end
s_add_u32 s55, s2, {ch0-256}""")
    st2 = Stamps(a, 1)
    nv2 = kgen_body(a, NP, st2, 55)
    a(f"""{E}_end:
s_endpgm""")
    return kernel_text(name, a.text(), max(nv1, nv2), SG(64))

def SLDS(): return PCONV_LDS(1) + KGEN_LDS + 64
def k_convA_kgen(NP, ch0):
    name = "convA_kernel"
    a = Asm()
    E = f"L_{name}"
    cnt = PCONV_LDS(1) + KGEN_LDS
    a(f"""s_cmp_ge_u32 s2, 256
s_cbranch_scc1 {E}_end
v_mov_b32 v1, {cnt}
v_mov_b32 v2, 0
v_mov_b32 v3, 0
v_mov_b32 v4, 0
v_mov_b32 v5, 0
v_cmp_eq_u32 vcc, 0, v0
s_and_saveexec_b64 s[4:5], vcc
ds_write_b128 v1, v[2:5]
s_mov_b64 exec, s[4:5]
v_lshrrev_b32 v1, 9, v0
s_nop 0
v_readfirstlane_b32 s6, v1
s_waitcnt lgkmcnt(0)
s_barrier
s_cmp_eq_u32 s6, 1
s_cbranch_scc1 {E}_kgen
s_setprio 3
s_load_dwordx2 s[10:11], s[0:1], 120""")
    st = Stamps(a, 2)
    nv1 = conv_body_p(a, "A", 1, st, E, sbuf=True, swbar=cnt, cbase=KGEN_LDS)
    a(f"""s_endpgm
{E}_kgen:
v_and_b32 v0, 511, v0
s_add_u32 s55, s2, {ch0}""")
    st2 = Stamps(a, 1)
    nv2 = kgen_body(a, NP, st2, 55, lbase=0, swbar=cnt + 8)
    a(f"""{E}_end:
s_endpgm""")
    assert max(nv1, nv2) <= 128, (nv1, nv2)
    return kernel_text(name, a.text(), max(nv1, nv2), SG(64))

def ktab_text():
    import struct, numpy as np
    out = [".p2align 8", "L_ktab:"]
    f2u = lambda x: struct.unpack("<I", struct.pack("<f", float(x)))[0]
    for i in range(16):
        p0 = ((i >> 3) << 7) | (i & 7)
        p1 = 256 + ((i >> 2) << 7) + ((i & 3) << 1) if i < 8 else 512 + (((i >> 1) & 3) << 7) + ((i & 1) << 2)
        p2 = min(1024 + 128 * i, 2048)
        out.append(".long " + ", ".join(hex(f2u(x)) for x in (p0, p1, p2, 8 * i)))
    def rne(l):
        u = f2u(l); u = (u + 0x7FFF + ((u >> 16) & 1)) & 0xFFFF0000
        return int(struct.unpack("<f", struct.pack("<I", u))[0])
    for t in range(512):
        f, n2 = t & 3, t >> 2
        ls = [8 * n2 + f, 8 * n2 + f + 4, 8 * n2 + f + 1024, 8 * n2 + f + 1028]
        out.append(".long " + ", ".join(str(4 * rne(l)) for l in ls))
    return "\n".join(out)
```

```python
import sys
import kern
from asmlib import *
def build(path, NP=2, merged=True, diag=False, dbufB=True, nk1=256, kf1=False, kf2=False, nk3=0, optp=True, kvprio=True, stmod='', pf=0, dpf=False, tlb=False, fx1=False, pfd=False, pfk=False, optS=False, pflate=False, wfirst=False, ktab=False):
    kern.DIAG = diag
    import kern2 as k2
    k2.ROW_OUT_T2 = optp
    k2.KV_T2 = True
    k2.KV_PRIO = kvprio
    k2.CODE_PREFETCH = pf
    k2.DATA_PREFETCH = dpf
    k2.TLB_WARM = tlb
    k2.FUSE_X1 = fx1
    k2.PF_D = pfd; k2.PF_K = pfk
    k2.PF_LATE = pflate
    k2.KV_WFIRST = wfirst
    k2.KG_TAB = ktab
    hdr = [l.rstrip("\n") for l in open("header.txt") if "Override launch" not in l and "grid=ceil" not in l]
    FL = max(k2.CONV_LDS(1), k2.KGEN_LDS)
    BL = k2.PCONV_LDS(NP) if optp else k2.CONV_LDS(NP)
    ks = [k2.k_kv(NP, nk1, kf1)]
    L = [("kv_kernel", 256 + nk1, 512, k2.KGEN_LDS if nk1 else 1024)]
    if optS:
        ks.append(k2.k_convA_kgen(NP, nk1)); L.append(("convA_kernel", 256, 1024, k2.SLDS()))
    elif nk1 + nk3 == 512:
        ks.append(k2.k_conv("A", 1, True, True)); L.append(("convA_kernel", 256, 512, k2.PCONV_LDS(1)))
    else:
      ks.append(k2.k_front(NP, 512 - nk1 - nk3, nk1, kf2)); L.append(("front_kernel", 256 + 512 - nk1 - nk3, 512, FL))
    ks += [(k2.k_stat1() if fx1 else k2.k_row("R1", NP, nk3, 512 - nk3)), k2.k_conv("B1", NP, dbufB, optp), k2.k_row("R2", NP), k2.k_conv("B2", NP, dbufB, optp)]
    L += [("row1_kernel", 256 + nk3, 512, k2.KGEN_LDS if nk3 else 1024), ("convB1_kernel", 256, 512, BL), ("row2_kernel", 256, 512, 1024), ("convB2_kernel", 256, 512, BL)]
    txt = file_text(hdr, L, ks)
    if ktab:
        txt = txt.replace("L_code_end:\n    s_endpgm\n", "    s_endpgm\n" + k2.ktab_text() + "\nL_code_end:\n    s_endpgm\n")
    if stmod:
        import re
        txt = re.sub(r"(buffer_store_dword\S* [^\n]*)", lambda m: m.group(1) + " " + stmod, txt)
    open(path, "w").write(txt)
if __name__ == "__main__":
    build("v13b.s", NP=1, kf1=True, nk1=512, pf=1, dpf=True, pflate=True, wfirst=True, kvprio=False)
    build("v13c.s", NP=1, kf1=True, nk1=512, pf=1, dpf=True, pflate=False, wfirst=True, kvprio=False)
```

```python
from asmlib import *
import kern
from kern import srd, lo, hi, xcd_remap, Stamps, LdsQ, exp_acc, MB2, WSBYTES

KVT, YA, X1, X2, X3, ST1, ST3, KW = 0x0, 0x200000, 0x400000, 0x600000, 0x800000, 0xA00000, 0xA10000, 0xC00000
ROW_OUT_T2 = True
_LBL = 0
KV_T2 = False
QH, X0T = 0x1400000, 0x1600000
FUSE_X1 = False
def SG(n): return 102 if kern.DIAG else max(n, 72)

KV_PRIO = True
CODE_PREFETCH = 0
KG_TAB = False
KV_WFIRST = False
KG_SMEM = False
PF_LATE = False
KG_FLUSH = False
PF_D = False
PF_K = False
TLB_WARM = False
DATA_PREFETCH = False
def k_kv(NP=1, nk=0, kfirst=False):
    a = Asm()
    if CODE_PREFETCH == 1:
        a(f"""s_cmp_ge_u32 s2, 8
s_cbranch_scc1 L_kv_nopf
s_getpc_b64 s[58:59]
L_pf_base:
v_lshlrev_b32 v1, 7, v0
v_cmp_gt_u32 vcc, L_code_end-L_pf_base-4, v1
s_and_saveexec_b64 s[60:61], vcc
s_cbranch_execz L_kv_pfdone
global_load_dword v40, v1, s[58:59]
L_kv_pfdone:
s_mov_b64 exec, s[60:61]""")
        if TLB_WARM:
            a("""s_load_dwordx4 s[4:7], s[0:1], 96
s_load_dwordx2 s[8:9], s[0:1], 120
s_load_dwordx2 s[10:11], s[0:1], 40
v_lshlrev_b32 v1, 15, v0
v_lshlrev_b32 v2, 12, v0
v_mov_b32 v3, 0
s_waitcnt lgkmcnt(0)
global_load_dword v41, v1, s[8:9]
global_load_dword v42, v2, s[6:7]
global_load_dword v43, v3, s[4:5]
global_load_dword v44, v3, s[10:11]""")
        a("L_kv_nopf:")
    if kfirst and nk:
        a(f"""s_add_u32 s60, s2, 256
s_sub_u32 s61, s2, {nk}
s_cmp_lt_u32 s2, {nk}
s_cselect_b32 s61, s60, s61
s_cmp_lt_u32 s2, {nk+256}
s_cselect_b32 s2, s61, s2""")
    a("""s_cmp_ge_u32 s2, 256
s_cbranch_scc1 L_kv_kgen
""" + ("s_setprio 3" if KV_PRIO else "") + """
s_load_dwordx4 s[4:7], s[0:1], 8
s_load_dwordx2 s[8:9], s[0:1], 24
s_load_dwordx2 s[10:11], s[0:1], 120
s_load_dwordx2 s[32:33], s[0:1], 0
s_load_dwordx2 s[34:35], s[0:1], 32
s_load_dwordx2 s[50:51], s[0:1], 40
s_load_dwordx2 s[52:53], s[0:1], 96""")
    st = Stamps(a, 0); st()
    xcd_remap(a, 3, 12)
    a("""v_and_b32 v1, 255, v0
v_lshrrev_b32 v2, 8, v0
s_lshl_b32 s13, s3, 3
v_lshl_add_u32 v3, v2, 2, s13
v_lshlrev_b32 v4, 10, v3
v_lshl_add_u32 v4, v1, 2, v4
v_subrev_u32 v5, 3072, v4
v_subrev_u32 v6, 2048, v4
v_subrev_u32 v7, 1024, v4
v_lshlrev_b32 v8, 4, v1
v_lshrrev_b32 v9, 2, v1
v_lshlrev_b32 v9, 15, v9
v_lshl_add_u32 v9, v3, 4, v9
v_and_b32 v21, 3, v1
v_lshl_add_u32 v9, v21, 2, v9
s_waitcnt lgkmcnt(0)""")
    srd(a, 16, 4, MB2); srd(a, 20, 6, MB2); srd(a, 24, 8, 4096); srd(a, 28, 10, WSBYTES)
    a("buffer_load_dwordx4 v[24:27], v8, s[24:27], 0 offen")
    if KV_WFIRST:
        a("s_waitcnt vmcnt(0)")
        for ch in range(2):
            lo(a, 28 + 4 * ch + 0, 24 + 2 * ch); hi(a, 28 + 4 * ch + 1, 24 + 2 * ch)
            lo(a, 28 + 4 * ch + 2, 25 + 2 * ch); hi(a, 28 + 4 * ch + 3, 25 + 2 * ch)
    a("""buffer_load_dword v10, v5, s[16:19], 0 offen
buffer_load_dword v11, v6, s[16:19], 0 offen
buffer_load_dword v12, v7, s[16:19], 0 offen
buffer_load_dword v13, v4, s[16:19], 0 offen
buffer_load_dword v14, v4, s[16:19], 0 offen offset:1024
buffer_load_dword v15, v4, s[16:19], 0 offen offset:2048
buffer_load_dword v16, v4, s[16:19], 0 offen offset:3072
buffer_load_dword v17, v4, s[20:23], 0 offen
buffer_load_dword v18, v4, s[20:23], 0 offen offset:1024
buffer_load_dword v19, v4, s[20:23], 0 offen offset:2048
buffer_load_dword v20, v4, s[20:23], 0 offen offset:3072""")
    npf = 0
    if FUSE_X1:
        srd(a, 36, 32, MB2); srd(a, 40, 34, MB2)
        for r in range(4):
            a(f"buffer_load_dword v{64+r}, v4, s[36:39], 0 offen offset:{1024*r}")
        a("""s_lshl_b32 s44, s3, 13
v_lshrrev_b32 v22, 6, v0
v_and_b32 v23, 7, v0
v_lshl_add_u32 v22, v22, 3, v23
v_lshlrev_b32 v22, 7, v22
s_mov_b64 exec, 0xff
buffer_load_dword v68, v22, s[40:43], s44 offen
s_mov_b64 exec, -1
v_and_b32 v75, 7, v0
v_add_u32 v75, s13, v75
v_lshlrev_b32 v75, 10, v75
v_lshrrev_b32 v76, 3, v0
v_lshl_add_u32 v76, v76, 4, v75
buffer_load_dwordx4 v[70:73], v76, s[36:39], 0 offen
buffer_load_dword v74, v75, s[36:39], 0 offen""")
        npf = 7
    elif DATA_PREFETCH and not PF_LATE:
        srd(a, 36, 32, MB2); srd(a, 40, 34, MB2)
        a("""s_lshl_b32 s44, s3, 13
v_lshrrev_b32 v22, 6, v0
v_and_b32 v23, 7, v0
v_lshl_add_u32 v22, v22, 3, v23
v_lshlrev_b32 v22, 7, v22
s_mov_b64 exec, 0xff
buffer_load_dword v64, v22, s[40:43], s44 offen
buffer_load_dword v65, v22, s[36:39], s44 offen
s_mov_b64 exec, -1""")
        npf = 2
        if PF_D:
            a("""s_lshl_b32 s45, s3, 2
s_add_u32 s50, s50, s45
s_addc_u32 s51, s51, 0
s_add_u32 s52, s52, s45
s_addc_u32 s53, s53, 0
s_load_dword s54, s[50:51], 0
s_load_dword s55, s[52:53], 0""")
    if not KV_WFIRST:
        a(f"s_waitcnt vmcnt({11+npf})")
        for ch in range(2):
            lo(a, 28 + 4 * ch + 0, 24 + 2 * ch); hi(a, 28 + 4 * ch + 1, 24 + 2 * ch)
            lo(a, 28 + 4 * ch + 2, 25 + 2 * ch); hi(a, 28 + 4 * ch + 3, 25 + 2 * ch)
    a(f"s_waitcnt vmcnt({4+npf})")
    for i in range(7):
        lo(a, 36 + i, 10 + i); hi(a, 44 + i, 10 + i)
    a(f"s_waitcnt vmcnt({npf})")
    if CODE_PREFETCH == 2:
        a("""s_cmp_ge_u32 s2, 8
s_cbranch_scc1 L_kv_nopf2
s_getpc_b64 s[58:59]
L_pf_base:
s_sub_u32 s58, s58, L_pf_base-kv_kernel
s_subb_u32 s59, s59, 0
v_lshlrev_b32 v22, 7, v0
v_min_u32 v22, L_code_end-kv_kernel-4, v22
global_load_dword v69, v22, s[58:59]""")
        if TLB_WARM:
            a("""s_load_dwordx2 s[48:49], s[0:1], 104
v_lshlrev_b32 v22, 15, v0
v_lshlrev_b32 v23, 12, v0
s_waitcnt lgkmcnt(0)
global_load_dword v67, v22, s[10:11]
global_load_dword v68, v23, s[48:49]""")
        a("L_kv_nopf2:")
    if DATA_PREFETCH and PF_LATE and not FUSE_X1:
        srd(a, 36, 32, MB2); srd(a, 40, 34, MB2)
        a("""s_lshl_b32 s44, s3, 13
v_lshrrev_b32 v22, 6, v0
v_and_b32 v23, 7, v0
v_lshl_add_u32 v22, v22, 3, v23
v_lshlrev_b32 v22, 7, v22
s_mov_b64 exec, 0xff
buffer_load_dword v64, v22, s[40:43], s44 offen
buffer_load_dword v65, v22, s[36:39], s44 offen
s_mov_b64 exec, -1""")
    st()
    for r in range(4):
        for t in range(4):
            w = 3 - t
            a(f"v_mul_f32 v54, v{36+r+t}, v{28+w}")
            a(f"v_mul_f32 v55, v{44+r+t}, v{32+w}")
            a("v_cvt_pk_bf16_f32 v56, v54, v55")
            if t == 0:
                lo(a, 52, 56); hi(a, 53, 56)
            else:
                lo(a, 54, 56); hi(a, 55, 56)
                a("v_add_f32 v52, v52, v54")
                a("v_add_f32 v53, v53, v55")
                a("v_cvt_pk_bf16_f32 v56, v52, v53")
                lo(a, 52, 56); hi(a, 53, 56)
        lo(a, 54, 17 + r); hi(a, 55, 17 + r)
        a("v_mul_f32 v52, v52, v54")
        a("v_mul_f32 v53, v53, v55")
        a(f"v_cvt_pk_bf16_f32 v{60+r}, v52, v53")
        if not KV_T2: a(f"buffer_store_dword v{60+r}, v9, s[28:31], 0 offen offset:{16*r}")
    if KV_T2:
        a("""v_lshlrev_b32 v9, 13, v1
v_lshl_add_u32 v9, v3, 2, v9
buffer_store_dwordx4 v[60:63], v9, s[28:31], 0 offen""")
        if FUSE_X1:
            a(f"""s_mov_b32 s45, {X0T}
s_waitcnt vmcnt(4)
buffer_store_dwordx4 v[64:67], v9, s[28:31], s45 offen
s_waitcnt vmcnt(2)""")
            ln0_compute(a)
    st.finish(28)
    a(f"""s_endpgm
L_kv_kgen:
s_cmp_ge_u32 s2, {256+nk}
s_cbranch_scc1 L_kv_ln0""")
    nv = 72
    if nk:
        a("s_sub_u32 s55, s2, 256")
        st2 = Stamps(a, 0)
        nv = kgen_body(a, NP, st2, 55)
    a("""s_endpgm
L_kv_ln0:""")
    a("""L_kv_end:
s_endpgm""")
    return kernel_text("kv_kernel", a.text(), max(nv, 80), SG(64))

XLS = 4160
WL0 = 8 * XLS
WAS = 1152
def EX0(NP): return WL0 + 8 * NP * WAS
def CONV_LDS(NP): return EX0(NP) + 32768
SSETS = [[7, 4, 3, 0], [6, 5, 2, 1]]

def conv_body(a, kind, NP, st, E, dbuf):
    ex0 = EX0(NP)
    if kind == "A":
        a("s_load_dwordx4 s[4:7], s[0:1], 32")
    else:
        a("s_load_dwordx4 s[4:7], s[0:1], 96")
    st()
    xcd_remap(a, 3, 12)
    a("""v_lshrrev_b32 v1, 6, v0
v_and_b32 v2, 63, v0
v_lshlrev_b32 v3, 6, v0
v_lshlrev_b32 v14, 4, v0
v_readfirstlane_b32 s14, v1
s_lshr_b32 s13, s3, 2
s_lshl_b32 s13, s13, 15
s_and_b32 s12, s3, 3
s_lshl_b32 s12, s12, 2
s_add_u32 s13, s13, s12
s_lshl_b32 s15, s3, 2
s_waitcnt lgkmcnt(0)""")
    srd(a, 28, 10, WSBYTES)
    src = {"A": KVT, "B1": X1, "B2": X3}[kind]
    a(f"""s_lshl_b32 s13, s3, 13
s_add_u32 s32, s13, {src}
buffer_load_dwordx4 v[4:7], v14, s[28:31], s32 offen""")
    if kind == "A":
        srd(a, 16, 4, MB2)
        a("s_lshl_b32 s35, s3, 13")
        a("buffer_load_dwordx4 v[48:51], v14, s[16:19], s35 offen")
        if FUSE_X1:
            a(f"s_add_u32 s34, s13, {QH}")
            a("buffer_load_dwordx4 v[8:11], v14, s[28:31], s34 offen")
            a(f"s_add_u32 s34, s13, {X0T}")
            a("buffer_load_dwordx4 v[100:103], v14, s[28:31], s34 offen")
        a("s_add_u32 s6, s6, s15")
        a("s_addc_u32 s7, s7, 0")
        a("s_load_dword s33, s[6:7], 0")
    else:
        stt = {"B1": ST1, "B2": ST3}[kind]
        a(f"s_mov_b32 s34, {stt}")
        a("buffer_load_dwordx4 v[48:51], v14, s[28:31], s34 offen")
        a(f"s_lshl_b32 s35, s3, {12 + NP}")
        a(f"s_add_u32 s35, s35, {KW}")
        if NP == 2:
            a("v_lshlrev_b32 v60, 5, v0")
            a("buffer_load_dwordx4 v[52:55], v60, s[28:31], s35 offen")
            a("buffer_load_dwordx4 v[56:59], v60, s[28:31], s35 offen offset:16")
        else:
            a("buffer_load_dwordx4 v[52:55], v14, s[28:31], s35 offen")
        a("s_add_u32 s4, s4, s15")
        a("s_addc_u32 s5, s5, 0")
        a("s_load_dword s33, s[4:5], 0")
        if kind == "B2":
            srd(a, 20, 6, MB2)
    na = 8 * NP
    a(f"""v_mov_b32 v64, 0
v_mov_b32 v65, 0
v_mov_b32 v66, 0
v_mov_b32 v67, 0
v_lshrrev_b32 v61, 3, v0
v_mul_u32_u24 v61, {WAS}, v61
v_and_b32 v62, 7, v0
v_lshl_add_u32 v61, v62, 4, v61
v_cmp_gt_u32 vcc, {na*8}, v0
s_and_saveexec_b64 s[36:37], vcc
ds_write_b128 v61, v[64:67] offset:{WL0}
s_mov_b64 exec, s[36:37]
v_lshrrev_b32 v61, 1, v0
v_mul_u32_u24 v61, {XLS}, v61
v_and_b32 v62, 1, v0
v_lshl_add_u32 v61, v62, 4, v61
v_cmp_gt_u32 vcc, 16, v0
s_and_saveexec_b64 s[36:37], vcc
ds_write_b128 v61, v[64:67]
s_mov_b64 exec, s[36:37]
v_cmp_eq_u32 vcc, 0, v0
s_and_saveexec_b64 s[36:37], vcc""")
    for ch in range(2):
        b = ch * 4 * XLS
        a(f"ds_write_b16 v64, v64 offset:{b + 1*XLS + 32}")
        a(f"ds_write_b32 v64, v64 offset:{b + 2*XLS + 32}")
        a(f"ds_write_b32 v64, v64 offset:{b + 3*XLS + 32}")
        a(f"ds_write_b16 v64, v64 offset:{b + 3*XLS + 36}")
    a("""s_mov_b64 exec, s[36:37]
s_mov_b32 s38, 0x05040100
s_mov_b32 s39, 0x07060302""")
    a(f"""s_lshr_b32 s40, s14, 2
s_bfe_u32 s41, s14, 0x10001
s_lshl_b32 s41, s41, 1
s_lshl_b32 s42, s40, 2
s_add_u32 s42, s42, s41
s_mul_i32 s42, s42, {XLS}
s_add_u32 s42, s42, 32
s_mul_i32 s43, s40, {NP*4}
s_add_u32 s43, s43, s41
s_mul_i32 s43, s43, {WAS}
s_add_u32 s43, s43, {WL0 + 56}
v_lshrrev_b32 v70, 4, v2
v_and_b32 v71, 3, v2
v_bfe_u32 v72, v2, 2, 2
v_sub_u32 v71, v71, v72
v_lshlrev_b32 v71, 3, v71
v_lshl_add_u32 v71, v70, 6, v71
v_add_u32 v12, s42, v71
v_and_b32 v71, 15, v2
v_lshlrev_b32 v71, 3, v71
v_lshlrev_b32 v72, 4, v70
v_sub_u32 v71, v71, v72
v_add_u32 v13, s43, v71""")
    VXA, VWB, ACC = 12, 13, 16
    for i in range(16): a(f"v_mov_b32 v{ACC+i}, 0")
    if kind == "A":
        a(f"""v_lshrrev_b32 v61, 8, v0
v_mul_u32_u24 v61, {4*WAS}, v61
v_and_b32 v62, 255, v0
v_lshl_add_u32 v61, v62, 2, v61
s_waitcnt vmcnt({2 if FUSE_X1 else 0})""")
        st()
        XS = 4
        a(f"""v_perm_b32 v64, v50, v48, s38
v_perm_b32 v65, v50, v48, s39
v_perm_b32 v66, v51, v49, s38
v_perm_b32 v67, v51, v49, s39
ds_write_b32 v61, v64 offset:{WL0+128}
ds_write_b32 v61, v65 offset:{WL0+128+WAS}
ds_write_b32 v61, v66 offset:{WL0+128+2*WAS}
ds_write_b32 v61, v67 offset:{WL0+128+3*WAS}""")
    else:
        if NP == 2:
            a(f"""v_lshrrev_b32 v61, 5, v0
v_mul_u32_u24 v61, {WAS}, v61
v_and_b32 v62, 31, v0
v_lshl_add_u32 v61, v62, 5, v61
s_waitcnt vmcnt(2)""")
        else:
            a(f"""v_mul_u32_u24 v61, {WAS}, v1
v_lshl_add_u32 v61, v2, 4, v61
s_waitcnt vmcnt(1)""")
        st()
        for r in range(4):
            lo(a, 72, 48 + r); hi(a, 73, 48 + r)
            a("v_rcp_f32 v74, v73")
            lo(a, 75, 4 + r); hi(a, 76, 4 + r)
            a("v_sub_f32 v75, v75, v72")
            a("v_sub_f32 v76, v76, v72")
            a("v_cvt_pk_bf16_f32 v77, v75, v76")
            lo(a, 75, 77); hi(a, 76, 77)
            for x in (75, 76):
                a(f"v_mul_f32 v78, v{x}, v74")
                a(f"v_fma_f32 v79, -v78, v73, v{x}")
                a(f"v_fma_f32 v{x}, v79, v74, v78")
            a(f"v_cvt_pk_bf16_f32 v{8+r}, v75, v76")
        XS = 8
    a("v_lshlrev_b32 v62, 3, v0")
    for ch in range(2):
        sel = "s38" if ch == 0 else "s39"
        b = ch * 4 * XLS + 32
        e0, e1, o1 = 64 + 4 * ch, 65 + 4 * ch, 66 + 4 * ch
        a(f"""v_perm_b32 v{e0}, v{XS+1}, v{XS}, {sel}
v_perm_b32 v{e1}, v{XS+3}, v{XS+2}, {sel}
v_perm_b32 v{o1}, v{XS+2}, v{XS+1}, {sel}
ds_write_b64 v62, v[{e0}:{e1}] offset:{b}
ds_write_b16 v62, v{e0} offset:{b + XLS + 2}
ds_write_b32 v62, v{o1} offset:{b + XLS + 4}
ds_write_b16_d16_hi v62, v{e1} offset:{b + XLS + 8}
ds_write_b32 v62, v{e0} offset:{b + 2*XLS + 4}
ds_write_b32 v62, v{e1} offset:{b + 2*XLS + 8}
ds_write_b16 v62, v{e0} offset:{b + 3*XLS + 6}
ds_write_b32 v62, v{o1} offset:{b + 3*XLS + 8}
ds_write_b16_d16_hi v62, v{e1} offset:{b + 3*XLS + 12}""")
    if kind != "A":
        a(f"""s_waitcnt vmcnt(0)
ds_write_b128 v61, v[52:55] offset:{WL0+128}""")
        if NP == 2:
            a(f"ds_write_b128 v61, v[56:59] offset:{WL0+128+16}")
    a("""s_waitcnt lgkmcnt(0)
s_barrier""")
    st()
    a(f"""s_bitcmp1_b32 s14, 0
s_cbranch_scc1 {E}_S1""")
    F0 = 32
    FSZ = 32 + 32 * NP
    for S in range(2):
        if S == 1: a(f"{E}_S1:")
        q = LdsQ(a)
        tiles = SSETS[S]
        pairs = [(aa, c - aa, ti) for aa in range(8) for ti, c in enumerate(tiles) if c >= aa]
        steps = [(dl, rho) for dl in range(2) for rho in range(2)]
        def regA(si, aa): return F0 + (FSZ * (si & 1) if dbuf else 0) + 4 * aa
        def regB(si, e, p): return F0 + (FSZ * (si & 1) if dbuf else 0) + 32 + 32 * p + 4 * e
        def rdA(si, aa):
            dl, rho = steps[si]
            return [(f"ds_read_b64_tr_b16 v[{regA(si,aa)+2*hh}:{regA(si,aa)+2*hh+1}], v{VXA} offset:{512*aa + 256*rho + 32*hh + dl*XLS}",
                     [regA(si, aa) + 2 * hh, regA(si, aa) + 2 * hh + 1]) for hh in range(2)]
        def rdB(si, e, p):
            dl, rho = steps[si]
            return [(f"ds_read_b64 v[{regB(si,e,p)+2*hh}:{regB(si,e,p)+2*hh+1}], v{VWB} offset:{128*e + 64*(1-rho) + 8*(1-hh) + (p*4+dl)*WAS}",
                     [regB(si, e, p) + 2 * hh, regB(si, e, p) + 2 * hh + 1]) for hh in range(2)]
        def order(si):
            return pairs
        def frag_first_use(ordr):
            seen, out = set(), []
            for (aa, e, ti) in ordr:
                for f in (("A", aa), ("B", e)):
                    if f not in seen: seen.add(f); out.append(f)
            return out
        def reads_for(si, f):
            if f[0] == "A": return rdA(si, f[1])
            r = []
            for p in range(NP): r += rdB(si, f[1], p)
            return r
        ordrs = [pairs]
        for si in range(3):
            if dbuf:
                ordrs.append(pairs); continue
            lu = {}
            for k, (aa, e, ti) in enumerate(ordrs[si]):
                lu[("A", aa)] = k; lu[("B", e)] = k
            ordrs.append(sorted(pairs, key=lambda p: max(lu[("A", p[0])], lu[("B", p[1])])))
        for f in frag_first_use(ordrs[0]):
            for t, d in reads_for(0, f): q.issue(t, d)
        for si in range(4):
            o = ordrs[si]
            pend = frag_first_use(ordrs[si + 1]) if si < 3 else []
            lastuse = {}
            for k, (aa, e, ti) in enumerate(o):
                lastuse[("A", aa)] = k; lastuse[("B", e)] = k
            for k, (aa, e, ti) in enumerate(o):
                for p in range(NP):
                    A = regA(si, aa); B = regB(si, e, p); D = ACC + 4 * ti
                    q.need(list(range(A, A + 4)) + list(range(B, B + 4)))
                    a(f"v_mfma_f32_16x16x32_bf16 v[{D}:{D+3}], v[{A}:{A+3}], v[{B}:{B+3}], v[{D}:{D+3}]")
                if dbuf:
                    if pend:
                        f = pend.pop(0)
                        for t, d in reads_for(si + 1, f): q.issue(t, d)
                else:
                    for f in [f for f in pend if lastuse[f] <= k]:
                        pend.remove(f)
                        for t, d in reads_for(si + 1, f): q.issue(t, d)
            for f in pend:
                for t, d in reads_for(si + 1, f): q.issue(t, d)
        a(f"""v_and_b32 v32, 15, v2
v_lshrrev_b32 v33, 4, v2
v_lshlrev_b32 v34, 2, v33
v_xor_b32 v32, v32, v34
v_lshl_add_u32 v32, v33, 4, v32
v_lshlrev_b32 v32, 4, v32
s_lshr_b32 s44, s14, 1
s_lshl_b32 s44, s44, 13
v_add_u32 v32, s44, v32""")
        for ti, c in enumerate(tiles):
            a(f"ds_write_b128 v32, v[{ACC+4*ti}:{ACC+4*ti+3}] offset:{ex0 + c*1024}")
        if S == 0: a(f"s_branch {E}_J")
    a(f"{E}_J:")
    a(f"""v_lshrrev_b32 v32, 2, v2
v_and_b32 v33, 3, v2
v_lshlrev_b32 v34, 2, v33
v_xor_b32 v32, v32, v34
v_lshl_add_u32 v32, v33, 4, v32
v_lshlrev_b32 v32, 4, v32
s_lshl_b32 s44, s14, 10
s_add_u32 s44, s44, {ex0}
v_add_u32 v32, s44, v32
s_lshl_b32 s46, s33, 16
s_and_b32 s47, s33, 0xffff0000
s_waitcnt lgkmcnt(0)""")
    st()
    a("s_barrier")
    st()
    for k in range(4):
        a(f"ds_read_b128 v[{36+4*k}:{39+4*k}], v32 offset:{k*8192}")
    a("s_waitcnt lgkmcnt(0)")
    for r in range(4):
        a(f"v_add_f32 v52, v{36+r}, v{40+r}")
        a(f"v_add_f32 v53, v{44+r}, v{48+r}")
        a("v_cvt_pk_bf16_f32 v60, v52, v53")
        lo(a, 61, 60); hi(a, 62, 60)
        lo(a, 63, XS + r); hi(a, 64, XS + r)
        a("v_mul_f32 v63, s46, v63")
        a("v_mul_f32 v64, s47, v64")
        a("v_cvt_pk_bf16_f32 v60, v63, v64")
        lo(a, 63, 60); hi(a, 64, 60)
        a("v_add_f32 v61, v61, v63")
        a("v_add_f32 v62, v62, v64")
        if kind == "A":
            a(f"v_cvt_pk_bf16_f32 v{68+r}, v61, v62")
            if FUSE_X1:
                if r == 0: a("s_waitcnt vmcnt(0)")
                lo(a, 61, 68 + r); hi(a, 62, 68 + r)
                lo(a, 63, 8 + r); hi(a, 64, 8 + r)
                a("v_mul_f32 v61, v61, v63")
                a("v_mul_f32 v62, v62, v64")
                a("v_cvt_pk_bf16_f32 v60, v61, v62")
                lo(a, 61, 60); hi(a, 62, 60)
                lo(a, 63, 100 + r); hi(a, 64, 100 + r)
                a("v_add_f32 v61, v61, v63")
                a("v_add_f32 v62, v62, v64")
                a(f"v_cvt_pk_bf16_f32 v{72+r}, v61, v62")
                if r == 3:
                    a(f"s_add_u32 s34, s13, {X1}")
                    a("buffer_store_dwordx4 v[72:75], v14, s[28:31], s34 offen")
        else:
            a("v_cvt_pk_bf16_f32 v60, v61, v62")
            lo(a, 61, 60); hi(a, 62, 60)
            lo(a, 63, 4 + r); hi(a, 64, 4 + r)
            a("v_add_f32 v61, v61, v63")
            a("v_add_f32 v62, v62, v64")
            a(f"v_cvt_pk_bf16_f32 v{68+r}, v61, v62")
        if kind in ("A", "B1"):
            if r == 3:
                dst = YA if kind == "A" else X2
                a("s_lshl_b32 s32, s3, 13")
                a(f"s_add_u32 s32, s32, {dst}")
                a("buffer_store_dwordx4 v[68:71], v14, s[28:31], s32 offen")
        else:
            if r == 0: a("v_lshlrev_b32 v59, 12, v0")
            a(f"buffer_store_dword v{68+r}, v59, s[20:23], s15 offen offset:{1024*r}")
    st()
    st.finish(28)
    return max(F0 + FSZ * (2 if dbuf else 1), 104)

PXLS = 4160
PWL0 = 2 * PXLS
def PCO(NP): return 8 * NP * WAS + 128 - (8 * NP * WAS) % 256
def PEX0(NP): return (PWL0 + PCO(NP) + 8 * NP * WAS + 16 + 255) // 256 * 256
PWSTR = 8192 + 16
def PCONV_LDS(NP): return PEX0(NP) + 8 * PWSTR

def sw_barrier(a, cnt_addr, target, vA, vB, sT, lbl):
    a(f"""s_waitcnt lgkmcnt(0)
v_mov_b32 v{vA}, {cnt_addr}
v_mov_b32 v{vB}, 1
s_mov_b64 exec, 1
ds_add_u32 v{vA}, v{vB}
s_mov_b64 exec, -1
{lbl}:
ds_read_b32 v{vB}, v{vA}
s_waitcnt lgkmcnt(0)
v_readfirstlane_b32 s{sT}, v{vB}
s_cmp_ge_u32 s{sT}, {target}
s_cbranch_scc1 {lbl}_done
s_sleep 1
s_branch {lbl}
{lbl}_done:""")

def conv_body_p(a, kind, NP, st, E, sbuf=False, swbar=None, cbase=0):
    ex0 = PEX0(NP) + cbase; CO = PCO(NP)
    PWL0 = globals()['PWL0'] + cbase
    F0 = 48
    FSZ = 32 + 32 * NP
    XR = F0 + (1 if sbuf else 2) * FSZ
    VW, VC, VP, VC2, VP2 = XR, XR + 1, XR + 2, XR + 3, XR + 4
    TD, XU = XR + (6 if sbuf else 8), XR + 16
    if kind == "A":
        a("s_load_dwordx4 s[4:7], s[0:1], 32")
    else:
        a("s_load_dwordx4 s[4:7], s[0:1], 96")
    st()
    xcd_remap(a, 3, 12)
    a("""v_lshrrev_b32 v1, 6, v0
v_and_b32 v2, 63, v0
v_lshlrev_b32 v14, 4, v0
v_readfirstlane_b32 s14, v1
s_lshl_b32 s13, s3, 13
s_lshl_b32 s15, s3, 2
s_waitcnt lgkmcnt(0)""")
    srd(a, 28, 10, WSBYTES)
    src = {"A": KVT, "B1": X1, "B2": X3}[kind]
    a(f"s_add_u32 s32, s13, {src}")
    a("buffer_load_dwordx4 v[4:7], v14, s[28:31], s32 offen")
    if kind == "A":
        srd(a, 16, 4, MB2)
        a("buffer_load_dwordx4 v[48:51], v14, s[16:19], s13 offen")
        if FUSE_X1:
            a(f"s_add_u32 s34, s13, {QH}")
            a("buffer_load_dwordx4 v[8:11], v14, s[28:31], s34 offen")
            a(f"s_add_u32 s34, s13, {X0T}")
            a(f"buffer_load_dwordx4 v[{XR+24}:{XR+27}], v14, s[28:31], s34 offen")
        a("s_add_u32 s6, s6, s15")
        a("s_addc_u32 s7, s7, 0")
        a("s_load_dword s33, s[6:7], 0")
    else:
        stt = {"B1": ST1, "B2": ST3}[kind]
        a(f"s_mov_b32 s34, {stt}")
        a("buffer_load_dwordx4 v[48:51], v14, s[28:31], s34 offen")
        a(f"s_lshl_b32 s35, s3, {12 + NP}")
        a(f"s_add_u32 s35, s35, {KW}")
        if NP == 2:
            a("v_lshlrev_b32 v60, 5, v0")
            a("buffer_load_dwordx4 v[52:55], v60, s[28:31], s35 offen")
            a("buffer_load_dwordx4 v[56:59], v60, s[28:31], s35 offen offset:16")
        else:
            a("buffer_load_dwordx4 v[52:55], v14, s[28:31], s35 offen")
        a("s_add_u32 s4, s4, s15")
        a("s_addc_u32 s5, s5, 0")
        a("s_load_dword s33, s[4:5], 0")
        if kind == "B2":
            srd(a, 20, 6, MB2)
    na = 8 * NP
    a(f"""v_mov_b32 v64, 0
v_mov_b32 v65, 0
v_mov_b32 v66, 0
v_mov_b32 v67, 0
v_lshrrev_b32 v61, 4, v0
v_mul_u32_u24 v61, {WAS}, v61
v_and_b32 v62, 15, v0
v_lshl_add_u32 v61, v62, 3, v61
v_cmp_gt_u32 vcc, {na*16}, v0
s_and_saveexec_b64 s[36:37], vcc
ds_write_b64 v61, v[64:65] offset:{PWL0}
ds_write_b64 v61, v[64:65] offset:{PWL0 + CO + 8}
s_mov_b64 exec, s[36:37]
v_lshrrev_b32 v61, 1, v0
v_mul_u32_u24 v61, {PXLS}, v61
v_and_b32 v62, 1, v0
v_lshl_add_u32 v61, v62, 4, v61
v_cmp_gt_u32 vcc, 4, v0
s_and_saveexec_b64 s[36:37], vcc
ds_write_b128 v61, v[64:67] offset:{cbase}
s_mov_b64 exec, s[36:37]
s_mov_b32 s38, 0x05040100
s_mov_b32 s39, 0x07060302""")
    a(f"""s_lshr_b32 s40, s14, 2
s_and_b32 s41, s14, 3
s_mul_i32 s42, s40, {PXLS}
s_add_u32 s42, s42, {32 + cbase}
s_mul_i32 s43, s40, {NP*4}
s_add_u32 s43, s43, s41
s_mul_i32 s43, s43, {WAS}
s_add_u32 s43, s43, {PWL0 + 56}
v_lshrrev_b32 v70, 4, v2
v_and_b32 v71, 3, v2
v_bfe_u32 v72, v2, 2, 2
v_sub_u32 v71, v71, v72
v_lshlrev_b32 v71, 3, v71
v_lshl_add_u32 v71, v70, 6, v71
v_add_u32 v12, s42, v71
v_and_b32 v71, 15, v2
v_lshlrev_b32 v71, 3, v71
v_lshlrev_b32 v72, 4, v70
v_sub_u32 v71, v71, v72
v_add_u32 v13, s43, v71
v_and_b32 v71, 1, v2
v_xor_b32 v71, 1, v71
v_mul_u32_u24 v71, {CO + 8}, v71
v_add_u32 v13, v13, v71""")
    VXA, VWB, ACC = 12, 13, 16
    for i in range(32): a(f"v_mov_b32 v{ACC+i}, 0")
    a(f"""v_and_b32 v70, 15, v2
v_lshrrev_b32 v71, 4, v2
v_lshlrev_b32 v72, 2, v71
v_xor_b32 v70, v70, v72
v_lshl_add_u32 v70, v71, 4, v70
v_lshlrev_b32 v70, 4, v70
s_mul_i32 s44, s14, {PWSTR}
s_add_u32 s44, s44, {ex0}
v_add_u32 v{VW}, s44, v70
v_mov_b32 v70, s44
s_mov_b64 exec, 1
ds_write_b128 v70, v[64:67] offset:8192
s_mov_b64 exec, -1
v_lshrrev_b32 v70, 2, v2
v_and_b32 v71, 3, v2
v_lshlrev_b32 v72, 2, v71
v_xor_b32 v70, v70, v72
v_lshl_add_u32 v70, v71, 4, v70
v_lshlrev_b32 v70, 4, v70
s_lshl_b32 s44, s14, 10
s_add_u32 s44, s44, {ex0}
v_add_u32 v{VC}, s44, v70
v_subrev_u32 v73, 1, v2
v_lshrrev_b32 v71, 2, v73
v_and_b32 v73, 3, v73
v_lshlrev_b32 v72, 2, v73
v_xor_b32 v71, v71, v72
v_lshl_add_u32 v71, v73, 4, v71
v_lshlrev_b32 v71, 4, v71
v_add_u32 v71, s44, v71
s_sub_u32 s45, s44, {1024 - 51*16}
s_cmp_eq_u32 s14, 0
s_cselect_b32 s45, {ex0 + 8192}, s45
v_mov_b32 v72, s45
v_cmp_eq_u32 vcc, 0, v2
v_cndmask_b32 v{VP}, v71, v72, vcc
v_add_u32 v{VC2}, {4*PWSTR}, v{VC}
v_add_u32 v{VP2}, {4*PWSTR}, v{VP}
v_lshlrev_b32 v62, 3, v0""")
    if kind == "A":
        a(f"""v_lshrrev_b32 v61, 8, v0
v_mul_u32_u24 v61, {4*WAS}, v61
v_and_b32 v63, 255, v0
v_lshl_add_u32 v61, v63, 2, v61
s_waitcnt vmcnt({3 if FUSE_X1 else 1})""")
        st()
        XS = 4
    else:
        if NP == 2:
            a(f"""v_lshrrev_b32 v61, 5, v0
v_mul_u32_u24 v61, {WAS}, v61
v_and_b32 v63, 31, v0
v_lshl_add_u32 v61, v63, 5, v61
s_waitcnt vmcnt(2)""")
        else:
            a(f"""v_mul_u32_u24 v61, {WAS}, v1
v_lshl_add_u32 v61, v2, 4, v61
s_waitcnt vmcnt(1)""")
        st()
        for r in range(4):
            T = 72 + 8 * r
            lo(a, T, 48 + r); hi(a, T + 1, 48 + r)
            a(f"v_rcp_f32 v{T+2}, v{T+1}")
            lo(a, XU + 2 * r, 4 + r); hi(a, XU + 2 * r + 1, 4 + r)
        for r in range(4):
            T = 72 + 8 * r
            a(f"v_sub_f32 v{T+3}, v{XU+2*r}, v{T}")
            a(f"v_sub_f32 v{T+4}, v{XU+2*r+1}, v{T}")
            a(f"v_cvt_pk_bf16_f32 v{T+5}, v{T+3}, v{T+4}")
            lo(a, T + 3, T + 5); hi(a, T + 4, T + 5)
            for x in (T + 3, T + 4):
                a(f"v_mul_f32 v{T+6}, v{x}, v{T+2}")
                a(f"v_fma_f32 v{T+7}, -v{T+6}, v{T+1}, v{x}")
                a(f"v_fma_f32 v{x}, v{T+7}, v{T+2}, v{T+6}")
            a(f"v_cvt_pk_bf16_f32 v{8+r}, v{T+3}, v{T+4}")
        XS = 8
    a(f"""v_perm_b32 v64, v{XS+1}, v{XS}, s38
v_perm_b32 v65, v{XS+3}, v{XS+2}, s38
v_perm_b32 v66, v{XS+1}, v{XS}, s39
v_perm_b32 v67, v{XS+3}, v{XS+2}, s39
ds_write_b64 v62, v[64:65] offset:{32 + cbase}
ds_write_b64 v62, v[66:67] offset:{PXLS+32+cbase}
s_waitcnt vmcnt({2 if (kind == "A" and FUSE_X1) else 0})""")
    if kind == "A":
        a("""v_perm_b32 v68, v50, v48, s38
v_perm_b32 v69, v50, v48, s39
v_perm_b32 v70, v51, v49, s38
v_perm_b32 v71, v51, v49, s39""")
        for f in range(4):
            a(f"ds_write_b32 v61, v{68+f} offset:{PWL0+128+f*WAS}")
            a(f"ds_write_b32 v61, v{68+f} offset:{PWL0+128+f*WAS+CO+8}")
    else:
        for h in range(NP):
            b = 52 + 4 * h
            a(f"ds_write_b128 v61, v[{b}:{b+3}] offset:{PWL0+128+16*h}")
            a(f"ds_write_b64 v61, v[{b}:{b+1}] offset:{PWL0+128+16*h+CO+8}")
            a(f"ds_write_b64 v61, v[{b+2}:{b+3}] offset:{PWL0+128+16*h+CO+16}")
    a("""s_waitcnt lgkmcnt(0)
s_lshl_b32 s46, s33, 16
s_and_b32 s47, s33, 0xffff0000""")
    if swbar is None: a("s_barrier")
    else: sw_barrier(a, swbar, 8, 64, 65, 48, f"{E}_sb1")
    st()
    FA = [F0, F0 + (0 if sbuf else FSZ)]
    FB = [F0 + 32, F0 + (0 if sbuf else FSZ) + 32]
    q = LdsQ(a)
    def rdA(rho, aa):
        return [(f"ds_read_b64_tr_b16 v[{FA[rho]+4*aa+2*hh}:{FA[rho]+4*aa+2*hh+1}], v{VXA} offset:{512*aa + 256*rho + 32*(1-hh)}",
                 [FA[rho] + 4 * aa + 2 * hh, FA[rho] + 4 * aa + 2 * hh + 1]) for hh in range(2)]
    def rdB(rho, e, p):
        d = FB[rho] + 32 * p + 4 * e
        return [(f"ds_read_b128 v[{d}:{d+3}], v{VWB} offset:{128*e + 64*(1-rho) + p*4*WAS}", list(range(d, d + 4)))]
    order = [(aa, c - aa, c) for c in range(8) for aa in range(c + 1)]
    def reads(rho):
        seen, r = set(), []
        for (aa, e, c) in order:
            if ("A", aa) not in seen: seen.add(("A", aa)); r += rdA(rho, aa)
            if ("B", e) not in seen:
                seen.add(("B", e))
                for p in range(NP): r += rdB(rho, e, p)
        return r
    def mf(rho, aa, e, c, p):
        A = FA[rho] + 4 * aa; B = FB[rho] + 32 * p + 4 * e; D = ACC + 4 * c
        q.need(list(range(A, A + 4)) + list(range(B, B + 4)))
        a(f"v_mfma_f32_16x16x32_bf16 v[{D}:{D+3}], v[{A}:{A+3}], v[{B}:{B+3}], v[{D}:{D+3}]")
    fill = []
    for r in range(4):
        fill += [f"v_lshlrev_b32 v{TD+2*r}, 16, v{XS+r}", f"v_and_b32 v{TD+2*r+1}, 0xffff0000, v{XS+r}",
                 f"v_mul_f32 v{TD+2*r}, s46, v{TD+2*r}", f"v_mul_f32 v{TD+2*r+1}, s47, v{TD+2*r+1}",
                 f"v_cvt_pk_bf16_f32 v15, v{TD+2*r}, v{TD+2*r+1}",
                 f"v_lshlrev_b32 v{TD+2*r}, 16, v15", f"v_and_b32 v{TD+2*r+1}, 0xffff0000, v15"]
    if kind == "B2": fill.append("v_lshlrev_b32 v3, 12, v0")
    QU = XR + 28
    if kind == "A" and FUSE_X1:
        fill.append("s_waitcnt vmcnt(0)")
        for r in range(4):
            fill += [f"v_lshlrev_b32 v{QU+2*r}, 16, v{8+r}", f"v_and_b32 v{QU+2*r+1}, 0xffff0000, v{8+r}",
                     f"v_lshlrev_b32 v{XU+2*r}, 16, v{XR+24+r}", f"v_and_b32 v{XU+2*r+1}, 0xffff0000, v{XR+24+r}"]
    if not sbuf:
        for t, d in reads(0): q.issue(t, d)
        r1 = reads(1)
        for (aa, e, c) in order:
            for p in range(NP):
                mf(0, aa, e, c, p)
                if r1:
                    tt, dd = r1.pop(0); q.issue(tt, dd)
                elif fill: a(fill.pop(0))
        for tt, dd in r1: q.issue(tt, dd)
    else:
        order0 = sorted(order, key=lambda x: (min(x[0], x[1]), x[2]))
        def frs(o):
            seen, out = set(), []
            for (aa, e, c) in o:
                for f in (("A", aa), ("B", e)):
                    if f not in seen: seen.add(f); out.append(f)
            return out
        def rds(rho, f):
            if f[0] == "A": return rdA(rho, f[1])
            r = []
            for p in range(NP): r += rdB(rho, f[1], p)
            return r
        for f in frs(order0):
            for t, d in rds(0, f): q.issue(t, d)
        lastuse = {}
        for k, (aa, e, c) in enumerate(order0):
            lastuse[("A", aa)] = k; lastuse[("B", e)] = k
        pend = frs(order)
        for k, (aa, e, c) in enumerate(order0):
            for p in range(NP): mf(0, aa, e, c, p)
            dead = [f for f in pend if lastuse[f] <= k]
            for f in dead:
                pend.remove(f)
                for t, d in rds(1, f): q.issue(t, d)
            if not dead and fill: a(fill.pop(0))
        assert not pend
    pendw = []
    for (aa, e, c) in order:
        for p in range(NP):
            mf(1, aa, e, c, p)
            if fill: a(fill.pop(0))
            pendw = [(cc, n - 1) for cc, n in pendw]
            for cc, n in [x for x in pendw if x[1] <= 0]:
                q.issue(f"ds_write_b128 v{VW}, v[{ACC+4*cc}:{ACC+4*cc+3}] offset:{cc*1024}", [])
            pendw = [x for x in pendw if x[1] > 0]
        if aa == c: pendw.append((c, 5))
    for f in fill: a(f)
    for cc, n in pendw:
        q.issue(f"ds_write_b128 v{VW}, v[{ACC+4*cc}:{ACC+4*cc+3}] offset:{cc*1024}", [])
    a("s_waitcnt lgkmcnt(0)")
    st()
    if swbar is None: a("s_barrier")
    else: sw_barrier(a, swbar + 4, 8, 48, 49, 48, f"{E}_sb2")
    st()
    for w in range(8):
        b = VC if w < 4 else VC2
        a(f"ds_read_b128 v[{48+4*w}:{51+4*w}], v{b} offset:{(w&3)*PWSTR}")
        if w & 3:
            b = VP if w < 4 else VP2
            a(f"ds_read_b128 v[{80+4*w}:{83+4*w}], v{b} offset:{(w&3)*PWSTR}")
    for ch in range(2):
        a(f"s_waitcnt lgkmcnt({7 if ch == 0 else 0})")
        cur = lambda d, i: 48 + 4 * (4 * ch + d) + i
        prv = lambda d, i: 80 + 4 * (4 * ch + d) + i
        for r in range(4):
            t = [cur(0, r)]
            for d in range(1, 4):
                t.append(cur(d, r - d) if r - d >= 0 else prv(d, 4 + r - d))
            y = 16 + 4 * ch + r
            a(f"v_add_f32 v{y}, v{t[0]}, v{t[1]}")
            a(f"v_add_f32 v{24+r}, v{t[2]}, v{t[3]}")
            a(f"v_add_f32 v{y}, v{y}, v{24+r}")
    for r in range(4):
        T = 28 + 4 * r
        a(f"v_cvt_pk_bf16_f32 v{T}, v{16+r}, v{20+r}")
        lo(a, T + 1, T); hi(a, T + 2, T)
        a(f"v_add_f32 v{T+1}, v{T+1}, v{TD+2*r}")
        a(f"v_add_f32 v{T+2}, v{T+2}, v{TD+2*r+1}")
        if kind == "A":
            a(f"v_cvt_pk_bf16_f32 v{44+r}, v{T+1}, v{T+2}")
            if FUSE_X1:
                lo(a, T + 1, 44 + r); hi(a, T + 2, 44 + r)
                a(f"v_mul_f32 v{T+1}, v{T+1}, v{QU+2*r}")
                a(f"v_mul_f32 v{T+2}, v{T+2}, v{QU+2*r+1}")
                a(f"v_cvt_pk_bf16_f32 v{T}, v{T+1}, v{T+2}")
                lo(a, T + 1, T); hi(a, T + 2, T)
                a(f"v_add_f32 v{T+1}, v{T+1}, v{XU+2*r}")
                a(f"v_add_f32 v{T+2}, v{T+2}, v{XU+2*r+1}")
                a(f"v_cvt_pk_bf16_f32 v{48+r}, v{T+1}, v{T+2}")
                if r == 3:
                    a(f"s_add_u32 s34, s13, {X1}")
                    a("buffer_store_dwordx4 v[48:51], v14, s[28:31], s34 offen")
        else:
            a(f"v_cvt_pk_bf16_f32 v{T}, v{T+1}, v{T+2}")
            lo(a, T + 1, T); hi(a, T + 2, T)
            a(f"v_add_f32 v{T+1}, v{T+1}, v{XU+2*r}")
            a(f"v_add_f32 v{T+2}, v{T+2}, v{XU+2*r+1}")
            a(f"v_cvt_pk_bf16_f32 v{44+r}, v{T+1}, v{T+2}")
        if kind in ("A", "B1"):
            if r == 3:
                dst = YA if kind == "A" else X2
                a(f"s_add_u32 s32, s13, {dst}")
                a("buffer_store_dwordx4 v[44:47], v14, s[28:31], s32 offen")
        else:
            a(f"buffer_store_dword v{44+r}, v3, s[20:23], s15 offen offset:{1024*r}")
    st()
    st.finish(28)
    return (XR + 14) if sbuf else (XR + 36)

def k_conv(kind, NP, dbuf=True, optp=False):
    name = {"A": "convA_kernel", "B1": "convB1_kernel", "B2": "convB2_kernel"}[kind]
    if kind == "A": NP = 1
    a = Asm()
    E = f"L_{name}"
    a(f"""s_cmp_ge_u32 s2, 256
s_cbranch_scc1 {E}_end
s_load_dwordx2 s[10:11], s[0:1], 120""")
    st = Stamps(a, {"A": 2, "B1": 4, "B2": 6}[kind])
    nv = conv_body_p(a, kind, NP, st, E) if optp else conv_body(a, kind, NP, st, E, dbuf)
    a(f"""{E}_end:
s_endpgm""")
    return kernel_text(name, a.text(), nv, SG(64))

def row_reduce(a, S1, S2, T, waddr, ldsoff):
    a(f"""v_permlane32_swap_b32 v{S1}, v{S2}
v_add_f32 v{S1}, v{S1}, v{S2}
v_mov_b32 v{T}, v{S1}
v_permlane16_swap_b32 v{S1}, v{T}
v_add_f32 v{S1}, v{S1}, v{T}
v_add_f32_dpp v{S1}, v{S1}, v{S1} row_ror:8 row_mask:0xf bank_mask:0xf
s_mov_b64 exec, s[48:49]
ds_write_b32 v{waddr}, v{S1} offset:{ldsoff}
s_mov_b64 exec, -1
s_waitcnt lgkmcnt(0)
s_barrier""")

def row_stats(a, raddr, ldsoff, piv, T, o_mean, o_m, o_den):
    a(f"""ds_read_b128 v[{T}:{T+3}], v{raddr} offset:{ldsoff}
ds_read_b128 v[{T+4}:{T+7}], v{raddr} offset:{ldsoff+16}
ds_read_b128 v[{T+8}:{T+11}], v{raddr} offset:{ldsoff+256}
ds_read_b128 v[{T+12}:{T+15}], v{raddr} offset:{ldsoff+272}
s_waitcnt lgkmcnt(2)""")
    for b in (0, 8):
        if b == 8: a("s_waitcnt lgkmcnt(0)")
        a(f"""v_add_f32 v{T+b}, v{T+b}, v{T+b+1}
v_add_f32 v{T+b+2}, v{T+b+2}, v{T+b+3}
v_add_f32 v{T+b+4}, v{T+b+4}, v{T+b+5}
v_add_f32 v{T+b+6}, v{T+b+6}, v{T+b+7}
v_add_f32 v{T+b}, v{T+b}, v{T+b+2}
v_add_f32 v{T+b+4}, v{T+b+4}, v{T+b+6}
v_add_f32 v{T+b}, v{T+b}, v{T+b+4}""")
    a(f"""v_mul_f32 v{T}, 0x3b000000, v{T}
v_mul_f32 v{T+1}, 0x3b000000, v{T+8}
v_add_f32 v{o_mean}, v{piv}, v{T}
v_fma_f32 v{T+1}, -v{T}, v{T}, v{T+1}
v_max_f32 v{T+1}, 0, v{T+1}
v_cvt_pk_bf16_f32 v{T+2}, v{o_mean}, v{T+1}
v_lshlrev_b32 v{o_m}, 16, v{T+2}
v_and_b32 v{T+1}, 0xffff0000, v{T+2}
v_add_f32 v{T+1}, 0x3727c5ac, v{T+1}
v_cvt_pk_bf16_f32 v{T+1}, v{T+1}, v{T+1}
v_and_b32 v{T+1}, 0xffff0000, v{T+1}
v_sqrt_f32 v{T+1}, v{T+1}
v_cvt_pk_bf16_f32 v{T+1}, v{T+1}, v{T+1}
v_and_b32 v{o_den}, 0xffff0000, v{T+1}""")

def row_partial(a, P):
    for k in range(8):
        a(f"v_sub_f32 v{48+k}, v{24+k}, v{P}")
    a("v_add_f32 v40, v48, v49")
    a("v_mul_f32 v41, v48, v48")
    a("v_mul_f32 v42, v49, v49")
    for k in range(2, 8, 2):
        a(f"v_add_f32 v43, v{48+k}, v{49+k}")
        a(f"v_fmac_f32 v41, v{48+k}, v{48+k}")
        a(f"v_fmac_f32 v42, v{49+k}, v{49+k}")
        a("v_add_f32 v40, v40, v43")
    a("v_add_f32 v41, v41, v42")

def row_setup(a, rb_sgpr):
    a(f"""v_and_b32 v1, 7, v0
v_lshrrev_b32 v2, 3, v0
s_lshl_b32 s13, s{rb_sgpr}, 3
v_add_u32 v3, s13, v1
v_lshlrev_b32 v9, 15, v2
v_lshl_add_u32 v8, v3, 2, v9
s_mov_b32 s48, 0xff
s_mov_b32 s49, 0xff
v_lshlrev_b32 v11, 5, v1
v_bfe_u32 v10, v0, 5, 1
v_lshl_add_u32 v10, v10, 8, v11
v_lshrrev_b32 v5, 6, v0
v_lshl_add_u32 v10, v5, 2, v10""")

def ln0_compute(a):
    row_setup(a, 3)
    a("v_lshlrev_b32 v20, 16, v74")
    for k in range(4):
        lo(a, 24 + 2 * k, 70 + k); hi(a, 25 + 2 * k, 70 + k)
    row_partial(a, 20)
    row_reduce(a, 40, 41, 42, 10, 0)
    row_stats(a, 11, 0, 20, 48, 21, 22, 23)
    a("v_rcp_f32 v36, v23")
    for k in range(4):
        x0, x1 = 24 + 2 * k, 25 + 2 * k
        a(f"v_sub_f32 v51, v{x0}, v22")
        a(f"v_sub_f32 v52, v{x1}, v22")
        a("v_cvt_pk_bf16_f32 v53, v51, v52")
        lo(a, 51, 53); hi(a, 52, 53)
        for x in (51, 52):
            a(f"v_mul_f32 v54, v{x}, v36")
            a(f"v_fma_f32 v55, -v54, v23, v{x}")
            a(f"v_fma_f32 v{x}, v55, v36, v54")
        a(f"v_cvt_pk_bf16_f32 v{56+k}, v51, v52")
        a(f"s_mov_b32 s34, {QH + 8192*k}")
        a(f"buffer_store_dword v{56+k}, v8, s[28:31], s34 offen")

def k_stat1():
    name = "row1_kernel"
    E = f"L_{name}_end"
    a = Asm()
    a(f"""s_cmp_ge_u32 s2, 256
s_cbranch_scc1 {E}
s_load_dwordx2 s[10:11], s[0:1], 120""")
    st = Stamps(a, 3); st()
    xcd_remap(a, 3, 12)
    row_setup(a, 3)
    a("s_waitcnt lgkmcnt(0)")
    srd(a, 28, 10, WSBYTES)
    a(f"""s_mov_b32 s33, {X1}
v_lshlrev_b32 v7, 2, v3""")
    for k in range(4):
        a(f"s_add_u32 s34, s33, {8192*k}")
        a(f"buffer_load_dword v{16+k}, v8, s[28:31], s34 offen")
    a("""buffer_load_dword v20, v7, s[28:31], s33 offen
s_waitcnt vmcnt(0)
v_lshlrev_b32 v20, 16, v20""")
    st()
    for k in range(4):
        lo(a, 24 + 2 * k, 16 + k); hi(a, 25 + 2 * k, 16 + k)
    row_partial(a, 20)
    row_reduce(a, 40, 41, 42, 10, 0)
    a(f"""v_cmp_gt_u32 vcc, 8, v0
s_and_saveexec_b64 s[36:37], vcc
s_cbranch_execz {E}""")
    row_stats(a, 11, 0, 20, 64, 60, 61, 62)
    a(f"""v_lshrrev_b32 v61, 16, v61
v_or_b32 v61, v61, v62
s_mov_b32 s35, {ST1}
buffer_store_dword v61, v7, s[28:31], s35 offen""")
    st.finish(28)
    a(f"""{E}:
s_endpgm""")
    return kernel_text(name, a.text(), 80, SG(56))

def k_row(kind, NP=1, nk=0, ch0=0):
    name = {"R1": "row1_kernel", "R2": "row2_kernel"}[kind]
    E = f"L_{name}_end"
    a = Asm()
    if nk:
        a(f"""s_add_u32 s60, s2, 256
s_sub_u32 s61, s2, {nk}
s_cmp_lt_u32 s2, {nk}
s_cselect_b32 s61, s60, s61
s_cmp_lt_u32 s2, {nk+256}
s_cselect_b32 s2, s61, s2""")
    a(f"""s_cmp_ge_u32 s2, 256
s_cbranch_scc1 {E}_kgen
s_setprio 3
s_load_dwordx2 s[10:11], s[0:1], 120
s_load_dwordx2 s[4:5], s[0:1], 0""")
    st = Stamps(a, {"R1": 3, "R2": 5}[kind]); st()
    xcd_remap(a, 3, 12)
    a("""v_and_b32 v1, 7, v0
v_lshrrev_b32 v2, 3, v0
s_lshl_b32 s13, s3, 3
v_add_u32 v3, s13, v1
v_lshlrev_b32 v9, 15, v2
v_lshl_add_u32 v8, v3, 2, v9
v_lshl_add_u32 v9, v3, 4, v9
s_waitcnt lgkmcnt(0)""")
    srd(a, 28, 10, WSBYTES)
    a(f"s_mov_b32 s32, {YA}")
    if kind == "R1":
        srd(a, 16, 4, MB2)
        a("""v_lshlrev_b32 v7, 10, v3
v_lshl_add_u32 v4, v2, 4, v7
buffer_load_dwordx4 v[16:19], v4, s[16:19], 0 offen
buffer_load_dword v20, v7, s[16:19], 0 offen""")
    else:
        a(f"""s_mov_b32 s33, {X2}
v_lshlrev_b32 v7, 2, v3""")
        for k in range(4):
            a(f"s_add_u32 s34, s33, {8192*k}")
            a(f"buffer_load_dword v{16+k}, v8, s[28:31], s34 offen")
        a("buffer_load_dword v20, v7, s[28:31], s33 offen")
    for k in range(4):
        a(f"s_add_u32 s34, s32, {8192*k}")
        a(f"buffer_load_dword v{12+k}, v8, s[28:31], s34 offen")
    if PF_K:
        a(f"""s_lshl_b32 s44, s3, {12+NP}
s_add_u32 s44, s44, {KW}
v_lshrrev_b32 v22, 6, v0
v_lshl_add_u32 v22, v22, 3, v1
v_lshlrev_b32 v22, 7, v22
s_mov_b64 exec, 0xff
buffer_load_dword v38, v22, s[28:31], s44 offen
s_mov_b64 exec, -1""")
    a("""s_mov_b32 s48, 0xff
s_mov_b32 s49, 0xff
v_lshlrev_b32 v11, 5, v1
v_bfe_u32 v10, v0, 5, 1
v_lshl_add_u32 v10, v10, 8, v11
v_lshrrev_b32 v5, 6, v0
v_lshl_add_u32 v10, v5, 2, v10
""" + f"s_waitcnt vmcnt({5 if PF_K else 4})" + """
v_lshlrev_b32 v20, 16, v20""")
    st()
    for k in range(4):
        lo(a, 24 + 2 * k, 16 + k); hi(a, 25 + 2 * k, 16 + k)
    def partial(P):
        for k in range(8):
            a(f"v_sub_f32 v{48+k}, v{24+k}, v{P}")
        a("v_add_f32 v40, v48, v49")
        a("v_mul_f32 v41, v48, v48")
        a("v_mul_f32 v42, v49, v49")
        for k in range(2, 8, 2):
            a(f"v_add_f32 v43, v{48+k}, v{49+k}")
            a(f"v_fmac_f32 v41, v{48+k}, v{48+k}")
            a(f"v_fmac_f32 v42, v{49+k}, v{49+k}")
            a("v_add_f32 v40, v40, v43")
        a("v_add_f32 v41, v41, v42")
    partial(20)
    row_reduce(a, 40, 41, 42, 10, 0)
    row_stats(a, 11, 0, 20, 48, 21, 22, 23)
    st()
    a("v_rcp_f32 v36, v23")
    a(f"s_waitcnt vmcnt({1 if PF_K else 0})")
    for k in range(4):
        x0, x1 = 24 + 2 * k, 25 + 2 * k
        a(f"v_sub_f32 v51, v{x0}, v22")
        a(f"v_sub_f32 v52, v{x1}, v22")
        a("v_cvt_pk_bf16_f32 v53, v51, v52")
        lo(a, 51, 53); hi(a, 52, 53)
        for x in (51, 52):
            a(f"v_mul_f32 v54, v{x}, v36")
            a(f"v_fma_f32 v55, -v54, v23, v{x}")
            a(f"v_fma_f32 v{x}, v55, v36, v54")
        a("v_cvt_pk_bf16_f32 v53, v51, v52")
        lo(a, 51, 53); hi(a, 52, 53)
        lo(a, 54, 12 + k); hi(a, 55, 12 + k)
        a("v_mul_f32 v51, v51, v54")
        a("v_mul_f32 v52, v52, v55")
        a("v_cvt_pk_bf16_f32 v53, v51, v52")
        lo(a, 51, 53); hi(a, 52, 53)
        a(f"v_add_f32 v51, v51, v{x0}")
        a(f"v_add_f32 v52, v52, v{x1}")
        a(f"v_cvt_pk_bf16_f32 v{56+k}, v51, v52")
        lo(a, x0, 56 + k); hi(a, x1, 56 + k)
    dst = X1 if kind == "R1" else X3
    if ROW_OUT_T2:
        for k in range(4):
            a(f"s_mov_b32 s34, {dst + 8192*k}")
            a(f"buffer_store_dword v{56+k}, v8, s[28:31], s34 offen")
    else:
        a(f"s_mov_b32 s34, {dst}")
        a("buffer_store_dwordx4 v[56:59], v9, s[28:31], s34 offen")
    st()
    partial(21)
    row_reduce(a, 40, 41, 42, 10, 512)
    stt = ST1 if kind == "R1" else ST3
    a(f"""v_cmp_gt_u32 vcc, 8, v0
s_and_saveexec_b64 s[36:37], vcc
s_cbranch_execz {E}""")
    row_stats(a, 11, 512, 21, 64, 60, 61, 62)
    a(f"""v_lshrrev_b32 v61, 16, v61
v_or_b32 v61, v61, v62
v_lshlrev_b32 v7, 2, v3
s_mov_b32 s35, {stt}
buffer_store_dword v61, v7, s[28:31], s35 offen""")
    st.finish(28)
    a(f"""s_endpgm
{E}_kgen:
s_cmp_ge_u32 s2, {256+nk}
s_cbranch_scc1 {E}""")
    nv = 80
    if nk:
        a(f"s_add_u32 s55, s2, {ch0-256}")
        st2 = Stamps(a, 3)
        nv = kgen_body(a, NP, st2, 55)
    a(f"""{E}:
s_endpgm""")
    return kernel_text(name, a.text(), nv, SG(64))

KPART = 0
KPRM = 8 * 3072
KTAB0 = KPRM + 8 * 256
KGEN_LDS = KTAB0 + 2176 * 4
def kgen_body(a, NP, st, ch_sgpr, lbase=0, swbar=None):
    KPART, KPRM, KTAB0 = globals()["KPART"] + lbase, globals()["KPRM"] + lbase, globals()["KTAB0"] + lbase
    if KG_FLUSH: a("s_setreg_imm32_b32 hwreg(HW_REG_MODE, 4, 2), 0")
    a(f"""s_load_dwordx8 s[4:11], s[0:1], 56
s_load_dwordx2 s[12:13], s[0:1], 88
s_load_dwordx2 s[14:15], s[0:1], 120
v_and_b32 v1, 15, v0
v_bfe_u32 v2, v0, 4, 2
v_lshrrev_b32 v3, 6, v0
s_lshl_b32 s3, s{ch_sgpr}, 8
v_lshlrev_b32 v4, 5, v3
v_lshl_add_u32 v4, v1, 1, v4
s_mov_b32 s50, 0x3fb8aa3b
s_mov_b32 s51, 0x32a57060
s_mov_b32 s52, 0x3f317218
s_mov_b32 s53, 0x3e22f983
s_mov_b32 s54, 0x07060302
v_readfirstlane_b32 s56, v3
s_waitcnt lgkmcnt(0)""")
    st()
    PS = [16, 24, 40, 64]
    if KG_SMEM:
        a("""s_lshl_b32 s57, s56, 5
s_add_u32 s3, s3, s57""")
        for i in range(4):
            a(f"""s_add_u32 s{4+2*i}, s{4+2*i}, s3
    s_addc_u32 s{5+2*i}, s{5+2*i}, 0
    s_load_dwordx8 s[{PS[i]}:{PS[i]+7}], s[{4+2*i}:{5+2*i}], 0""")
        srd(a, 32, 14, WSBYTES)

    else:
        for i in range(4): srd(a, 16 + 4 * i, 4 + 2 * i, 131072)
        srd(a, 32, 14, WSBYTES)
        for i in range(4):
            a(f"buffer_load_ushort v{8+i}, v4, s[{16+4*i}:{19+4*i}], s3 offen")
    a(f"""s_lshr_b32 s36, s{ch_sgpr}, 1
s_lshl_b32 s36, s36, 2
s_add_u32 s12, s12, s36
s_addc_u32 s13, s13, 0
s_load_dword s37, s[12:13], 0""")
    global _LBL
    _LBL += 1
    if KG_TAB:
        a(f"""s_getpc_b64 s[58:59]
L_ktref{_LBL}:
s_add_u32 s58, s58, L_ktab-L_ktref{_LBL}
s_addc_u32 s59, s59, 0
v_lshlrev_b32 v28, 4, v1
global_load_dwordx4 v[24:27], v28, s[58:59]""")
    else:
        a(f"""v_lshrrev_b32 v28, 3, v1
v_lshlrev_b32 v28, 7, v28
v_and_b32 v29, 7, v1
v_or_b32 v24, v28, v29
v_lshrrev_b32 v28, 2, v1
v_lshlrev_b32 v28, 7, v28
v_and_b32 v29, 3, v1
v_lshl_add_u32 v28, v29, 1, v28
v_add_u32 v28, 256, v28
v_bfe_u32 v29, v1, 1, 2
v_lshlrev_b32 v29, 7, v29
v_and_b32 v30, 1, v1
v_lshl_add_u32 v29, v30, 2, v29
v_add_u32 v29, 512, v29
v_cmp_gt_u32 vcc, 8, v1
v_cndmask_b32 v25, v29, v28, vcc
v_lshlrev_b32 v28, 7, v1
v_add_u32 v28, 1024, v28
v_min_u32 v26, 2048, v28
v_lshlrev_b32 v27, 3, v1
v_cvt_f32_u32 v24, v24
v_cvt_f32_u32 v25, v25
v_cvt_f32_u32 v26, v26
v_cvt_f32_u32 v27, v27""")
    a(f"""v_lshlrev_b32 v5, 8, v3
v_lshl_add_u32 v6, v1, 4, v5
v_lshl_add_u32 v5, v2, 6, v5
s_waitcnt lgkmcnt(0)
s_lshl_b32 s38, s37, 16
s_and_b32 s39, s37, 0xffff0000
s_bitcmp1_b32 s{ch_sgpr}, 0
s_cselect_b32 s38, s39, s38
v_mov_b32 v28, s38""")
    exp_acc(a, 29, 28, 30, 31)
    a("""v_cvt_pk_bf16_f32 v29, v29, v29
v_and_b32 v29, 0xffff0000, v29""")
    if not KG_SMEM:
        a("s_waitcnt vmcnt(0)")
        st()
        for i in range(4): lo(a, 8 + i, 8 + i)
    else:
        st()
        for i in range(4):
            for kk in range(8):
                a(f"v_writelane_b32 v{8+i}, s{PS[i]+kk}, {kk}")
        a("""v_lshrrev_b32 v16, 1, v1
v_lshlrev_b32 v16, 2, v16
v_and_b32 v17, 1, v1
v_xor_b32 v17, 1, v17
v_lshlrev_b32 v17, 4, v17""")
        for i in range(4): a(f"ds_bpermute_b32 v{8+i}, v16, v{8+i}")
        a("s_waitcnt lgkmcnt(0)")
        for i in range(4):
            a(f"v_lshlrev_b32 v{8+i}, v17, v{8+i}")
            a(f"v_and_b32 v{8+i}, 0xffff0000, v{8+i}")
    exp_acc(a, 12, 8, 30, 31)
    a(f"""v_cvt_pk_bf16_f32 v12, v12, v12
v_and_b32 v12, 0xffff0000, v12
v_mul_f32 v12, v12, v29
v_mul_f32 v12, 0xbfb8aa3b, v12
v_mul_f32 v13, v9, v29
v_mul_f32 v13, s53, v13
v_mul_f32 v14, v10, v29
v_mul_f32 v15, v11, v29
v_add_f32 v14, v14, v14
v_add_f32 v15, v15, v15
ds_write_b128 v6, v[12:15] offset:{KPRM}
s_waitcnt lgkmcnt(0)""")
    a("s_waitcnt vmcnt(0)")
    st()
    a("v_mov_b32 v7, 0x07060302")
    tmp = list(range(16, 24)) + list(range(28, 44))
    XS_ = [44, 45, 46, 47]
    for bt in range(2):
        for mm in range(2):
            a(f"ds_read_b128 v[{8+4*mm}:{11+4*mm}], v5 offset:{KPRM + 16*(2*bt+mm)}")
        a("s_waitcnt lgkmcnt(0)")
        items = [(mm, T) for mm in range(2) for T in range(4)]
        Er = {it: tmp[3 * k] for k, it in enumerate(items)}
        Sr = {it: tmp[3 * k + 1] for k, it in enumerate(items)}
        Cr = {it: tmp[3 * k + 2] for k, it in enumerate(items)}
        for it in items: a(f"v_mul_f32 v{Sr[it]}, v{9+4*it[0]}, v{24+it[1]}")
        for it in items: a(f"v_mul_f32 v{Er[it]}, v{8+4*it[0]}, v{24+it[1]}")
        for it in items: a(f"v_fract_f32 v{Sr[it]}, v{Sr[it]}")
        for it in items: a(f"v_exp_f32 v{Er[it]}, v{Er[it]}")
        for it in items: a(f"v_cos_f32 v{Cr[it]}, v{Sr[it]}")
        for it in items: a(f"v_sin_f32 v{Sr[it]}, v{Sr[it]}")
        for it in items:
            if it[1] < 3:
                a(f"v_mul_f32 v{Cr[it]}, v{Cr[it]}, v{Er[it]}")
                a(f"v_mul_f32 v{Sr[it]}, v{Sr[it]}, v{Er[it]}")
        cols = [it for it in items if it[1] == 3]
        for n, it in enumerate(cols):
            a(f"v_mul_f32 v{XS_[2*n]}, v{10+4*it[0]}, v{Er[it]}")
            a(f"v_mul_f32 v{Er[it]}, v{11+4*it[0]}, v{Er[it]}")
        for n, it in enumerate(cols):
            a(f"v_mul_f32 v{XS_[2*n+1]}, v{Er[it]}, v{Sr[it]}")
            a(f"v_mul_f32 v{Er[it]}, v{Er[it]}, v{Cr[it]}")
        for n, it in enumerate(cols):
            a(f"v_fma_f32 v{Cr[it]}, v{XS_[2*n]}, v{Cr[it]}, -v{XS_[2*n+1]}")
            a(f"v_fma_f32 v{Sr[it]}, -v{XS_[2*n]}, v{Sr[it]}, -v{Er[it]}")
        def HL(it):
            m = 2 * bt + it[0]
            return (48 + 4 * it[1] + m, 60 + 4 * it[1] + m) if it[1] < 3 else (72 + m, 76 + m)
        for it in items: a(f"v_perm_b32 v{HL(it)[0]}, v{Sr[it]}, v{Cr[it]}, v7")
        for it in items: a(f"v_and_b32 v{Er[it]}, 0xffff0000, v{Cr[it]}")
        for it in items: a(f"v_sub_f32 v{Cr[it]}, v{Cr[it]}, v{Er[it]}")
        for it in items: a(f"v_and_b32 v{Er[it]}, 0xffff0000, v{Sr[it]}")
        for it in items: a(f"v_sub_f32 v{Sr[it]}, v{Sr[it]}, v{Er[it]}")
        for it in items: a(f"v_cvt_pk_bf16_f32 v{HL(it)[1]}, v{Cr[it]}, v{Sr[it]}")
    st()
    if KG_TAB:
        a("""v_lshlrev_b32 v16, 4, v0
global_load_dwordx4 v[8:11], v16, s[58:59] offset:256""")
    for T in range(3):
        D = 32 + 4 * T
        a(f"v_mfma_f32_16x16x32_bf16 v[{D}:{D+3}], v[{60+4*T}:{63+4*T}], v[72:75], 0")
        a(f"v_mfma_f32_16x16x32_bf16 v[{D}:{D+3}], v[{48+4*T}:{51+4*T}], v[76:79], v[{D}:{D+3}]")
        a(f"v_mfma_f32_16x16x32_bf16 v[{D}:{D+3}], v[{48+4*T}:{51+4*T}], v[72:75], v[{D}:{D+3}]")
    a("""v_and_b32 v30, 63, v0
v_lshlrev_b32 v30, 4, v30
v_mul_u32_u24 v31, 3072, v3
v_add_u32 v31, v31, v30""")
    a("""v_and_b32 v7, 3, v0
v_lshrrev_b32 v5, 2, v0""")
    if not KG_TAB:
        a("v_lshl_add_u32 v4, v5, 3, v7")
        for it in range(2):
            a(f"v_add_u32 v{8+2*it}, {1024*it}, v4")
            a(f"v_add_u32 v{9+2*it}, {1024*it+4}, v4")
        for k in range(4): a(f"v_cvt_f32_u32 v{8+k}, v{8+k}")
        for k in range(0, 4, 2):
            a(f"v_cvt_pk_bf16_f32 v17, v{8+k}, v{9+k}")
            lo(a, 8 + k, 17); hi(a, 9 + k, 17)
        for k in range(4):
            a(f"v_cvt_u32_f32 v{8+k}, v{8+k}")
            a(f"v_lshlrev_b32 v{8+k}, 2, v{8+k}")
    a(f"""s_lshl_b32 s42, s{ch_sgpr}, {11+NP}
s_add_u32 s42, s42, {KW}
v_lshlrev_b32 v4, 10, v7
v_lshl_add_u32 v4, v5, 2, v4""")
    for T in range(3):
        a(f"ds_write_b128 v31, v[{32+4*T}:{35+4*T}] offset:{KPART + 1024*T}")
    st()
    _LBL += 1
    L = f"L_kg{_LBL}"
    if swbar is None:
        a("""s_waitcnt lgkmcnt(0)
s_barrier""")
    else: sw_barrier(a, swbar, 8, 64, 65, 58, f"{L}_sb1")
    st()
    a(f"""s_cmp_ge_u32 s56, 3
s_cbranch_scc1 {L}_skip
s_lshl_b32 s57, s56, 10
v_add_u32 v30, s57, v30""")
    for w in range(8):
        a(f"ds_read_b128 v[{32+4*w}:{35+4*w}], v30 offset:{KPART + 3072*w}")
    a("v_lshlrev_b32 v65, 5, v1")
    a("s_waitcnt lgkmcnt(0)")
    for r in range(4):
        a(f"""v_add_f32 v{32+r}, v{32+r}, v{36+r}
v_add_f32 v{40+r}, v{40+r}, v{44+r}
v_add_f32 v{48+r}, v{48+r}, v{52+r}
v_add_f32 v{56+r}, v{56+r}, v{60+r}
v_add_f32 v{32+r}, v{32+r}, v{40+r}
v_add_f32 v{48+r}, v{48+r}, v{56+r}
v_add_f32 v{32+r}, v{32+r}, v{48+r}""")
    a(f"""s_cmp_eq_u32 s56, 1
s_cbranch_scc1 {L}_t1
s_cmp_eq_u32 s56, 2
s_cbranch_scc1 {L}_t2
v_lshrrev_b32 v64, 1, v2
v_lshlrev_b32 v64, 9, v64
v_and_b32 v66, 1, v2
v_lshl_add_u32 v64, v66, 4, v64
v_add_u32 v64, v65, v64
ds_write_b128 v64, v[32:35] offset:{KTAB0}
s_branch {L}_skip
{L}_t1:
v_lshlrev_b32 v64, 9, v2
v_add_u32 v64, 1024, v64
v_lshlrev_b32 v66, 10, v2
v_cmp_gt_u32 vcc, 2, v2
v_cndmask_b32 v64, v66, v64, vcc
v_add_u32 v64, v65, v64
ds_write_b32 v64, v32 offset:{KTAB0}
v_mov_b32 v67, 16
v_cndmask_b32 v66, v67, 8, vcc
v_add_u32 v66, v64, v66
ds_write_b32 v66, v33 offset:{KTAB0}
v_mov_b32 v67, 512
v_cndmask_b32 v66, v67, 16, vcc
v_add_u32 v66, v64, v66
ds_write_b32 v66, v34 offset:{KTAB0}
v_mov_b32 v67, 528
v_cndmask_b32 v66, v67, 24, vcc
v_add_u32 v66, v64, v66
ds_write_b32 v66, v35 offset:{KTAB0}
s_branch {L}_skip
{L}_t2:
v_lshlrev_b32 v64, 11, v2
v_add_u32 v64, v65, v64
v_cmp_gt_u32 vcc, 3, v2
s_and_saveexec_b64 s[40:41], vcc
ds_write_b32 v64, v32 offset:{KTAB0+4096}
s_mov_b64 exec, s[40:41]
v_cmp_gt_u32 vcc, 2, v2
s_and_saveexec_b64 s[40:41], vcc
ds_write_b32 v64, v33 offset:{KTAB0+4608}
ds_write_b32 v64, v34 offset:{KTAB0+5120}
ds_write_b32 v64, v35 offset:{KTAB0+5632}
s_mov_b64 exec, s[40:41]
{L}_skip:""")
    if swbar is None:
        a("""s_waitcnt lgkmcnt(0)
s_barrier""")
    else: sw_barrier(a, swbar + 4, 8, 64, 65, 58, f"{L}_sb2")
    st()
    if KG_TAB: a("s_waitcnt vmcnt(0)")
    for k in range(4):
        a(f"ds_read_b32 v{20+k}, v{8+k} offset:{KTAB0}")
    a("s_waitcnt lgkmcnt(0)")
    for it in range(2):
        a(f"v_cvt_pk_bf16_f32 v{16+it}, v{20+2*it}, v{21+2*it}")
        a(f"buffer_store_dword v{16+it}, v4, s[32:35], s42 offen offset:{512*it}")
        if NP == 2:
            lo(a, 24, 16 + it); hi(a, 25, 16 + it)
            a(f"v_sub_f32 v24, v{20+2*it}, v24")
            a(f"v_sub_f32 v25, v{21+2*it}, v25")
            a(f"v_cvt_pk_bf16_f32 v{18+it}, v24, v25")
    if NP == 2:
        a("s_add_u32 s42, s42, 4096")
        for it in range(2):
            a(f"buffer_store_dword v{18+it}, v4, s[32:35], s42 offen offset:{512*it}")
    st.finish(32)
    return 80

def k_front(NP, nk=256, ch0=256, kfirst=False):
    name = "front_kernel"
    a = Asm()
    E = f"L_{name}"
    if kfirst and nk:
        a(f"""s_add_u32 s60, s2, 256
s_sub_u32 s61, s2, {nk}
s_cmp_lt_u32 s2, {nk}
s_cselect_b32 s61, s60, s61
s_cmp_lt_u32 s2, {nk+256}
s_cselect_b32 s2, s61, s2""")
    a(f"""s_cmp_ge_u32 s2, 256
s_cbranch_scc1 {E}_kgen
s_setprio 3
s_load_dwordx2 s[10:11], s[0:1], 120""")
    st = Stamps(a, 2)
    nv1 = conv_body(a, "A", 1, st, E, False)
    a(f"""s_endpgm
{E}_kgen:
s_cmp_ge_u32 s2, {256+nk}
s_cbranch_scc1 {E}_end
s_add_u32 s55, s2, {ch0-256}""")
    st2 = Stamps(a, 1)
    nv2 = kgen_body(a, NP, st2, 55)
    a(f"""{E}_end:
s_endpgm""")
    return kernel_text(name, a.text(), max(nv1, nv2), SG(64))

def SLDS(): return PCONV_LDS(1) + KGEN_LDS + 64
def k_convA_kgen(NP, ch0):
    name = "convA_kernel"
    a = Asm()
    E = f"L_{name}"
    cnt = PCONV_LDS(1) + KGEN_LDS
    a(f"""s_cmp_ge_u32 s2, 256
s_cbranch_scc1 {E}_end
v_mov_b32 v1, {cnt}
v_mov_b32 v2, 0
v_mov_b32 v3, 0
v_mov_b32 v4, 0
v_mov_b32 v5, 0
v_cmp_eq_u32 vcc, 0, v0
s_and_saveexec_b64 s[4:5], vcc
ds_write_b128 v1, v[2:5]
s_mov_b64 exec, s[4:5]
v_lshrrev_b32 v1, 9, v0
s_nop 0
v_readfirstlane_b32 s6, v1
s_waitcnt lgkmcnt(0)
s_barrier
s_cmp_eq_u32 s6, 1
s_cbranch_scc1 {E}_kgen
s_setprio 3
s_load_dwordx2 s[10:11], s[0:1], 120""")
    st = Stamps(a, 2)
    nv1 = conv_body_p(a, "A", 1, st, E, sbuf=True, swbar=cnt, cbase=KGEN_LDS)
    a(f"""s_endpgm
{E}_kgen:
v_and_b32 v0, 511, v0
s_add_u32 s55, s2, {ch0}""")
    st2 = Stamps(a, 1)
    nv2 = kgen_body(a, NP, st2, 55, lbase=0, swbar=cnt + 8)
    a(f"""{E}_end:
s_endpgm""")
    assert max(nv1, nv2) <= 128, (nv1, nv2)
    return kernel_text(name, a.text(), max(nv1, nv2), SG(64))

def ktab_text():
    import struct, numpy as np
    out = [".p2align 8", "L_ktab:"]
    f2u = lambda x: struct.unpack("<I", struct.pack("<f", float(x)))[0]
    for i in range(16):
        p0 = ((i >> 3) << 7) | (i & 7)
        p1 = 256 + ((i >> 2) << 7) + ((i & 3) << 1) if i < 8 else 512 + (((i >> 1) & 3) << 7) + ((i & 1) << 2)
        p2 = min(1024 + 128 * i, 2048)
        out.append(".long " + ", ".join(hex(f2u(x)) for x in (p0, p1, p2, 8 * i)))
    def rne(l):
        u = f2u(l); u = (u + 0x7FFF + ((u >> 16) & 1)) & 0xFFFF0000
        return int(struct.unpack("<f", struct.pack("<I", u))[0])
    for t in range(512):
        f, n2 = t & 3, t >> 2
        ls = [8 * n2 + f, 8 * n2 + f + 4, 8 * n2 + f + 1024, 8 * n2 + f + 1028]
        out.append(".long " + ", ".join(str(4 * rne(l)) for l in ls))
    return "\n".join(out)
```

```python
import sys
import kern
from asmlib import *
def build(path, NP=2, merged=True, diag=False, dbufB=True, nk1=256, kf1=False, kf2=False, nk3=0, optp=True, kvprio=True, stmod='', pf=0, dpf=False, tlb=False, fx1=False, pfd=False, pfk=False, optS=False, pflate=False, wfirst=False, ktab=False):
    kern.DIAG = diag
    import kern2 as k2
    k2.ROW_OUT_T2 = optp
    k2.KV_T2 = True
    k2.KV_PRIO = kvprio
    k2.CODE_PREFETCH = pf
    k2.DATA_PREFETCH = dpf
    k2.TLB_WARM = tlb
    k2.FUSE_X1 = fx1
    k2.PF_D = pfd; k2.PF_K = pfk
    k2.PF_LATE = pflate
    k2.KV_WFIRST = wfirst
    k2.KG_TAB = ktab
    hdr = [l.rstrip("\n") for l in open("header.txt") if "Override launch" not in l and "grid=ceil" not in l]
    FL = max(k2.CONV_LDS(1), k2.KGEN_LDS)
    BL = k2.PCONV_LDS(NP) if optp else k2.CONV_LDS(NP)
    ks = [k2.k_kv(NP, nk1, kf1)]
    L = [("kv_kernel", 256 + nk1, 512, k2.KGEN_LDS if nk1 else 1024)]
    if optS:
        ks.append(k2.k_convA_kgen(NP, nk1)); L.append(("convA_kernel", 256, 1024, k2.SLDS()))
    elif nk1 + nk3 == 512:
        ks.append(k2.k_conv("A", 1, True, True)); L.append(("convA_kernel", 256, 512, k2.PCONV_LDS(1)))
    else:
      ks.append(k2.k_front(NP, 512 - nk1 - nk3, nk1, kf2)); L.append(("front_kernel", 256 + 512 - nk1 - nk3, 512, FL))
    ks += [(k2.k_stat1() if fx1 else k2.k_row("R1", NP, nk3, 512 - nk3)), k2.k_conv("B1", NP, dbufB, optp), k2.k_row("R2", NP), k2.k_conv("B2", NP, dbufB, optp)]
    L += [("row1_kernel", 256 + nk3, 512, k2.KGEN_LDS if nk3 else 1024), ("convB1_kernel", 256, 512, BL), ("row2_kernel", 256, 512, 1024), ("convB2_kernel", 256, 512, BL)]
    txt = file_text(hdr, L, ks)
    if ktab:
        txt = txt.replace("L_code_end:\n    s_endpgm\n", "    s_endpgm\n" + k2.ktab_text() + "\nL_code_end:\n    s_endpgm\n")
    if stmod:
        import re
        txt = re.sub(r"(buffer_store_dword\S* [^\n]*)", lambda m: m.group(1) + " " + stmod, txt)
    open(path, "w").write(txt)
if __name__ == "__main__":
    build("v15.s", NP=1, kf1=True, nk1=512, pf=2, dpf=True, pflate=True, wfirst=True, kvprio=False)
    build("interleave_layers__ssm_conv_h3__ssm_conv_s4d__prompt.s", NP=1, kf1=True, nk1=512, pf=2, dpf=True, pflate=True, wfirst=True, kvprio=False)
    build("v16.s", NP=1, kf1=True, nk1=512, pf=2, dpf=True, pflate=True, wfirst=True, kvprio=False, fx1=True)
    build("v16p.s", NP=1, kf1=True, nk1=512, pf=2, dpf=True, pflate=True, wfirst=True, kvprio=True, fx1=True)
```

```python
from asmlib import *
import kern
from kern import srd, lo, hi, xcd_remap, Stamps, LdsQ, exp_acc, MB2, WSBYTES

KVT, YA, X1, X2, X3, ST1, ST3, KW = 0x0, 0x200000, 0x400000, 0x600000, 0x800000, 0xA00000, 0xA10000, 0xC00000
ROW_OUT_T2 = True
_LBL = 0
KV_T2 = False
QH, X0T = 0x1400000, 0x1600000
FUSE_X1 = False
def SG(n): return 102 if kern.DIAG else max(n, 72)

KV_PRIO = True
CODE_PREFETCH = 0
PFQ_CONV = False
KG_TAB = False
KV_WFIRST = False
KG_SMEM = False
PF_LATE = False
KG_FLUSH = False
PF_D = False
PF_K = False
TLB_WARM = False
DATA_PREFETCH = False
def k_kv(NP=1, nk=0, kfirst=False):
    a = Asm()
    if CODE_PREFETCH == 1:
        a(f"""s_cmp_ge_u32 s2, 8
s_cbranch_scc1 L_kv_nopf
s_getpc_b64 s[58:59]
L_pf_base:
v_lshlrev_b32 v1, 7, v0
v_cmp_gt_u32 vcc, L_code_end-L_pf_base-4, v1
s_and_saveexec_b64 s[60:61], vcc
s_cbranch_execz L_kv_pfdone
global_load_dword v40, v1, s[58:59]
L_kv_pfdone:
s_mov_b64 exec, s[60:61]""")
        if TLB_WARM:
            a("""s_load_dwordx4 s[4:7], s[0:1], 96
s_load_dwordx2 s[8:9], s[0:1], 120
s_load_dwordx2 s[10:11], s[0:1], 40
v_lshlrev_b32 v1, 15, v0
v_lshlrev_b32 v2, 12, v0
v_mov_b32 v3, 0
s_waitcnt lgkmcnt(0)
global_load_dword v41, v1, s[8:9]
global_load_dword v42, v2, s[6:7]
global_load_dword v43, v3, s[4:5]
global_load_dword v44, v3, s[10:11]""")
        a("L_kv_nopf:")
    if kfirst and nk:
        a(f"""s_add_u32 s60, s2, 256
s_sub_u32 s61, s2, {nk}
s_cmp_lt_u32 s2, {nk}
s_cselect_b32 s61, s60, s61
s_cmp_lt_u32 s2, {nk+256}
s_cselect_b32 s2, s61, s2""")
    a("""s_cmp_ge_u32 s2, 256
s_cbranch_scc1 L_kv_kgen
""" + ("s_setprio 3" if KV_PRIO else "") + """
s_load_dwordx4 s[4:7], s[0:1], 8
s_load_dwordx2 s[8:9], s[0:1], 24
s_load_dwordx2 s[10:11], s[0:1], 120
s_load_dwordx2 s[32:33], s[0:1], 0
s_load_dwordx2 s[34:35], s[0:1], 32
s_load_dwordx2 s[50:51], s[0:1], 40
s_load_dwordx2 s[52:53], s[0:1], 96""")
    st = Stamps(a, 0); st()
    xcd_remap(a, 3, 12)
    a("""v_and_b32 v1, 255, v0
v_lshrrev_b32 v2, 8, v0
s_lshl_b32 s13, s3, 3
v_lshl_add_u32 v3, v2, 2, s13
v_lshlrev_b32 v4, 10, v3
v_lshl_add_u32 v4, v1, 2, v4
v_subrev_u32 v5, 3072, v4
v_subrev_u32 v6, 2048, v4
v_subrev_u32 v7, 1024, v4
v_lshlrev_b32 v8, 4, v1
v_lshrrev_b32 v9, 2, v1
v_lshlrev_b32 v9, 15, v9
v_lshl_add_u32 v9, v3, 4, v9
v_and_b32 v21, 3, v1
v_lshl_add_u32 v9, v21, 2, v9
s_waitcnt lgkmcnt(0)""")
    srd(a, 16, 4, MB2); srd(a, 20, 6, MB2); srd(a, 24, 8, 4096); srd(a, 28, 10, WSBYTES)
    a("buffer_load_dwordx4 v[24:27], v8, s[24:27], 0 offen")
    if KV_WFIRST:
        a("s_waitcnt vmcnt(0)")
        for ch in range(2):
            lo(a, 28 + 4 * ch + 0, 24 + 2 * ch); hi(a, 28 + 4 * ch + 1, 24 + 2 * ch)
            lo(a, 28 + 4 * ch + 2, 25 + 2 * ch); hi(a, 28 + 4 * ch + 3, 25 + 2 * ch)
    a("""buffer_load_dword v10, v5, s[16:19], 0 offen
buffer_load_dword v11, v6, s[16:19], 0 offen
buffer_load_dword v12, v7, s[16:19], 0 offen
buffer_load_dword v13, v4, s[16:19], 0 offen
buffer_load_dword v14, v4, s[16:19], 0 offen offset:1024
buffer_load_dword v15, v4, s[16:19], 0 offen offset:2048
buffer_load_dword v16, v4, s[16:19], 0 offen offset:3072
buffer_load_dword v17, v4, s[20:23], 0 offen
buffer_load_dword v18, v4, s[20:23], 0 offen offset:1024
buffer_load_dword v19, v4, s[20:23], 0 offen offset:2048
buffer_load_dword v20, v4, s[20:23], 0 offen offset:3072""")
    npf = 0
    if FUSE_X1:
        srd(a, 36, 32, MB2); srd(a, 40, 34, MB2)
        for r in range(4):
            a(f"buffer_load_dword v{64+r}, v4, s[36:39], 0 offen offset:{1024*r}")
        a("""s_lshl_b32 s44, s3, 13
v_lshrrev_b32 v22, 6, v0
v_and_b32 v23, 7, v0
v_lshl_add_u32 v22, v22, 3, v23
v_lshlrev_b32 v22, 7, v22
s_mov_b64 exec, 0xff
buffer_load_dword v68, v22, s[40:43], s44 offen
s_mov_b64 exec, -1
v_and_b32 v75, 7, v0
v_add_u32 v75, s13, v75
v_lshlrev_b32 v75, 10, v75
v_lshrrev_b32 v76, 3, v0
v_lshl_add_u32 v76, v76, 4, v75
buffer_load_dwordx4 v[70:73], v76, s[36:39], 0 offen
buffer_load_dword v74, v75, s[36:39], 0 offen""")
        npf = 7
    elif DATA_PREFETCH and not PF_LATE:
        srd(a, 36, 32, MB2); srd(a, 40, 34, MB2)
        a("""s_lshl_b32 s44, s3, 13
v_lshrrev_b32 v22, 6, v0
v_and_b32 v23, 7, v0
v_lshl_add_u32 v22, v22, 3, v23
v_lshlrev_b32 v22, 7, v22
s_mov_b64 exec, 0xff
buffer_load_dword v64, v22, s[40:43], s44 offen
buffer_load_dword v65, v22, s[36:39], s44 offen
s_mov_b64 exec, -1""")
        npf = 2
        if PF_D:
            a("""s_lshl_b32 s45, s3, 2
s_add_u32 s50, s50, s45
s_addc_u32 s51, s51, 0
s_add_u32 s52, s52, s45
s_addc_u32 s53, s53, 0
s_load_dword s54, s[50:51], 0
s_load_dword s55, s[52:53], 0""")
    if not KV_WFIRST:
        a(f"s_waitcnt vmcnt({11+npf})")
        for ch in range(2):
            lo(a, 28 + 4 * ch + 0, 24 + 2 * ch); hi(a, 28 + 4 * ch + 1, 24 + 2 * ch)
            lo(a, 28 + 4 * ch + 2, 25 + 2 * ch); hi(a, 28 + 4 * ch + 3, 25 + 2 * ch)
    a(f"s_waitcnt vmcnt({4+npf})")
    for i in range(7):
        lo(a, 36 + i, 10 + i); hi(a, 44 + i, 10 + i)
    a(f"s_waitcnt vmcnt({npf})")
    if CODE_PREFETCH == 2:
        a("""s_cmp_ge_u32 s2, 8
s_cbranch_scc1 L_kv_nopf2
s_getpc_b64 s[58:59]
L_pf_base:
s_sub_u32 s58, s58, L_pf_base-kv_kernel
s_subb_u32 s59, s59, 0
v_lshlrev_b32 v22, 7, v0
v_min_u32 v22, L_code_end-kv_kernel-4, v22
global_load_dword v69, v22, s[58:59]""")
        if TLB_WARM:
            a("""s_load_dwordx2 s[48:49], s[0:1], 104
v_lshlrev_b32 v22, 15, v0
v_lshlrev_b32 v23, 12, v0
s_waitcnt lgkmcnt(0)
global_load_dword v67, v22, s[10:11]
global_load_dword v68, v23, s[48:49]""")
        a("L_kv_nopf2:")
    if DATA_PREFETCH and PF_LATE and not FUSE_X1:
        srd(a, 36, 32, MB2); srd(a, 40, 34, MB2)
        a("""s_lshl_b32 s44, s3, 13
v_lshrrev_b32 v22, 6, v0
v_and_b32 v23, 7, v0
v_lshl_add_u32 v22, v22, 3, v23
v_lshlrev_b32 v22, 7, v22
s_mov_b64 exec, 0xff
buffer_load_dword v64, v22, s[40:43], s44 offen""")
        if not PFQ_CONV: a("buffer_load_dword v65, v22, s[36:39], s44 offen")
        a("s_mov_b64 exec, -1")
    st()
    for r in range(4):
        for t in range(4):
            w = 3 - t
            a(f"v_mul_f32 v54, v{36+r+t}, v{28+w}")
            a(f"v_mul_f32 v55, v{44+r+t}, v{32+w}")
            a("v_cvt_pk_bf16_f32 v56, v54, v55")
            if t == 0:
                lo(a, 52, 56); hi(a, 53, 56)
            else:
                lo(a, 54, 56); hi(a, 55, 56)
                a("v_add_f32 v52, v52, v54")
                a("v_add_f32 v53, v53, v55")
                a("v_cvt_pk_bf16_f32 v56, v52, v53")
                lo(a, 52, 56); hi(a, 53, 56)
        lo(a, 54, 17 + r); hi(a, 55, 17 + r)
        a("v_mul_f32 v52, v52, v54")
        a("v_mul_f32 v53, v53, v55")
        a(f"v_cvt_pk_bf16_f32 v{60+r}, v52, v53")
        if not KV_T2: a(f"buffer_store_dword v{60+r}, v9, s[28:31], 0 offen offset:{16*r}")
    if KV_T2:
        a("""v_lshlrev_b32 v9, 13, v1
v_lshl_add_u32 v9, v3, 2, v9
buffer_store_dwordx4 v[60:63], v9, s[28:31], 0 offen""")
        if FUSE_X1:
            a(f"""s_mov_b32 s45, {X0T}
s_waitcnt vmcnt(4)
buffer_store_dwordx4 v[64:67], v9, s[28:31], s45 offen
s_waitcnt vmcnt(2)""")
            ln0_compute(a)
    st.finish(28)
    a(f"""s_endpgm
L_kv_kgen:
s_cmp_ge_u32 s2, {256+nk}
s_cbranch_scc1 L_kv_ln0""")
    nv = 72
    if nk:
        a("s_sub_u32 s55, s2, 256")
        st2 = Stamps(a, 0)
        nv = kgen_body(a, NP, st2, 55)
    a("""s_endpgm
L_kv_ln0:""")
    a("""L_kv_end:
s_endpgm""")
    return kernel_text("kv_kernel", a.text(), max(nv, 80), SG(64))

XLS = 4160
WL0 = 8 * XLS
WAS = 1152
def EX0(NP): return WL0 + 8 * NP * WAS
def CONV_LDS(NP): return EX0(NP) + 32768
SSETS = [[7, 4, 3, 0], [6, 5, 2, 1]]

def conv_body(a, kind, NP, st, E, dbuf):
    ex0 = EX0(NP)
    if kind == "A":
        a("s_load_dwordx4 s[4:7], s[0:1], 32")
    else:
        a("s_load_dwordx4 s[4:7], s[0:1], 96")
    st()
    xcd_remap(a, 3, 12)
    a("""v_lshrrev_b32 v1, 6, v0
v_and_b32 v2, 63, v0
v_lshlrev_b32 v3, 6, v0
v_lshlrev_b32 v14, 4, v0
v_readfirstlane_b32 s14, v1
s_lshr_b32 s13, s3, 2
s_lshl_b32 s13, s13, 15
s_and_b32 s12, s3, 3
s_lshl_b32 s12, s12, 2
s_add_u32 s13, s13, s12
s_lshl_b32 s15, s3, 2
s_waitcnt lgkmcnt(0)""")
    srd(a, 28, 10, WSBYTES)
    src = {"A": KVT, "B1": X1, "B2": X3}[kind]
    a(f"""s_lshl_b32 s13, s3, 13
s_add_u32 s32, s13, {src}
buffer_load_dwordx4 v[4:7], v14, s[28:31], s32 offen""")
    if kind == "A":
        srd(a, 16, 4, MB2)
        a("s_lshl_b32 s35, s3, 13")
        a("buffer_load_dwordx4 v[48:51], v14, s[16:19], s35 offen")
        if FUSE_X1:
            a(f"s_add_u32 s34, s13, {QH}")
            a("buffer_load_dwordx4 v[8:11], v14, s[28:31], s34 offen")
            a(f"s_add_u32 s34, s13, {X0T}")
            a("buffer_load_dwordx4 v[100:103], v14, s[28:31], s34 offen")
        a("s_add_u32 s6, s6, s15")
        a("s_addc_u32 s7, s7, 0")
        a("s_load_dword s33, s[6:7], 0")
    else:
        stt = {"B1": ST1, "B2": ST3}[kind]
        a(f"s_mov_b32 s34, {stt}")
        a("buffer_load_dwordx4 v[48:51], v14, s[28:31], s34 offen")
        a(f"s_lshl_b32 s35, s3, {12 + NP}")
        a(f"s_add_u32 s35, s35, {KW}")
        if NP == 2:
            a("v_lshlrev_b32 v60, 5, v0")
            a("buffer_load_dwordx4 v[52:55], v60, s[28:31], s35 offen")
            a("buffer_load_dwordx4 v[56:59], v60, s[28:31], s35 offen offset:16")
        else:
            a("buffer_load_dwordx4 v[52:55], v14, s[28:31], s35 offen")
        a("s_add_u32 s4, s4, s15")
        a("s_addc_u32 s5, s5, 0")
        a("s_load_dword s33, s[4:5], 0")
        if kind == "B2":
            srd(a, 20, 6, MB2)
    na = 8 * NP
    a(f"""v_mov_b32 v64, 0
v_mov_b32 v65, 0
v_mov_b32 v66, 0
v_mov_b32 v67, 0
v_lshrrev_b32 v61, 3, v0
v_mul_u32_u24 v61, {WAS}, v61
v_and_b32 v62, 7, v0
v_lshl_add_u32 v61, v62, 4, v61
v_cmp_gt_u32 vcc, {na*8}, v0
s_and_saveexec_b64 s[36:37], vcc
ds_write_b128 v61, v[64:67] offset:{WL0}
s_mov_b64 exec, s[36:37]
v_lshrrev_b32 v61, 1, v0
v_mul_u32_u24 v61, {XLS}, v61
v_and_b32 v62, 1, v0
v_lshl_add_u32 v61, v62, 4, v61
v_cmp_gt_u32 vcc, 16, v0
s_and_saveexec_b64 s[36:37], vcc
ds_write_b128 v61, v[64:67]
s_mov_b64 exec, s[36:37]
v_cmp_eq_u32 vcc, 0, v0
s_and_saveexec_b64 s[36:37], vcc""")
    for ch in range(2):
        b = ch * 4 * XLS
        a(f"ds_write_b16 v64, v64 offset:{b + 1*XLS + 32}")
        a(f"ds_write_b32 v64, v64 offset:{b + 2*XLS + 32}")
        a(f"ds_write_b32 v64, v64 offset:{b + 3*XLS + 32}")
        a(f"ds_write_b16 v64, v64 offset:{b + 3*XLS + 36}")
    a("""s_mov_b64 exec, s[36:37]
s_mov_b32 s38, 0x05040100
s_mov_b32 s39, 0x07060302""")
    a(f"""s_lshr_b32 s40, s14, 2
s_bfe_u32 s41, s14, 0x10001
s_lshl_b32 s41, s41, 1
s_lshl_b32 s42, s40, 2
s_add_u32 s42, s42, s41
s_mul_i32 s42, s42, {XLS}
s_add_u32 s42, s42, 32
s_mul_i32 s43, s40, {NP*4}
s_add_u32 s43, s43, s41
s_mul_i32 s43, s43, {WAS}
s_add_u32 s43, s43, {WL0 + 56}
v_lshrrev_b32 v70, 4, v2
v_and_b32 v71, 3, v2
v_bfe_u32 v72, v2, 2, 2
v_sub_u32 v71, v71, v72
v_lshlrev_b32 v71, 3, v71
v_lshl_add_u32 v71, v70, 6, v71
v_add_u32 v12, s42, v71
v_and_b32 v71, 15, v2
v_lshlrev_b32 v71, 3, v71
v_lshlrev_b32 v72, 4, v70
v_sub_u32 v71, v71, v72
v_add_u32 v13, s43, v71""")
    VXA, VWB, ACC = 12, 13, 16
    for i in range(16): a(f"v_mov_b32 v{ACC+i}, 0")
    if kind == "A":
        a(f"""v_lshrrev_b32 v61, 8, v0
v_mul_u32_u24 v61, {4*WAS}, v61
v_and_b32 v62, 255, v0
v_lshl_add_u32 v61, v62, 2, v61
s_waitcnt vmcnt({2 if FUSE_X1 else 0})""")
        st()
        XS = 4
        a(f"""v_perm_b32 v64, v50, v48, s38
v_perm_b32 v65, v50, v48, s39
v_perm_b32 v66, v51, v49, s38
v_perm_b32 v67, v51, v49, s39
ds_write_b32 v61, v64 offset:{WL0+128}
ds_write_b32 v61, v65 offset:{WL0+128+WAS}
ds_write_b32 v61, v66 offset:{WL0+128+2*WAS}
ds_write_b32 v61, v67 offset:{WL0+128+3*WAS}""")
    else:
        if NP == 2:
            a(f"""v_lshrrev_b32 v61, 5, v0
v_mul_u32_u24 v61, {WAS}, v61
v_and_b32 v62, 31, v0
v_lshl_add_u32 v61, v62, 5, v61
s_waitcnt vmcnt(2)""")
        else:
            a(f"""v_mul_u32_u24 v61, {WAS}, v1
v_lshl_add_u32 v61, v2, 4, v61
s_waitcnt vmcnt(1)""")
        st()
        for r in range(4):
            lo(a, 72, 48 + r); hi(a, 73, 48 + r)
            a("v_rcp_f32 v74, v73")
            lo(a, 75, 4 + r); hi(a, 76, 4 + r)
            a("v_sub_f32 v75, v75, v72")
            a("v_sub_f32 v76, v76, v72")
            a("v_cvt_pk_bf16_f32 v77, v75, v76")
            lo(a, 75, 77); hi(a, 76, 77)
            for x in (75, 76):
                a(f"v_mul_f32 v78, v{x}, v74")
                a(f"v_fma_f32 v79, -v78, v73, v{x}")
                a(f"v_fma_f32 v{x}, v79, v74, v78")
            a(f"v_cvt_pk_bf16_f32 v{8+r}, v75, v76")
        XS = 8
    a("v_lshlrev_b32 v62, 3, v0")
    for ch in range(2):
        sel = "s38" if ch == 0 else "s39"
        b = ch * 4 * XLS + 32
        e0, e1, o1 = 64 + 4 * ch, 65 + 4 * ch, 66 + 4 * ch
        a(f"""v_perm_b32 v{e0}, v{XS+1}, v{XS}, {sel}
v_perm_b32 v{e1}, v{XS+3}, v{XS+2}, {sel}
v_perm_b32 v{o1}, v{XS+2}, v{XS+1}, {sel}
ds_write_b64 v62, v[{e0}:{e1}] offset:{b}
ds_write_b16 v62, v{e0} offset:{b + XLS + 2}
ds_write_b32 v62, v{o1} offset:{b + XLS + 4}
ds_write_b16_d16_hi v62, v{e1} offset:{b + XLS + 8}
ds_write_b32 v62, v{e0} offset:{b + 2*XLS + 4}
ds_write_b32 v62, v{e1} offset:{b + 2*XLS + 8}
ds_write_b16 v62, v{e0} offset:{b + 3*XLS + 6}
ds_write_b32 v62, v{o1} offset:{b + 3*XLS + 8}
ds_write_b16_d16_hi v62, v{e1} offset:{b + 3*XLS + 12}""")
    if kind != "A":
        a(f"""s_waitcnt vmcnt(0)
ds_write_b128 v61, v[52:55] offset:{WL0+128}""")
        if NP == 2:
            a(f"ds_write_b128 v61, v[56:59] offset:{WL0+128+16}")
    a("""s_waitcnt lgkmcnt(0)
s_barrier""")
    st()
    a(f"""s_bitcmp1_b32 s14, 0
s_cbranch_scc1 {E}_S1""")
    F0 = 32
    FSZ = 32 + 32 * NP
    for S in range(2):
        if S == 1: a(f"{E}_S1:")
        q = LdsQ(a)
        tiles = SSETS[S]
        pairs = [(aa, c - aa, ti) for aa in range(8) for ti, c in enumerate(tiles) if c >= aa]
        steps = [(dl, rho) for dl in range(2) for rho in range(2)]
        def regA(si, aa): return F0 + (FSZ * (si & 1) if dbuf else 0) + 4 * aa
        def regB(si, e, p): return F0 + (FSZ * (si & 1) if dbuf else 0) + 32 + 32 * p + 4 * e
        def rdA(si, aa):
            dl, rho = steps[si]
            return [(f"ds_read_b64_tr_b16 v[{regA(si,aa)+2*hh}:{regA(si,aa)+2*hh+1}], v{VXA} offset:{512*aa + 256*rho + 32*hh + dl*XLS}",
                     [regA(si, aa) + 2 * hh, regA(si, aa) + 2 * hh + 1]) for hh in range(2)]
        def rdB(si, e, p):
            dl, rho = steps[si]
            return [(f"ds_read_b64 v[{regB(si,e,p)+2*hh}:{regB(si,e,p)+2*hh+1}], v{VWB} offset:{128*e + 64*(1-rho) + 8*(1-hh) + (p*4+dl)*WAS}",
                     [regB(si, e, p) + 2 * hh, regB(si, e, p) + 2 * hh + 1]) for hh in range(2)]
        def order(si):
            return pairs
        def frag_first_use(ordr):
            seen, out = set(), []
            for (aa, e, ti) in ordr:
                for f in (("A", aa), ("B", e)):
                    if f not in seen: seen.add(f); out.append(f)
            return out
        def reads_for(si, f):
            if f[0] == "A": return rdA(si, f[1])
            r = []
            for p in range(NP): r += rdB(si, f[1], p)
            return r
        ordrs = [pairs]
        for si in range(3):
            if dbuf:
                ordrs.append(pairs); continue
            lu = {}
            for k, (aa, e, ti) in enumerate(ordrs[si]):
                lu[("A", aa)] = k; lu[("B", e)] = k
            ordrs.append(sorted(pairs, key=lambda p: max(lu[("A", p[0])], lu[("B", p[1])])))
        for f in frag_first_use(ordrs[0]):
            for t, d in reads_for(0, f): q.issue(t, d)
        for si in range(4):
            o = ordrs[si]
            pend = frag_first_use(ordrs[si + 1]) if si < 3 else []
            lastuse = {}
            for k, (aa, e, ti) in enumerate(o):
                lastuse[("A", aa)] = k; lastuse[("B", e)] = k
            for k, (aa, e, ti) in enumerate(o):
                for p in range(NP):
                    A = regA(si, aa); B = regB(si, e, p); D = ACC + 4 * ti
                    q.need(list(range(A, A + 4)) + list(range(B, B + 4)))
                    a(f"v_mfma_f32_16x16x32_bf16 v[{D}:{D+3}], v[{A}:{A+3}], v[{B}:{B+3}], v[{D}:{D+3}]")
                if dbuf:
                    if pend:
                        f = pend.pop(0)
                        for t, d in reads_for(si + 1, f): q.issue(t, d)
                else:
                    for f in [f for f in pend if lastuse[f] <= k]:
                        pend.remove(f)
                        for t, d in reads_for(si + 1, f): q.issue(t, d)
            for f in pend:
                for t, d in reads_for(si + 1, f): q.issue(t, d)
        a(f"""v_and_b32 v32, 15, v2
v_lshrrev_b32 v33, 4, v2
v_lshlrev_b32 v34, 2, v33
v_xor_b32 v32, v32, v34
v_lshl_add_u32 v32, v33, 4, v32
v_lshlrev_b32 v32, 4, v32
s_lshr_b32 s44, s14, 1
s_lshl_b32 s44, s44, 13
v_add_u32 v32, s44, v32""")
        for ti, c in enumerate(tiles):
            a(f"ds_write_b128 v32, v[{ACC+4*ti}:{ACC+4*ti+3}] offset:{ex0 + c*1024}")
        if S == 0: a(f"s_branch {E}_J")
    a(f"{E}_J:")
    a(f"""v_lshrrev_b32 v32, 2, v2
v_and_b32 v33, 3, v2
v_lshlrev_b32 v34, 2, v33
v_xor_b32 v32, v32, v34
v_lshl_add_u32 v32, v33, 4, v32
v_lshlrev_b32 v32, 4, v32
s_lshl_b32 s44, s14, 10
s_add_u32 s44, s44, {ex0}
v_add_u32 v32, s44, v32
s_lshl_b32 s46, s33, 16
s_and_b32 s47, s33, 0xffff0000
s_waitcnt lgkmcnt(0)""")
    st()
    a("s_barrier")
    st()
    for k in range(4):
        a(f"ds_read_b128 v[{36+4*k}:{39+4*k}], v32 offset:{k*8192}")
    a("s_waitcnt lgkmcnt(0)")
    for r in range(4):
        a(f"v_add_f32 v52, v{36+r}, v{40+r}")
        a(f"v_add_f32 v53, v{44+r}, v{48+r}")
        a("v_cvt_pk_bf16_f32 v60, v52, v53")
        lo(a, 61, 60); hi(a, 62, 60)
        lo(a, 63, XS + r); hi(a, 64, XS + r)
        a("v_mul_f32 v63, s46, v63")
        a("v_mul_f32 v64, s47, v64")
        a("v_cvt_pk_bf16_f32 v60, v63, v64")
        lo(a, 63, 60); hi(a, 64, 60)
        a("v_add_f32 v61, v61, v63")
        a("v_add_f32 v62, v62, v64")
        if kind == "A":
            a(f"v_cvt_pk_bf16_f32 v{68+r}, v61, v62")
            if FUSE_X1:
                if r == 0: a("s_waitcnt vmcnt(0)")
                lo(a, 61, 68 + r); hi(a, 62, 68 + r)
                lo(a, 63, 8 + r); hi(a, 64, 8 + r)
                a("v_mul_f32 v61, v61, v63")
                a("v_mul_f32 v62, v62, v64")
                a("v_cvt_pk_bf16_f32 v60, v61, v62")
                lo(a, 61, 60); hi(a, 62, 60)
                lo(a, 63, 100 + r); hi(a, 64, 100 + r)
                a("v_add_f32 v61, v61, v63")
                a("v_add_f32 v62, v62, v64")
                a(f"v_cvt_pk_bf16_f32 v{72+r}, v61, v62")
                if r == 3:
                    a(f"s_add_u32 s34, s13, {X1}")
                    a("buffer_store_dwordx4 v[72:75], v14, s[28:31], s34 offen")
        else:
            a("v_cvt_pk_bf16_f32 v60, v61, v62")
            lo(a, 61, 60); hi(a, 62, 60)
            lo(a, 63, 4 + r); hi(a, 64, 4 + r)
            a("v_add_f32 v61, v61, v63")
            a("v_add_f32 v62, v62, v64")
            a(f"v_cvt_pk_bf16_f32 v{68+r}, v61, v62")
        if kind in ("A", "B1"):
            if r == 3:
                dst = YA if kind == "A" else X2
                a("s_lshl_b32 s32, s3, 13")
                a(f"s_add_u32 s32, s32, {dst}")
                a("buffer_store_dwordx4 v[68:71], v14, s[28:31], s32 offen")
        else:
            if r == 0: a("v_lshlrev_b32 v59, 12, v0")
            a(f"buffer_store_dword v{68+r}, v59, s[20:23], s15 offen offset:{1024*r}")
    st()
    st.finish(28)
    return max(F0 + FSZ * (2 if dbuf else 1), 104)

PXLS = 4160
PWL0 = 2 * PXLS
def PCO(NP): return 8 * NP * WAS + 128 - (8 * NP * WAS) % 256
def PEX0(NP): return (PWL0 + PCO(NP) + 8 * NP * WAS + 16 + 255) // 256 * 256
PWSTR = 8192 + 16
def PCONV_LDS(NP): return PEX0(NP) + 8 * PWSTR

def sw_barrier(a, cnt_addr, target, vA, vB, sT, lbl):
    a(f"""s_waitcnt lgkmcnt(0)
v_mov_b32 v{vA}, {cnt_addr}
v_mov_b32 v{vB}, 1
s_mov_b64 exec, 1
ds_add_u32 v{vA}, v{vB}
s_mov_b64 exec, -1
{lbl}:
ds_read_b32 v{vB}, v{vA}
s_waitcnt lgkmcnt(0)
v_readfirstlane_b32 s{sT}, v{vB}
s_cmp_ge_u32 s{sT}, {target}
s_cbranch_scc1 {lbl}_done
s_sleep 1
s_branch {lbl}
{lbl}_done:""")

def conv_body_p(a, kind, NP, st, E, sbuf=False, swbar=None, cbase=0):
    ex0 = PEX0(NP) + cbase; CO = PCO(NP)
    PWL0 = globals()['PWL0'] + cbase
    F0 = 48
    FSZ = 32 + 32 * NP
    XR = F0 + (1 if sbuf else 2) * FSZ
    VW, VC, VP, VC2, VP2 = XR, XR + 1, XR + 2, XR + 3, XR + 4
    TD, XU = XR + (6 if sbuf else 8), XR + 16
    if kind == "A":
        a("s_load_dwordx4 s[4:7], s[0:1], 32")
    else:
        a("s_load_dwordx4 s[4:7], s[0:1], 96")
    st()
    xcd_remap(a, 3, 12)
    a("""v_lshrrev_b32 v1, 6, v0
v_and_b32 v2, 63, v0
v_lshlrev_b32 v14, 4, v0
v_readfirstlane_b32 s14, v1
s_lshl_b32 s13, s3, 13
s_lshl_b32 s15, s3, 2
s_waitcnt lgkmcnt(0)""")
    srd(a, 28, 10, WSBYTES)
    src = {"A": KVT, "B1": X1, "B2": X3}[kind]
    a(f"s_add_u32 s32, s13, {src}")
    a("buffer_load_dwordx4 v[4:7], v14, s[28:31], s32 offen")
    if kind == "A":
        srd(a, 16, 4, MB2)
        a("buffer_load_dwordx4 v[48:51], v14, s[16:19], s13 offen")
        if FUSE_X1:
            a(f"s_add_u32 s34, s13, {QH}")
            a("buffer_load_dwordx4 v[8:11], v14, s[28:31], s34 offen")
            a(f"s_add_u32 s34, s13, {X0T}")
            a(f"buffer_load_dwordx4 v[{XR+24}:{XR+27}], v14, s[28:31], s34 offen")
        a("s_add_u32 s6, s6, s15")
        a("s_addc_u32 s7, s7, 0")
        a("s_load_dword s33, s[6:7], 0")
    else:
        stt = {"B1": ST1, "B2": ST3}[kind]
        a(f"s_mov_b32 s34, {stt}")
        a("buffer_load_dwordx4 v[48:51], v14, s[28:31], s34 offen")
        a(f"s_lshl_b32 s35, s3, {12 + NP}")
        a(f"s_add_u32 s35, s35, {KW}")
        if NP == 2:
            a("v_lshlrev_b32 v60, 5, v0")
            a("buffer_load_dwordx4 v[52:55], v60, s[28:31], s35 offen")
            a("buffer_load_dwordx4 v[56:59], v60, s[28:31], s35 offen offset:16")
        else:
            a("buffer_load_dwordx4 v[52:55], v14, s[28:31], s35 offen")
        a("s_add_u32 s4, s4, s15")
        a("s_addc_u32 s5, s5, 0")
        a("s_load_dword s33, s[4:5], 0")
        if kind == "B2":
            srd(a, 20, 6, MB2)
    na = 8 * NP
    a(f"""v_mov_b32 v64, 0
v_mov_b32 v65, 0
v_mov_b32 v66, 0
v_mov_b32 v67, 0
v_lshrrev_b32 v61, 4, v0
v_mul_u32_u24 v61, {WAS}, v61
v_and_b32 v62, 15, v0
v_lshl_add_u32 v61, v62, 3, v61
v_cmp_gt_u32 vcc, {na*16}, v0
s_and_saveexec_b64 s[36:37], vcc
ds_write_b64 v61, v[64:65] offset:{PWL0}
ds_write_b64 v61, v[64:65] offset:{PWL0 + CO + 8}
s_mov_b64 exec, s[36:37]
v_lshrrev_b32 v61, 1, v0
v_mul_u32_u24 v61, {PXLS}, v61
v_and_b32 v62, 1, v0
v_lshl_add_u32 v61, v62, 4, v61
v_cmp_gt_u32 vcc, 4, v0
s_and_saveexec_b64 s[36:37], vcc
ds_write_b128 v61, v[64:67] offset:{cbase}
s_mov_b64 exec, s[36:37]
s_mov_b32 s38, 0x05040100
s_mov_b32 s39, 0x07060302""")
    a(f"""s_lshr_b32 s40, s14, 2
s_and_b32 s41, s14, 3
s_mul_i32 s42, s40, {PXLS}
s_add_u32 s42, s42, {32 + cbase}
s_mul_i32 s43, s40, {NP*4}
s_add_u32 s43, s43, s41
s_mul_i32 s43, s43, {WAS}
s_add_u32 s43, s43, {PWL0 + 56}
v_lshrrev_b32 v70, 4, v2
v_and_b32 v71, 3, v2
v_bfe_u32 v72, v2, 2, 2
v_sub_u32 v71, v71, v72
v_lshlrev_b32 v71, 3, v71
v_lshl_add_u32 v71, v70, 6, v71
v_add_u32 v12, s42, v71
v_and_b32 v71, 15, v2
v_lshlrev_b32 v71, 3, v71
v_lshlrev_b32 v72, 4, v70
v_sub_u32 v71, v71, v72
v_add_u32 v13, s43, v71
v_and_b32 v71, 1, v2
v_xor_b32 v71, 1, v71
v_mul_u32_u24 v71, {CO + 8}, v71
v_add_u32 v13, v13, v71""")
    VXA, VWB, ACC = 12, 13, 16
    for i in range(32): a(f"v_mov_b32 v{ACC+i}, 0")
    a(f"""v_and_b32 v70, 15, v2
v_lshrrev_b32 v71, 4, v2
v_lshlrev_b32 v72, 2, v71
v_xor_b32 v70, v70, v72
v_lshl_add_u32 v70, v71, 4, v70
v_lshlrev_b32 v70, 4, v70
s_mul_i32 s44, s14, {PWSTR}
s_add_u32 s44, s44, {ex0}
v_add_u32 v{VW}, s44, v70
v_mov_b32 v70, s44
s_mov_b64 exec, 1
ds_write_b128 v70, v[64:67] offset:8192
s_mov_b64 exec, -1
v_lshrrev_b32 v70, 2, v2
v_and_b32 v71, 3, v2
v_lshlrev_b32 v72, 2, v71
v_xor_b32 v70, v70, v72
v_lshl_add_u32 v70, v71, 4, v70
v_lshlrev_b32 v70, 4, v70
s_lshl_b32 s44, s14, 10
s_add_u32 s44, s44, {ex0}
v_add_u32 v{VC}, s44, v70
v_subrev_u32 v73, 1, v2
v_lshrrev_b32 v71, 2, v73
v_and_b32 v73, 3, v73
v_lshlrev_b32 v72, 2, v73
v_xor_b32 v71, v71, v72
v_lshl_add_u32 v71, v73, 4, v71
v_lshlrev_b32 v71, 4, v71
v_add_u32 v71, s44, v71
s_sub_u32 s45, s44, {1024 - 51*16}
s_cmp_eq_u32 s14, 0
s_cselect_b32 s45, {ex0 + 8192}, s45
v_mov_b32 v72, s45
v_cmp_eq_u32 vcc, 0, v2
v_cndmask_b32 v{VP}, v71, v72, vcc
v_add_u32 v{VC2}, {4*PWSTR}, v{VC}
v_add_u32 v{VP2}, {4*PWSTR}, v{VP}
v_lshlrev_b32 v62, 3, v0""")
    if kind == "A":
        a(f"""v_lshrrev_b32 v61, 8, v0
v_mul_u32_u24 v61, {4*WAS}, v61
v_and_b32 v63, 255, v0
v_lshl_add_u32 v61, v63, 2, v61
s_waitcnt vmcnt({3 if FUSE_X1 else 1})""")
        st()
        XS = 4
    else:
        if NP == 2:
            a(f"""v_lshrrev_b32 v61, 5, v0
v_mul_u32_u24 v61, {WAS}, v61
v_and_b32 v63, 31, v0
v_lshl_add_u32 v61, v63, 5, v61
s_waitcnt vmcnt(2)""")
        else:
            a(f"""v_mul_u32_u24 v61, {WAS}, v1
v_lshl_add_u32 v61, v2, 4, v61
s_waitcnt vmcnt(1)""")
        st()
        for r in range(4):
            T = 72 + 8 * r
            lo(a, T, 48 + r); hi(a, T + 1, 48 + r)
            a(f"v_rcp_f32 v{T+2}, v{T+1}")
            lo(a, XU + 2 * r, 4 + r); hi(a, XU + 2 * r + 1, 4 + r)
        for r in range(4):
            T = 72 + 8 * r
            a(f"v_sub_f32 v{T+3}, v{XU+2*r}, v{T}")
            a(f"v_sub_f32 v{T+4}, v{XU+2*r+1}, v{T}")
            a(f"v_cvt_pk_bf16_f32 v{T+5}, v{T+3}, v{T+4}")
            lo(a, T + 3, T + 5); hi(a, T + 4, T + 5)
            for x in (T + 3, T + 4):
                a(f"v_mul_f32 v{T+6}, v{x}, v{T+2}")
                a(f"v_fma_f32 v{T+7}, -v{T+6}, v{T+1}, v{x}")
                a(f"v_fma_f32 v{x}, v{T+7}, v{T+2}, v{T+6}")
            a(f"v_cvt_pk_bf16_f32 v{8+r}, v{T+3}, v{T+4}")
        XS = 8
    a(f"""v_perm_b32 v64, v{XS+1}, v{XS}, s38
v_perm_b32 v65, v{XS+3}, v{XS+2}, s38
v_perm_b32 v66, v{XS+1}, v{XS}, s39
v_perm_b32 v67, v{XS+3}, v{XS+2}, s39
ds_write_b64 v62, v[64:65] offset:{32 + cbase}
ds_write_b64 v62, v[66:67] offset:{PXLS+32+cbase}
s_waitcnt vmcnt({2 if (kind == "A" and FUSE_X1) else 0})""")
    if kind == "A":
        a("""v_perm_b32 v68, v50, v48, s38
v_perm_b32 v69, v50, v48, s39
v_perm_b32 v70, v51, v49, s38
v_perm_b32 v71, v51, v49, s39""")
        for f in range(4):
            a(f"ds_write_b32 v61, v{68+f} offset:{PWL0+128+f*WAS}")
            a(f"ds_write_b32 v61, v{68+f} offset:{PWL0+128+f*WAS+CO+8}")
    else:
        for h in range(NP):
            b = 52 + 4 * h
            a(f"ds_write_b128 v61, v[{b}:{b+3}] offset:{PWL0+128+16*h}")
            a(f"ds_write_b64 v61, v[{b}:{b+1}] offset:{PWL0+128+16*h+CO+8}")
            a(f"ds_write_b64 v61, v[{b+2}:{b+3}] offset:{PWL0+128+16*h+CO+16}")
    if kind == "A" and PFQ_CONV:
        a("s_load_dwordx2 s[50:51], s[0:1], 0")
    a("""s_waitcnt lgkmcnt(0)
s_lshl_b32 s46, s33, 16
s_and_b32 s47, s33, 0xffff0000""")
    if kind == "A" and PFQ_CONV:
        srd(a, 52, 50, MB2)
        a(f"""v_and_b32 v15, 7, v0
v_lshl_add_u32 v15, v1, 3, v15
v_lshlrev_b32 v15, 7, v15
s_mov_b64 exec, 0xff
buffer_load_dword v{XR+5}, v15, s[52:55], s13 offen
s_mov_b64 exec, -1""")
    if swbar is None: a("s_barrier")
    else: sw_barrier(a, swbar, 8, 64, 65, 48, f"{E}_sb1")
    st()
    FA = [F0, F0 + (0 if sbuf else FSZ)]
    FB = [F0 + 32, F0 + (0 if sbuf else FSZ) + 32]
    q = LdsQ(a)
    def rdA(rho, aa):
        return [(f"ds_read_b64_tr_b16 v[{FA[rho]+4*aa+2*hh}:{FA[rho]+4*aa+2*hh+1}], v{VXA} offset:{512*aa + 256*rho + 32*(1-hh)}",
                 [FA[rho] + 4 * aa + 2 * hh, FA[rho] + 4 * aa + 2 * hh + 1]) for hh in range(2)]
    def rdB(rho, e, p):
        d = FB[rho] + 32 * p + 4 * e
        return [(f"ds_read_b128 v[{d}:{d+3}], v{VWB} offset:{128*e + 64*(1-rho) + p*4*WAS}", list(range(d, d + 4)))]
    order = [(aa, c - aa, c) for c in range(8) for aa in range(c + 1)]
    def reads(rho):
        seen, r = set(), []
        for (aa, e, c) in order:
            if ("A", aa) not in seen: seen.add(("A", aa)); r += rdA(rho, aa)
            if ("B", e) not in seen:
                seen.add(("B", e))
                for p in range(NP): r += rdB(rho, e, p)
        return r
    def mf(rho, aa, e, c, p):
        A = FA[rho] + 4 * aa; B = FB[rho] + 32 * p + 4 * e; D = ACC + 4 * c
        q.need(list(range(A, A + 4)) + list(range(B, B + 4)))
        a(f"v_mfma_f32_16x16x32_bf16 v[{D}:{D+3}], v[{A}:{A+3}], v[{B}:{B+3}], v[{D}:{D+3}]")
    fill = []
    for r in range(4):
        fill += [f"v_lshlrev_b32 v{TD+2*r}, 16, v{XS+r}", f"v_and_b32 v{TD+2*r+1}, 0xffff0000, v{XS+r}",
                 f"v_mul_f32 v{TD+2*r}, s46, v{TD+2*r}", f"v_mul_f32 v{TD+2*r+1}, s47, v{TD+2*r+1}",
                 f"v_cvt_pk_bf16_f32 v15, v{TD+2*r}, v{TD+2*r+1}",
                 f"v_lshlrev_b32 v{TD+2*r}, 16, v15", f"v_and_b32 v{TD+2*r+1}, 0xffff0000, v15"]
    if kind == "B2": fill.append("v_lshlrev_b32 v3, 12, v0")
    QU = XR + 28
    if kind == "A" and FUSE_X1:
        fill.append("s_waitcnt vmcnt(0)")
        for r in range(4):
            fill += [f"v_lshlrev_b32 v{QU+2*r}, 16, v{8+r}", f"v_and_b32 v{QU+2*r+1}, 0xffff0000, v{8+r}",
                     f"v_lshlrev_b32 v{XU+2*r}, 16, v{XR+24+r}", f"v_and_b32 v{XU+2*r+1}, 0xffff0000, v{XR+24+r}"]
    if not sbuf:
        for t, d in reads(0): q.issue(t, d)
        r1 = reads(1)
        for (aa, e, c) in order:
            for p in range(NP):
                mf(0, aa, e, c, p)
                if r1:
                    tt, dd = r1.pop(0); q.issue(tt, dd)
                elif fill: a(fill.pop(0))
        for tt, dd in r1: q.issue(tt, dd)
    else:
        order0 = sorted(order, key=lambda x: (min(x[0], x[1]), x[2]))
        def frs(o):
            seen, out = set(), []
            for (aa, e, c) in o:
                for f in (("A", aa), ("B", e)):
                    if f not in seen: seen.add(f); out.append(f)
            return out
        def rds(rho, f):
            if f[0] == "A": return rdA(rho, f[1])
            r = []
            for p in range(NP): r += rdB(rho, f[1], p)
            return r
        for f in frs(order0):
            for t, d in rds(0, f): q.issue(t, d)
        lastuse = {}
        for k, (aa, e, c) in enumerate(order0):
            lastuse[("A", aa)] = k; lastuse[("B", e)] = k
        pend = frs(order)
        for k, (aa, e, c) in enumerate(order0):
            for p in range(NP): mf(0, aa, e, c, p)
            dead = [f for f in pend if lastuse[f] <= k]
            for f in dead:
                pend.remove(f)
                for t, d in rds(1, f): q.issue(t, d)
            if not dead and fill: a(fill.pop(0))
        assert not pend
    pendw = []
    for (aa, e, c) in order:
        for p in range(NP):
            mf(1, aa, e, c, p)
            if fill: a(fill.pop(0))
            pendw = [(cc, n - 1) for cc, n in pendw]
            for cc, n in [x for x in pendw if x[1] <= 0]:
                q.issue(f"ds_write_b128 v{VW}, v[{ACC+4*cc}:{ACC+4*cc+3}] offset:{cc*1024}", [])
            pendw = [x for x in pendw if x[1] > 0]
        if aa == c: pendw.append((c, 5))
    for f in fill: a(f)
    for cc, n in pendw:
        q.issue(f"ds_write_b128 v{VW}, v[{ACC+4*cc}:{ACC+4*cc+3}] offset:{cc*1024}", [])
    a("s_waitcnt lgkmcnt(0)")
    st()
    if swbar is None: a("s_barrier")
    else: sw_barrier(a, swbar + 4, 8, 48, 49, 48, f"{E}_sb2")
    st()
    for w in range(8):
        b = VC if w < 4 else VC2
        a(f"ds_read_b128 v[{48+4*w}:{51+4*w}], v{b} offset:{(w&3)*PWSTR}")
        if w & 3:
            b = VP if w < 4 else VP2
            a(f"ds_read_b128 v[{80+4*w}:{83+4*w}], v{b} offset:{(w&3)*PWSTR}")
    for ch in range(2):
        a(f"s_waitcnt lgkmcnt({7 if ch == 0 else 0})")
        cur = lambda d, i: 48 + 4 * (4 * ch + d) + i
        prv = lambda d, i: 80 + 4 * (4 * ch + d) + i
        for r in range(4):
            t = [cur(0, r)]
            for d in range(1, 4):
                t.append(cur(d, r - d) if r - d >= 0 else prv(d, 4 + r - d))
            y = 16 + 4 * ch + r
            a(f"v_add_f32 v{y}, v{t[0]}, v{t[1]}")
            a(f"v_add_f32 v{24+r}, v{t[2]}, v{t[3]}")
            a(f"v_add_f32 v{y}, v{y}, v{24+r}")
    for r in range(4):
        T = 28 + 4 * r
        a(f"v_cvt_pk_bf16_f32 v{T}, v{16+r}, v{20+r}")
        lo(a, T + 1, T); hi(a, T + 2, T)
        a(f"v_add_f32 v{T+1}, v{T+1}, v{TD+2*r}")
        a(f"v_add_f32 v{T+2}, v{T+2}, v{TD+2*r+1}")
        if kind == "A":
            a(f"v_cvt_pk_bf16_f32 v{44+r}, v{T+1}, v{T+2}")
            if FUSE_X1:
                lo(a, T + 1, 44 + r); hi(a, T + 2, 44 + r)
                a(f"v_mul_f32 v{T+1}, v{T+1}, v{QU+2*r}")
                a(f"v_mul_f32 v{T+2}, v{T+2}, v{QU+2*r+1}")
                a(f"v_cvt_pk_bf16_f32 v{T}, v{T+1}, v{T+2}")
                lo(a, T + 1, T); hi(a, T + 2, T)
                a(f"v_add_f32 v{T+1}, v{T+1}, v{XU+2*r}")
                a(f"v_add_f32 v{T+2}, v{T+2}, v{XU+2*r+1}")
                a(f"v_cvt_pk_bf16_f32 v{48+r}, v{T+1}, v{T+2}")
                if r == 3:
                    a(f"s_add_u32 s34, s13, {X1}")
                    a("buffer_store_dwordx4 v[48:51], v14, s[28:31], s34 offen")
        else:
            a(f"v_cvt_pk_bf16_f32 v{T}, v{T+1}, v{T+2}")
            lo(a, T + 1, T); hi(a, T + 2, T)
            a(f"v_add_f32 v{T+1}, v{T+1}, v{XU+2*r}")
            a(f"v_add_f32 v{T+2}, v{T+2}, v{XU+2*r+1}")
            a(f"v_cvt_pk_bf16_f32 v{44+r}, v{T+1}, v{T+2}")
        if kind in ("A", "B1"):
            if r == 3:
                dst = YA if kind == "A" else X2
                a(f"s_add_u32 s32, s13, {dst}")
                a("buffer_store_dwordx4 v[44:47], v14, s[28:31], s32 offen")
        else:
            a(f"buffer_store_dword v{44+r}, v3, s[20:23], s15 offen offset:{1024*r}")
    st()
    st.finish(28)
    return (XR + 14) if sbuf else (XR + 36)

def k_conv(kind, NP, dbuf=True, optp=False):
    name = {"A": "convA_kernel", "B1": "convB1_kernel", "B2": "convB2_kernel"}[kind]
    if kind == "A": NP = 1
    a = Asm()
    E = f"L_{name}"
    a(f"""s_cmp_ge_u32 s2, 256
s_cbranch_scc1 {E}_end
s_load_dwordx2 s[10:11], s[0:1], 120""")
    st = Stamps(a, {"A": 2, "B1": 4, "B2": 6}[kind])
    nv = conv_body_p(a, kind, NP, st, E) if optp else conv_body(a, kind, NP, st, E, dbuf)
    a(f"""{E}_end:
s_endpgm""")
    return kernel_text(name, a.text(), nv, SG(64))

def row_reduce(a, S1, S2, T, waddr, ldsoff):
    a(f"""v_permlane32_swap_b32 v{S1}, v{S2}
v_add_f32 v{S1}, v{S1}, v{S2}
v_mov_b32 v{T}, v{S1}
v_permlane16_swap_b32 v{S1}, v{T}
v_add_f32 v{S1}, v{S1}, v{T}
v_add_f32_dpp v{S1}, v{S1}, v{S1} row_ror:8 row_mask:0xf bank_mask:0xf
s_mov_b64 exec, s[48:49]
ds_write_b32 v{waddr}, v{S1} offset:{ldsoff}
s_mov_b64 exec, -1
s_waitcnt lgkmcnt(0)
s_barrier""")

def row_stats(a, raddr, ldsoff, piv, T, o_mean, o_m, o_den):
    a(f"""ds_read_b128 v[{T}:{T+3}], v{raddr} offset:{ldsoff}
ds_read_b128 v[{T+4}:{T+7}], v{raddr} offset:{ldsoff+16}
ds_read_b128 v[{T+8}:{T+11}], v{raddr} offset:{ldsoff+256}
ds_read_b128 v[{T+12}:{T+15}], v{raddr} offset:{ldsoff+272}
s_waitcnt lgkmcnt(2)""")
    for b in (0, 8):
        if b == 8: a("s_waitcnt lgkmcnt(0)")
        a(f"""v_add_f32 v{T+b}, v{T+b}, v{T+b+1}
v_add_f32 v{T+b+2}, v{T+b+2}, v{T+b+3}
v_add_f32 v{T+b+4}, v{T+b+4}, v{T+b+5}
v_add_f32 v{T+b+6}, v{T+b+6}, v{T+b+7}
v_add_f32 v{T+b}, v{T+b}, v{T+b+2}
v_add_f32 v{T+b+4}, v{T+b+4}, v{T+b+6}
v_add_f32 v{T+b}, v{T+b}, v{T+b+4}""")
    a(f"""v_mul_f32 v{T}, 0x3b000000, v{T}
v_mul_f32 v{T+1}, 0x3b000000, v{T+8}
v_add_f32 v{o_mean}, v{piv}, v{T}
v_fma_f32 v{T+1}, -v{T}, v{T}, v{T+1}
v_max_f32 v{T+1}, 0, v{T+1}
v_cvt_pk_bf16_f32 v{T+2}, v{o_mean}, v{T+1}
v_lshlrev_b32 v{o_m}, 16, v{T+2}
v_and_b32 v{T+1}, 0xffff0000, v{T+2}
v_add_f32 v{T+1}, 0x3727c5ac, v{T+1}
v_cvt_pk_bf16_f32 v{T+1}, v{T+1}, v{T+1}
v_and_b32 v{T+1}, 0xffff0000, v{T+1}
v_sqrt_f32 v{T+1}, v{T+1}
v_cvt_pk_bf16_f32 v{T+1}, v{T+1}, v{T+1}
v_and_b32 v{o_den}, 0xffff0000, v{T+1}""")

def row_partial(a, P):
    for k in range(8):
        a(f"v_sub_f32 v{48+k}, v{24+k}, v{P}")
    a("v_add_f32 v40, v48, v49")
    a("v_mul_f32 v41, v48, v48")
    a("v_mul_f32 v42, v49, v49")
    for k in range(2, 8, 2):
        a(f"v_add_f32 v43, v{48+k}, v{49+k}")
        a(f"v_fmac_f32 v41, v{48+k}, v{48+k}")
        a(f"v_fmac_f32 v42, v{49+k}, v{49+k}")
        a("v_add_f32 v40, v40, v43")
    a("v_add_f32 v41, v41, v42")

def row_setup(a, rb_sgpr):
    a(f"""v_and_b32 v1, 7, v0
v_lshrrev_b32 v2, 3, v0
s_lshl_b32 s13, s{rb_sgpr}, 3
v_add_u32 v3, s13, v1
v_lshlrev_b32 v9, 15, v2
v_lshl_add_u32 v8, v3, 2, v9
s_mov_b32 s48, 0xff
s_mov_b32 s49, 0xff
v_lshlrev_b32 v11, 5, v1
v_bfe_u32 v10, v0, 5, 1
v_lshl_add_u32 v10, v10, 8, v11
v_lshrrev_b32 v5, 6, v0
v_lshl_add_u32 v10, v5, 2, v10""")

def ln0_compute(a):
    row_setup(a, 3)
    a("v_lshlrev_b32 v20, 16, v74")
    for k in range(4):
        lo(a, 24 + 2 * k, 70 + k); hi(a, 25 + 2 * k, 70 + k)
    row_partial(a, 20)
    row_reduce(a, 40, 41, 42, 10, 0)
    row_stats(a, 11, 0, 20, 48, 21, 22, 23)
    a("v_rcp_f32 v36, v23")
    for k in range(4):
        x0, x1 = 24 + 2 * k, 25 + 2 * k
        a(f"v_sub_f32 v51, v{x0}, v22")
        a(f"v_sub_f32 v52, v{x1}, v22")
        a("v_cvt_pk_bf16_f32 v53, v51, v52")
        lo(a, 51, 53); hi(a, 52, 53)
        for x in (51, 52):
            a(f"v_mul_f32 v54, v{x}, v36")
            a(f"v_fma_f32 v55, -v54, v23, v{x}")
            a(f"v_fma_f32 v{x}, v55, v36, v54")
        a(f"v_cvt_pk_bf16_f32 v{56+k}, v51, v52")
        a(f"s_mov_b32 s34, {QH + 8192*k}")
        a(f"buffer_store_dword v{56+k}, v8, s[28:31], s34 offen")

def k_stat1():
    name = "row1_kernel"
    E = f"L_{name}_end"
    a = Asm()
    a(f"""s_cmp_ge_u32 s2, 256
s_cbranch_scc1 {E}
s_load_dwordx2 s[10:11], s[0:1], 120""")
    st = Stamps(a, 3); st()
    xcd_remap(a, 3, 12)
    row_setup(a, 3)
    a("s_waitcnt lgkmcnt(0)")
    srd(a, 28, 10, WSBYTES)
    a(f"""s_mov_b32 s33, {X1}
v_lshlrev_b32 v7, 2, v3""")
    for k in range(4):
        a(f"s_add_u32 s34, s33, {8192*k}")
        a(f"buffer_load_dword v{16+k}, v8, s[28:31], s34 offen")
    a("""buffer_load_dword v20, v7, s[28:31], s33 offen
s_waitcnt vmcnt(0)
v_lshlrev_b32 v20, 16, v20""")
    st()
    for k in range(4):
        lo(a, 24 + 2 * k, 16 + k); hi(a, 25 + 2 * k, 16 + k)
    row_partial(a, 20)
    row_reduce(a, 40, 41, 42, 10, 0)
    a(f"""v_cmp_gt_u32 vcc, 8, v0
s_and_saveexec_b64 s[36:37], vcc
s_cbranch_execz {E}""")
    row_stats(a, 11, 0, 20, 64, 60, 61, 62)
    a(f"""v_lshrrev_b32 v61, 16, v61
v_or_b32 v61, v61, v62
s_mov_b32 s35, {ST1}
buffer_store_dword v61, v7, s[28:31], s35 offen""")
    st.finish(28)
    a(f"""{E}:
s_endpgm""")
    return kernel_text(name, a.text(), 80, SG(56))

def k_row(kind, NP=1, nk=0, ch0=0):
    name = {"R1": "row1_kernel", "R2": "row2_kernel"}[kind]
    E = f"L_{name}_end"
    a = Asm()
    if nk:
        a(f"""s_add_u32 s60, s2, 256
s_sub_u32 s61, s2, {nk}
s_cmp_lt_u32 s2, {nk}
s_cselect_b32 s61, s60, s61
s_cmp_lt_u32 s2, {nk+256}
s_cselect_b32 s2, s61, s2""")
    a(f"""s_cmp_ge_u32 s2, 256
s_cbranch_scc1 {E}_kgen
s_setprio 3
s_load_dwordx2 s[10:11], s[0:1], 120
s_load_dwordx2 s[4:5], s[0:1], 0""")
    st = Stamps(a, {"R1": 3, "R2": 5}[kind]); st()
    xcd_remap(a, 3, 12)
    a("""v_and_b32 v1, 7, v0
v_lshrrev_b32 v2, 3, v0
s_lshl_b32 s13, s3, 3
v_add_u32 v3, s13, v1
v_lshlrev_b32 v9, 15, v2
v_lshl_add_u32 v8, v3, 2, v9
v_lshl_add_u32 v9, v3, 4, v9
s_waitcnt lgkmcnt(0)""")
    srd(a, 28, 10, WSBYTES)
    a(f"s_mov_b32 s32, {YA}")
    if kind == "R1":
        srd(a, 16, 4, MB2)
        a("""v_lshlrev_b32 v7, 10, v3
v_lshl_add_u32 v4, v2, 4, v7
buffer_load_dwordx4 v[16:19], v4, s[16:19], 0 offen
buffer_load_dword v20, v7, s[16:19], 0 offen""")
    else:
        a(f"""s_mov_b32 s33, {X2}
v_lshlrev_b32 v7, 2, v3""")
        for k in range(4):
            a(f"s_add_u32 s34, s33, {8192*k}")
            a(f"buffer_load_dword v{16+k}, v8, s[28:31], s34 offen")
        a("buffer_load_dword v20, v7, s[28:31], s33 offen")
    for k in range(4):
        a(f"s_add_u32 s34, s32, {8192*k}")
        a(f"buffer_load_dword v{12+k}, v8, s[28:31], s34 offen")
    if PF_K:
        a(f"""s_lshl_b32 s44, s3, {12+NP}
s_add_u32 s44, s44, {KW}
v_lshrrev_b32 v22, 6, v0
v_lshl_add_u32 v22, v22, 3, v1
v_lshlrev_b32 v22, 7, v22
s_mov_b64 exec, 0xff
buffer_load_dword v38, v22, s[28:31], s44 offen
s_mov_b64 exec, -1""")
    a("""s_mov_b32 s48, 0xff
s_mov_b32 s49, 0xff
v_lshlrev_b32 v11, 5, v1
v_bfe_u32 v10, v0, 5, 1
v_lshl_add_u32 v10, v10, 8, v11
v_lshrrev_b32 v5, 6, v0
v_lshl_add_u32 v10, v5, 2, v10
""" + f"s_waitcnt vmcnt({5 if PF_K else 4})" + """
v_lshlrev_b32 v20, 16, v20""")
    st()
    for k in range(4):
        lo(a, 24 + 2 * k, 16 + k); hi(a, 25 + 2 * k, 16 + k)
    def partial(P):
        for k in range(8):
            a(f"v_sub_f32 v{48+k}, v{24+k}, v{P}")
        a("v_add_f32 v40, v48, v49")
        a("v_mul_f32 v41, v48, v48")
        a("v_mul_f32 v42, v49, v49")
        for k in range(2, 8, 2):
            a(f"v_add_f32 v43, v{48+k}, v{49+k}")
            a(f"v_fmac_f32 v41, v{48+k}, v{48+k}")
            a(f"v_fmac_f32 v42, v{49+k}, v{49+k}")
            a("v_add_f32 v40, v40, v43")
        a("v_add_f32 v41, v41, v42")
    partial(20)
    row_reduce(a, 40, 41, 42, 10, 0)
    row_stats(a, 11, 0, 20, 48, 21, 22, 23)
    st()
    a("v_rcp_f32 v36, v23")
    a(f"s_waitcnt vmcnt({1 if PF_K else 0})")
    for k in range(4):
        x0, x1 = 24 + 2 * k, 25 + 2 * k
        a(f"v_sub_f32 v51, v{x0}, v22")
        a(f"v_sub_f32 v52, v{x1}, v22")
        a("v_cvt_pk_bf16_f32 v53, v51, v52")
        lo(a, 51, 53); hi(a, 52, 53)
        for x in (51, 52):
            a(f"v_mul_f32 v54, v{x}, v36")
            a(f"v_fma_f32 v55, -v54, v23, v{x}")
            a(f"v_fma_f32 v{x}, v55, v36, v54")
        a("v_cvt_pk_bf16_f32 v53, v51, v52")
        lo(a, 51, 53); hi(a, 52, 53)
        lo(a, 54, 12 + k); hi(a, 55, 12 + k)
        a("v_mul_f32 v51, v51, v54")
        a("v_mul_f32 v52, v52, v55")
        a("v_cvt_pk_bf16_f32 v53, v51, v52")
        lo(a, 51, 53); hi(a, 52, 53)
        a(f"v_add_f32 v51, v51, v{x0}")
        a(f"v_add_f32 v52, v52, v{x1}")
        a(f"v_cvt_pk_bf16_f32 v{56+k}, v51, v52")
        lo(a, x0, 56 + k); hi(a, x1, 56 + k)
    dst = X1 if kind == "R1" else X3
    if ROW_OUT_T2:
        for k in range(4):
            a(f"s_mov_b32 s34, {dst + 8192*k}")
            a(f"buffer_store_dword v{56+k}, v8, s[28:31], s34 offen")
    else:
        a(f"s_mov_b32 s34, {dst}")
        a("buffer_store_dwordx4 v[56:59], v9, s[28:31], s34 offen")
    st()
    partial(21)
    row_reduce(a, 40, 41, 42, 10, 512)
    stt = ST1 if kind == "R1" else ST3
    a(f"""v_cmp_gt_u32 vcc, 8, v0
s_and_saveexec_b64 s[36:37], vcc
s_cbranch_execz {E}""")
    row_stats(a, 11, 512, 21, 64, 60, 61, 62)
    a(f"""v_lshrrev_b32 v61, 16, v61
v_or_b32 v61, v61, v62
v_lshlrev_b32 v7, 2, v3
s_mov_b32 s35, {stt}
buffer_store_dword v61, v7, s[28:31], s35 offen""")
    st.finish(28)
    a(f"""s_endpgm
{E}_kgen:
s_cmp_ge_u32 s2, {256+nk}
s_cbranch_scc1 {E}""")
    nv = 80
    if nk:
        a(f"s_add_u32 s55, s2, {ch0-256}")
        st2 = Stamps(a, 3)
        nv = kgen_body(a, NP, st2, 55)
    a(f"""{E}:
s_endpgm""")
    return kernel_text(name, a.text(), nv, SG(64))

KPART = 0
KPRM = 8 * 3072
KTAB0 = KPRM + 8 * 256
KGEN_LDS = KTAB0 + 2176 * 4
def kgen_body(a, NP, st, ch_sgpr, lbase=0, swbar=None):
    KPART, KPRM, KTAB0 = globals()["KPART"] + lbase, globals()["KPRM"] + lbase, globals()["KTAB0"] + lbase
    if KG_FLUSH: a("s_setreg_imm32_b32 hwreg(HW_REG_MODE, 4, 2), 0")
    a(f"""s_load_dwordx8 s[4:11], s[0:1], 56
s_load_dwordx2 s[12:13], s[0:1], 88
s_load_dwordx2 s[14:15], s[0:1], 120
v_and_b32 v1, 15, v0
v_bfe_u32 v2, v0, 4, 2
v_lshrrev_b32 v3, 6, v0
s_lshl_b32 s3, s{ch_sgpr}, 8
v_lshlrev_b32 v4, 5, v3
v_lshl_add_u32 v4, v1, 1, v4
s_mov_b32 s50, 0x3fb8aa3b
s_mov_b32 s51, 0x32a57060
s_mov_b32 s52, 0x3f317218
s_mov_b32 s53, 0x3e22f983
s_mov_b32 s54, 0x07060302
v_readfirstlane_b32 s56, v3
s_waitcnt lgkmcnt(0)""")
    st()
    PS = [16, 24, 40, 64]
    if KG_SMEM:
        a("""s_lshl_b32 s57, s56, 5
s_add_u32 s3, s3, s57""")
        for i in range(4):
            a(f"""s_add_u32 s{4+2*i}, s{4+2*i}, s3
    s_addc_u32 s{5+2*i}, s{5+2*i}, 0
    s_load_dwordx8 s[{PS[i]}:{PS[i]+7}], s[{4+2*i}:{5+2*i}], 0""")
        srd(a, 32, 14, WSBYTES)

    else:
        for i in range(4): srd(a, 16 + 4 * i, 4 + 2 * i, 131072)
        srd(a, 32, 14, WSBYTES)
        for i in range(4):
            a(f"buffer_load_ushort v{8+i}, v4, s[{16+4*i}:{19+4*i}], s3 offen")
    a(f"""s_lshr_b32 s36, s{ch_sgpr}, 1
s_lshl_b32 s36, s36, 2
s_add_u32 s12, s12, s36
s_addc_u32 s13, s13, 0
s_load_dword s37, s[12:13], 0""")
    global _LBL
    _LBL += 1
    if KG_TAB:
        a(f"""s_getpc_b64 s[58:59]
L_ktref{_LBL}:
s_add_u32 s58, s58, L_ktab-L_ktref{_LBL}
s_addc_u32 s59, s59, 0
v_lshlrev_b32 v28, 4, v1
global_load_dwordx4 v[24:27], v28, s[58:59]""")
    else:
        a(f"""v_lshrrev_b32 v28, 3, v1
v_lshlrev_b32 v28, 7, v28
v_and_b32 v29, 7, v1
v_or_b32 v24, v28, v29
v_lshrrev_b32 v28, 2, v1
v_lshlrev_b32 v28, 7, v28
v_and_b32 v29, 3, v1
v_lshl_add_u32 v28, v29, 1, v28
v_add_u32 v28, 256, v28
v_bfe_u32 v29, v1, 1, 2
v_lshlrev_b32 v29, 7, v29
v_and_b32 v30, 1, v1
v_lshl_add_u32 v29, v30, 2, v29
v_add_u32 v29, 512, v29
v_cmp_gt_u32 vcc, 8, v1
v_cndmask_b32 v25, v29, v28, vcc
v_lshlrev_b32 v28, 7, v1
v_add_u32 v28, 1024, v28
v_min_u32 v26, 2048, v28
v_lshlrev_b32 v27, 3, v1
v_cvt_f32_u32 v24, v24
v_cvt_f32_u32 v25, v25
v_cvt_f32_u32 v26, v26
v_cvt_f32_u32 v27, v27""")
    a(f"""v_lshlrev_b32 v5, 8, v3
v_lshl_add_u32 v6, v1, 4, v5
v_lshl_add_u32 v5, v2, 6, v5
s_waitcnt lgkmcnt(0)
s_lshl_b32 s38, s37, 16
s_and_b32 s39, s37, 0xffff0000
s_bitcmp1_b32 s{ch_sgpr}, 0
s_cselect_b32 s38, s39, s38
v_mov_b32 v28, s38""")
    exp_acc(a, 29, 28, 30, 31)
    a("""v_cvt_pk_bf16_f32 v29, v29, v29
v_and_b32 v29, 0xffff0000, v29""")
    if not KG_SMEM:
        a("s_waitcnt vmcnt(0)")
        st()
        for i in range(4): lo(a, 8 + i, 8 + i)
    else:
        st()
        for i in range(4):
            for kk in range(8):
                a(f"v_writelane_b32 v{8+i}, s{PS[i]+kk}, {kk}")
        a("""v_lshrrev_b32 v16, 1, v1
v_lshlrev_b32 v16, 2, v16
v_and_b32 v17, 1, v1
v_xor_b32 v17, 1, v17
v_lshlrev_b32 v17, 4, v17""")
        for i in range(4): a(f"ds_bpermute_b32 v{8+i}, v16, v{8+i}")
        a("s_waitcnt lgkmcnt(0)")
        for i in range(4):
            a(f"v_lshlrev_b32 v{8+i}, v17, v{8+i}")
            a(f"v_and_b32 v{8+i}, 0xffff0000, v{8+i}")
    exp_acc(a, 12, 8, 30, 31)
    a(f"""v_cvt_pk_bf16_f32 v12, v12, v12
v_and_b32 v12, 0xffff0000, v12
v_mul_f32 v12, v12, v29
v_mul_f32 v12, 0xbfb8aa3b, v12
v_mul_f32 v13, v9, v29
v_mul_f32 v13, s53, v13
v_mul_f32 v14, v10, v29
v_mul_f32 v15, v11, v29
v_add_f32 v14, v14, v14
v_add_f32 v15, v15, v15
ds_write_b128 v6, v[12:15] offset:{KPRM}
s_waitcnt lgkmcnt(0)""")
    a("s_waitcnt vmcnt(0)")
    st()
    a("v_mov_b32 v7, 0x07060302")
    tmp = list(range(16, 24)) + list(range(28, 44))
    XS_ = [44, 45, 46, 47]
    for bt in range(2):
        for mm in range(2):
            a(f"ds_read_b128 v[{8+4*mm}:{11+4*mm}], v5 offset:{KPRM + 16*(2*bt+mm)}")
        a("s_waitcnt lgkmcnt(0)")
        items = [(mm, T) for mm in range(2) for T in range(4)]
        Er = {it: tmp[3 * k] for k, it in enumerate(items)}
        Sr = {it: tmp[3 * k + 1] for k, it in enumerate(items)}
        Cr = {it: tmp[3 * k + 2] for k, it in enumerate(items)}
        for it in items: a(f"v_mul_f32 v{Sr[it]}, v{9+4*it[0]}, v{24+it[1]}")
        for it in items: a(f"v_mul_f32 v{Er[it]}, v{8+4*it[0]}, v{24+it[1]}")
        for it in items: a(f"v_fract_f32 v{Sr[it]}, v{Sr[it]}")
        for it in items: a(f"v_exp_f32 v{Er[it]}, v{Er[it]}")
        for it in items: a(f"v_cos_f32 v{Cr[it]}, v{Sr[it]}")
        for it in items: a(f"v_sin_f32 v{Sr[it]}, v{Sr[it]}")
        for it in items:
            if it[1] < 3:
                a(f"v_mul_f32 v{Cr[it]}, v{Cr[it]}, v{Er[it]}")
                a(f"v_mul_f32 v{Sr[it]}, v{Sr[it]}, v{Er[it]}")
        cols = [it for it in items if it[1] == 3]
        for n, it in enumerate(cols):
            a(f"v_mul_f32 v{XS_[2*n]}, v{10+4*it[0]}, v{Er[it]}")
            a(f"v_mul_f32 v{Er[it]}, v{11+4*it[0]}, v{Er[it]}")
        for n, it in enumerate(cols):
            a(f"v_mul_f32 v{XS_[2*n+1]}, v{Er[it]}, v{Sr[it]}")
            a(f"v_mul_f32 v{Er[it]}, v{Er[it]}, v{Cr[it]}")
        for n, it in enumerate(cols):
            a(f"v_fma_f32 v{Cr[it]}, v{XS_[2*n]}, v{Cr[it]}, -v{XS_[2*n+1]}")
            a(f"v_fma_f32 v{Sr[it]}, -v{XS_[2*n]}, v{Sr[it]}, -v{Er[it]}")
        def HL(it):
            m = 2 * bt + it[0]
            return (48 + 4 * it[1] + m, 60 + 4 * it[1] + m) if it[1] < 3 else (72 + m, 76 + m)
        for it in items: a(f"v_perm_b32 v{HL(it)[0]}, v{Sr[it]}, v{Cr[it]}, v7")
        for it in items: a(f"v_and_b32 v{Er[it]}, 0xffff0000, v{Cr[it]}")
        for it in items: a(f"v_sub_f32 v{Cr[it]}, v{Cr[it]}, v{Er[it]}")
        for it in items: a(f"v_and_b32 v{Er[it]}, 0xffff0000, v{Sr[it]}")
        for it in items: a(f"v_sub_f32 v{Sr[it]}, v{Sr[it]}, v{Er[it]}")
        for it in items: a(f"v_cvt_pk_bf16_f32 v{HL(it)[1]}, v{Cr[it]}, v{Sr[it]}")
    st()
    if KG_TAB:
        a("""v_lshlrev_b32 v16, 4, v0
global_load_dwordx4 v[8:11], v16, s[58:59] offset:256""")
    for T in range(3):
        D = 32 + 4 * T
        a(f"v_mfma_f32_16x16x32_bf16 v[{D}:{D+3}], v[{60+4*T}:{63+4*T}], v[72:75], 0")
        a(f"v_mfma_f32_16x16x32_bf16 v[{D}:{D+3}], v[{48+4*T}:{51+4*T}], v[76:79], v[{D}:{D+3}]")
        a(f"v_mfma_f32_16x16x32_bf16 v[{D}:{D+3}], v[{48+4*T}:{51+4*T}], v[72:75], v[{D}:{D+3}]")
    a("""v_and_b32 v30, 63, v0
v_lshlrev_b32 v30, 4, v30
v_mul_u32_u24 v31, 3072, v3
v_add_u32 v31, v31, v30""")
    a("""v_and_b32 v7, 3, v0
v_lshrrev_b32 v5, 2, v0""")
    if not KG_TAB:
        a("v_lshl_add_u32 v4, v5, 3, v7")
        for it in range(2):
            a(f"v_add_u32 v{8+2*it}, {1024*it}, v4")
            a(f"v_add_u32 v{9+2*it}, {1024*it+4}, v4")
        for k in range(4): a(f"v_cvt_f32_u32 v{8+k}, v{8+k}")
        for k in range(0, 4, 2):
            a(f"v_cvt_pk_bf16_f32 v17, v{8+k}, v{9+k}")
            lo(a, 8 + k, 17); hi(a, 9 + k, 17)
        for k in range(4):
            a(f"v_cvt_u32_f32 v{8+k}, v{8+k}")
            a(f"v_lshlrev_b32 v{8+k}, 2, v{8+k}")
    a(f"""s_lshl_b32 s42, s{ch_sgpr}, {11+NP}
s_add_u32 s42, s42, {KW}
v_lshlrev_b32 v4, 10, v7
v_lshl_add_u32 v4, v5, 2, v4""")
    for T in range(3):
        a(f"ds_write_b128 v31, v[{32+4*T}:{35+4*T}] offset:{KPART + 1024*T}")
    st()
    _LBL += 1
    L = f"L_kg{_LBL}"
    if swbar is None:
        a("""s_waitcnt lgkmcnt(0)
s_barrier""")
    else: sw_barrier(a, swbar, 8, 64, 65, 58, f"{L}_sb1")
    st()
    a(f"""s_cmp_ge_u32 s56, 3
s_cbranch_scc1 {L}_skip
s_lshl_b32 s57, s56, 10
v_add_u32 v30, s57, v30""")
    for w in range(8):
        a(f"ds_read_b128 v[{32+4*w}:{35+4*w}], v30 offset:{KPART + 3072*w}")
    a("v_lshlrev_b32 v65, 5, v1")
    a("s_waitcnt lgkmcnt(0)")
    for r in range(4):
        a(f"""v_add_f32 v{32+r}, v{32+r}, v{36+r}
v_add_f32 v{40+r}, v{40+r}, v{44+r}
v_add_f32 v{48+r}, v{48+r}, v{52+r}
v_add_f32 v{56+r}, v{56+r}, v{60+r}
v_add_f32 v{32+r}, v{32+r}, v{40+r}
v_add_f32 v{48+r}, v{48+r}, v{56+r}
v_add_f32 v{32+r}, v{32+r}, v{48+r}""")
    a(f"""s_cmp_eq_u32 s56, 1
s_cbranch_scc1 {L}_t1
s_cmp_eq_u32 s56, 2
s_cbranch_scc1 {L}_t2
v_lshrrev_b32 v64, 1, v2
v_lshlrev_b32 v64, 9, v64
v_and_b32 v66, 1, v2
v_lshl_add_u32 v64, v66, 4, v64
v_add_u32 v64, v65, v64
ds_write_b128 v64, v[32:35] offset:{KTAB0}
s_branch {L}_skip
{L}_t1:
v_lshlrev_b32 v64, 9, v2
v_add_u32 v64, 1024, v64
v_lshlrev_b32 v66, 10, v2
v_cmp_gt_u32 vcc, 2, v2
v_cndmask_b32 v64, v66, v64, vcc
v_add_u32 v64, v65, v64
ds_write_b32 v64, v32 offset:{KTAB0}
v_mov_b32 v67, 16
v_cndmask_b32 v66, v67, 8, vcc
v_add_u32 v66, v64, v66
ds_write_b32 v66, v33 offset:{KTAB0}
v_mov_b32 v67, 512
v_cndmask_b32 v66, v67, 16, vcc
v_add_u32 v66, v64, v66
ds_write_b32 v66, v34 offset:{KTAB0}
v_mov_b32 v67, 528
v_cndmask_b32 v66, v67, 24, vcc
v_add_u32 v66, v64, v66
ds_write_b32 v66, v35 offset:{KTAB0}
s_branch {L}_skip
{L}_t2:
v_lshlrev_b32 v64, 11, v2
v_add_u32 v64, v65, v64
v_cmp_gt_u32 vcc, 3, v2
s_and_saveexec_b64 s[40:41], vcc
ds_write_b32 v64, v32 offset:{KTAB0+4096}
s_mov_b64 exec, s[40:41]
v_cmp_gt_u32 vcc, 2, v2
s_and_saveexec_b64 s[40:41], vcc
ds_write_b32 v64, v33 offset:{KTAB0+4608}
ds_write_b32 v64, v34 offset:{KTAB0+5120}
ds_write_b32 v64, v35 offset:{KTAB0+5632}
s_mov_b64 exec, s[40:41]
{L}_skip:""")
    if swbar is None:
        a("""s_waitcnt lgkmcnt(0)
s_barrier""")
    else: sw_barrier(a, swbar + 4, 8, 64, 65, 58, f"{L}_sb2")
    st()
    if KG_TAB: a("s_waitcnt vmcnt(0)")
    for k in range(4):
        a(f"ds_read_b32 v{20+k}, v{8+k} offset:{KTAB0}")
    a("s_waitcnt lgkmcnt(0)")
    for it in range(2):
        a(f"v_cvt_pk_bf16_f32 v{16+it}, v{20+2*it}, v{21+2*it}")
        a(f"buffer_store_dword v{16+it}, v4, s[32:35], s42 offen offset:{512*it}")
        if NP == 2:
            lo(a, 24, 16 + it); hi(a, 25, 16 + it)
            a(f"v_sub_f32 v24, v{20+2*it}, v24")
            a(f"v_sub_f32 v25, v{21+2*it}, v25")
            a(f"v_cvt_pk_bf16_f32 v{18+it}, v24, v25")
    if NP == 2:
        a("s_add_u32 s42, s42, 4096")
        for it in range(2):
            a(f"buffer_store_dword v{18+it}, v4, s[32:35], s42 offen offset:{512*it}")
    st.finish(32)
    return 80

def k_front(NP, nk=256, ch0=256, kfirst=False):
    name = "front_kernel"
    a = Asm()
    E = f"L_{name}"
    if kfirst and nk:
        a(f"""s_add_u32 s60, s2, 256
s_sub_u32 s61, s2, {nk}
s_cmp_lt_u32 s2, {nk}
s_cselect_b32 s61, s60, s61
s_cmp_lt_u32 s2, {nk+256}
s_cselect_b32 s2, s61, s2""")
    a(f"""s_cmp_ge_u32 s2, 256
s_cbranch_scc1 {E}_kgen
s_setprio 3
s_load_dwordx2 s[10:11], s[0:1], 120""")
    st = Stamps(a, 2)
    nv1 = conv_body(a, "A", 1, st, E, False)
    a(f"""s_endpgm
{E}_kgen:
s_cmp_ge_u32 s2, {256+nk}
s_cbranch_scc1 {E}_end
s_add_u32 s55, s2, {ch0-256}""")
    st2 = Stamps(a, 1)
    nv2 = kgen_body(a, NP, st2, 55)
    a(f"""{E}_end:
s_endpgm""")
    return kernel_text(name, a.text(), max(nv1, nv2), SG(64))

def SLDS(): return PCONV_LDS(1) + KGEN_LDS + 64
def k_convA_kgen(NP, ch0):
    name = "convA_kernel"
    a = Asm()
    E = f"L_{name}"
    cnt = PCONV_LDS(1) + KGEN_LDS
    a(f"""s_cmp_ge_u32 s2, 256
s_cbranch_scc1 {E}_end
v_mov_b32 v1, {cnt}
v_mov_b32 v2, 0
v_mov_b32 v3, 0
v_mov_b32 v4, 0
v_mov_b32 v5, 0
v_cmp_eq_u32 vcc, 0, v0
s_and_saveexec_b64 s[4:5], vcc
ds_write_b128 v1, v[2:5]
s_mov_b64 exec, s[4:5]
v_lshrrev_b32 v1, 9, v0
s_nop 0
v_readfirstlane_b32 s6, v1
s_waitcnt lgkmcnt(0)
s_barrier
s_cmp_eq_u32 s6, 1
s_cbranch_scc1 {E}_kgen
s_setprio 3
s_load_dwordx2 s[10:11], s[0:1], 120""")
    st = Stamps(a, 2)
    nv1 = conv_body_p(a, "A", 1, st, E, sbuf=True, swbar=cnt, cbase=KGEN_LDS)
    a(f"""s_endpgm
{E}_kgen:
v_and_b32 v0, 511, v0
s_add_u32 s55, s2, {ch0}""")
    st2 = Stamps(a, 1)
    nv2 = kgen_body(a, NP, st2, 55, lbase=0, swbar=cnt + 8)
    a(f"""{E}_end:
s_endpgm""")
    assert max(nv1, nv2) <= 128, (nv1, nv2)
    return kernel_text(name, a.text(), max(nv1, nv2), SG(64))

def ktab_text():
    import struct, numpy as np
    out = [".p2align 8", "L_ktab:"]
    f2u = lambda x: struct.unpack("<I", struct.pack("<f", float(x)))[0]
    for i in range(16):
        p0 = ((i >> 3) << 7) | (i & 7)
        p1 = 256 + ((i >> 2) << 7) + ((i & 3) << 1) if i < 8 else 512 + (((i >> 1) & 3) << 7) + ((i & 1) << 2)
        p2 = min(1024 + 128 * i, 2048)
        out.append(".long " + ", ".join(hex(f2u(x)) for x in (p0, p1, p2, 8 * i)))
    def rne(l):
        u = f2u(l); u = (u + 0x7FFF + ((u >> 16) & 1)) & 0xFFFF0000
        return int(struct.unpack("<f", struct.pack("<I", u))[0])
    for t in range(512):
        f, n2 = t & 3, t >> 2
        ls = [8 * n2 + f, 8 * n2 + f + 4, 8 * n2 + f + 1024, 8 * n2 + f + 1028]
        out.append(".long " + ", ".join(str(4 * rne(l)) for l in ls))
    return "\n".join(out)
```

```python
import sys
import kern
from asmlib import *
def build(path, NP=2, merged=True, diag=False, dbufB=True, nk1=256, kf1=False, kf2=False, nk3=0, optp=True, kvprio=True, stmod='', pf=0, dpf=False, tlb=False, fx1=False, pfd=False, pfk=False, optS=False, pflate=False, wfirst=False, ktab=False, pfq=False, pfo=False, epf=False):
    kern.DIAG = diag
    import kern2 as k2
    k2.ROW_OUT_T2 = optp
    k2.KV_T2 = True
    k2.KV_PRIO = kvprio
    k2.CODE_PREFETCH = pf
    k2.DATA_PREFETCH = dpf
    k2.TLB_WARM = tlb
    k2.FUSE_X1 = fx1
    k2.PF_D = pfd; k2.PF_K = pfk
    k2.PF_LATE = pflate
    k2.KV_WFIRST = wfirst
    k2.KG_TAB = ktab
    k2.PFQ_CONV = pfq
    k2.PF_OUT = pfo
    k2.EARLY_PF = epf
    hdr = [l.rstrip("\n") for l in open("header.txt") if "Override launch" not in l and "grid=ceil" not in l]
    FL = max(k2.CONV_LDS(1), k2.KGEN_LDS)
    BL = k2.PCONV_LDS(NP) if optp else k2.CONV_LDS(NP)
    ks = [k2.k_kv(NP, nk1, kf1)]
    L = [("kv_kernel", 256 + nk1, 512, k2.KGEN_LDS if nk1 else 1024)]
    if optS:
        ks.append(k2.k_convA_kgen(NP, nk1)); L.append(("convA_kernel", 256, 1024, k2.SLDS()))
    elif nk1 + nk3 == 512:
        ks.append(k2.k_conv("A", 1, True, True)); L.append(("convA_kernel", 256, 512, k2.PCONV_LDS(1)))
    else:
      ks.append(k2.k_front(NP, 512 - nk1 - nk3, nk1, kf2)); L.append(("front_kernel", 256 + 512 - nk1 - nk3, 512, FL))
    ks += [(k2.k_stat1() if fx1 else k2.k_row("R1", NP, nk3, 512 - nk3)), k2.k_conv("B1", NP, dbufB, optp), k2.k_row("R2", NP), k2.k_conv("B2", NP, dbufB, optp)]
    L += [("row1_kernel", 256 + nk3, 512, k2.KGEN_LDS if nk3 else 1024), ("convB1_kernel", 256, 512, BL), ("row2_kernel", 256, 512, 1024), ("convB2_kernel", 256, 512, BL)]
    txt = file_text(hdr, L, ks)
    if ktab:
        txt = txt.replace("L_code_end:\n    s_endpgm\n", "    s_endpgm\n" + k2.ktab_text() + "\nL_code_end:\n    s_endpgm\n")
    if stmod:
        import re
        txt = re.sub(r"(buffer_store_dword\S* [^\n]*)", lambda m: m.group(1) + " " + stmod, txt)
    open(path, "w").write(txt)
if __name__ == "__main__":
    build("v15.s", NP=1, kf1=True, nk1=512, pf=2, dpf=True, pflate=True, wfirst=True, kvprio=False)
    build("v19.s", NP=1, kf1=True, nk1=512, pf=2, dpf=True, pflate=True, wfirst=True, kvprio=False, epf=True)
```

```python
from asmlib import *
import kern
from kern import srd, lo, hi, xcd_remap, Stamps, LdsQ, exp_acc, MB2, WSBYTES

KVT, YA, X1, X2, X3, ST1, ST3, KW = 0x0, 0x200000, 0x400000, 0x600000, 0x800000, 0xA00000, 0xA10000, 0xC00000
ROW_OUT_T2 = True
_LBL = 0
KV_T2 = False
QH, X0T = 0x1400000, 0x1600000
FUSE_X1 = False
def SG(n): return 102 if kern.DIAG else max(n, 72)

KV_PRIO = True
CODE_PREFETCH = 0
PF_OUT = False
PFQ_CONV = False
KG_TAB = False
KV_WFIRST = False
KG_SMEM = False
PF_LATE = False
KG_FLUSH = False
PF_D = False
PF_K = False
TLB_WARM = False
DATA_PREFETCH = False
def k_kv(NP=1, nk=0, kfirst=False):
    a = Asm()
    if CODE_PREFETCH == 1:
        a(f"""s_cmp_ge_u32 s2, 8
s_cbranch_scc1 L_kv_nopf
s_getpc_b64 s[58:59]
L_pf_base:
v_lshlrev_b32 v1, 7, v0
v_cmp_gt_u32 vcc, L_code_end-L_pf_base-4, v1
s_and_saveexec_b64 s[60:61], vcc
s_cbranch_execz L_kv_pfdone
global_load_dword v40, v1, s[58:59]
L_kv_pfdone:
s_mov_b64 exec, s[60:61]""")
        if TLB_WARM:
            a("""s_load_dwordx4 s[4:7], s[0:1], 96
s_load_dwordx2 s[8:9], s[0:1], 120
s_load_dwordx2 s[10:11], s[0:1], 40
v_lshlrev_b32 v1, 15, v0
v_lshlrev_b32 v2, 12, v0
v_mov_b32 v3, 0
s_waitcnt lgkmcnt(0)
global_load_dword v41, v1, s[8:9]
global_load_dword v42, v2, s[6:7]
global_load_dword v43, v3, s[4:5]
global_load_dword v44, v3, s[10:11]""")
        a("L_kv_nopf:")
    if kfirst and nk:
        a(f"""s_add_u32 s60, s2, 256
s_sub_u32 s61, s2, {nk}
s_cmp_lt_u32 s2, {nk}
s_cselect_b32 s61, s60, s61
s_cmp_lt_u32 s2, {nk+256}
s_cselect_b32 s2, s61, s2""")
    a("""s_cmp_ge_u32 s2, 256
s_cbranch_scc1 L_kv_kgen
""" + ("s_setprio 3" if KV_PRIO else "") + """
s_load_dwordx4 s[4:7], s[0:1], 8
s_load_dwordx2 s[8:9], s[0:1], 24
s_load_dwordx2 s[10:11], s[0:1], 120
s_load_dwordx2 s[32:33], s[0:1], 0
s_load_dwordx2 s[34:35], s[0:1], 32
s_load_dwordx2 s[50:51], s[0:1], 40
s_load_dwordx2 s[52:53], s[0:1], 96""")
    st = Stamps(a, 0); st()
    xcd_remap(a, 3, 12)
    a("""v_and_b32 v1, 255, v0
v_lshrrev_b32 v2, 8, v0
s_lshl_b32 s13, s3, 3
v_lshl_add_u32 v3, v2, 2, s13
v_lshlrev_b32 v4, 10, v3
v_lshl_add_u32 v4, v1, 2, v4
v_subrev_u32 v5, 3072, v4
v_subrev_u32 v6, 2048, v4
v_subrev_u32 v7, 1024, v4
v_lshlrev_b32 v8, 4, v1
v_lshrrev_b32 v9, 2, v1
v_lshlrev_b32 v9, 15, v9
v_lshl_add_u32 v9, v3, 4, v9
v_and_b32 v21, 3, v1
v_lshl_add_u32 v9, v21, 2, v9
s_waitcnt lgkmcnt(0)""")
    srd(a, 16, 4, MB2); srd(a, 20, 6, MB2); srd(a, 24, 8, 4096); srd(a, 28, 10, WSBYTES)
    a("buffer_load_dwordx4 v[24:27], v8, s[24:27], 0 offen")
    if KV_WFIRST:
        a("s_waitcnt vmcnt(0)")
        for ch in range(2):
            lo(a, 28 + 4 * ch + 0, 24 + 2 * ch); hi(a, 28 + 4 * ch + 1, 24 + 2 * ch)
            lo(a, 28 + 4 * ch + 2, 25 + 2 * ch); hi(a, 28 + 4 * ch + 3, 25 + 2 * ch)
    a("""buffer_load_dword v10, v5, s[16:19], 0 offen
buffer_load_dword v11, v6, s[16:19], 0 offen
buffer_load_dword v12, v7, s[16:19], 0 offen
buffer_load_dword v13, v4, s[16:19], 0 offen
buffer_load_dword v14, v4, s[16:19], 0 offen offset:1024
buffer_load_dword v15, v4, s[16:19], 0 offen offset:2048
buffer_load_dword v16, v4, s[16:19], 0 offen offset:3072
buffer_load_dword v17, v4, s[20:23], 0 offen
buffer_load_dword v18, v4, s[20:23], 0 offen offset:1024
buffer_load_dword v19, v4, s[20:23], 0 offen offset:2048
buffer_load_dword v20, v4, s[20:23], 0 offen offset:3072""")
    npf = 0
    if FUSE_X1:
        srd(a, 36, 32, MB2); srd(a, 40, 34, MB2)
        for r in range(4):
            a(f"buffer_load_dword v{64+r}, v4, s[36:39], 0 offen offset:{1024*r}")
        a("""s_lshl_b32 s44, s3, 13
v_lshrrev_b32 v22, 6, v0
v_and_b32 v23, 7, v0
v_lshl_add_u32 v22, v22, 3, v23
v_lshlrev_b32 v22, 7, v22
s_mov_b64 exec, 0xff
buffer_load_dword v68, v22, s[40:43], s44 offen
s_mov_b64 exec, -1
v_and_b32 v75, 7, v0
v_add_u32 v75, s13, v75
v_lshlrev_b32 v75, 10, v75
v_lshrrev_b32 v76, 3, v0
v_lshl_add_u32 v76, v76, 4, v75
buffer_load_dwordx4 v[70:73], v76, s[36:39], 0 offen
buffer_load_dword v74, v75, s[36:39], 0 offen""")
        npf = 7
    elif DATA_PREFETCH and not PF_LATE:
        srd(a, 36, 32, MB2); srd(a, 40, 34, MB2)
        a("""s_lshl_b32 s44, s3, 13
v_lshrrev_b32 v22, 6, v0
v_and_b32 v23, 7, v0
v_lshl_add_u32 v22, v22, 3, v23
v_lshlrev_b32 v22, 7, v22
s_mov_b64 exec, 0xff
buffer_load_dword v64, v22, s[40:43], s44 offen
buffer_load_dword v65, v22, s[36:39], s44 offen
s_mov_b64 exec, -1""")
        npf = 2
        if PF_D:
            a("""s_lshl_b32 s45, s3, 2
s_add_u32 s50, s50, s45
s_addc_u32 s51, s51, 0
s_add_u32 s52, s52, s45
s_addc_u32 s53, s53, 0
s_load_dword s54, s[50:51], 0
s_load_dword s55, s[52:53], 0""")
    if not KV_WFIRST:
        a(f"s_waitcnt vmcnt({11+npf})")
        for ch in range(2):
            lo(a, 28 + 4 * ch + 0, 24 + 2 * ch); hi(a, 28 + 4 * ch + 1, 24 + 2 * ch)
            lo(a, 28 + 4 * ch + 2, 25 + 2 * ch); hi(a, 28 + 4 * ch + 3, 25 + 2 * ch)
    a(f"s_waitcnt vmcnt({4+npf})")
    for i in range(7):
        lo(a, 36 + i, 10 + i); hi(a, 44 + i, 10 + i)
    a(f"s_waitcnt vmcnt({npf})")
    if CODE_PREFETCH == 2:
        a("""s_cmp_ge_u32 s2, 8
s_cbranch_scc1 L_kv_nopf2
s_getpc_b64 s[58:59]
L_pf_base:
s_sub_u32 s58, s58, L_pf_base-kv_kernel
s_subb_u32 s59, s59, 0
v_lshlrev_b32 v22, 7, v0
v_min_u32 v22, L_code_end-kv_kernel-4, v22
global_load_dword v69, v22, s[58:59]""")
        if TLB_WARM:
            a("""s_load_dwordx2 s[48:49], s[0:1], 104
v_lshlrev_b32 v22, 15, v0
v_lshlrev_b32 v23, 12, v0
s_waitcnt lgkmcnt(0)
global_load_dword v67, v22, s[10:11]
global_load_dword v68, v23, s[48:49]""")
        a("L_kv_nopf2:")
    if DATA_PREFETCH and PF_LATE and not FUSE_X1:
        srd(a, 36, 32, MB2); srd(a, 40, 34, MB2)
        a("""s_lshl_b32 s44, s3, 13
v_lshrrev_b32 v22, 6, v0
v_and_b32 v23, 7, v0
v_lshl_add_u32 v22, v22, 3, v23
v_lshlrev_b32 v22, 7, v22
s_mov_b64 exec, 0xff
buffer_load_dword v64, v22, s[40:43], s44 offen""")
        if not PFQ_CONV: a("buffer_load_dword v65, v22, s[36:39], s44 offen")
        a("s_mov_b64 exec, -1")
    st()
    for r in range(4):
        for t in range(4):
            w = 3 - t
            a(f"v_mul_f32 v54, v{36+r+t}, v{28+w}")
            a(f"v_mul_f32 v55, v{44+r+t}, v{32+w}")
            a("v_cvt_pk_bf16_f32 v56, v54, v55")
            if t == 0:
                lo(a, 52, 56); hi(a, 53, 56)
            else:
                lo(a, 54, 56); hi(a, 55, 56)
                a("v_add_f32 v52, v52, v54")
                a("v_add_f32 v53, v53, v55")
                a("v_cvt_pk_bf16_f32 v56, v52, v53")
                lo(a, 52, 56); hi(a, 53, 56)
        lo(a, 54, 17 + r); hi(a, 55, 17 + r)
        a("v_mul_f32 v52, v52, v54")
        a("v_mul_f32 v53, v53, v55")
        a(f"v_cvt_pk_bf16_f32 v{60+r}, v52, v53")
        if not KV_T2: a(f"buffer_store_dword v{60+r}, v9, s[28:31], 0 offen offset:{16*r}")
    if KV_T2:
        a("""v_lshlrev_b32 v9, 13, v1
v_lshl_add_u32 v9, v3, 2, v9
buffer_store_dwordx4 v[60:63], v9, s[28:31], 0 offen""")
        if FUSE_X1:
            a(f"""s_mov_b32 s45, {X0T}
s_waitcnt vmcnt(4)
buffer_store_dwordx4 v[64:67], v9, s[28:31], s45 offen
s_waitcnt vmcnt(2)""")
            ln0_compute(a)
    st.finish(28)
    a(f"""s_endpgm
L_kv_kgen:
s_cmp_ge_u32 s2, {256+nk}
s_cbranch_scc1 L_kv_ln0""")
    nv = 72
    if nk:
        a("s_sub_u32 s55, s2, 256")
        st2 = Stamps(a, 0)
        nv = kgen_body(a, NP, st2, 55)
    a("""s_endpgm
L_kv_ln0:""")
    a("""L_kv_end:
s_endpgm""")
    return kernel_text("kv_kernel", a.text(), max(nv, 80), SG(64))

XLS = 4160
WL0 = 8 * XLS
WAS = 1152
def EX0(NP): return WL0 + 8 * NP * WAS
def CONV_LDS(NP): return EX0(NP) + 32768
SSETS = [[7, 4, 3, 0], [6, 5, 2, 1]]

def conv_body(a, kind, NP, st, E, dbuf):
    ex0 = EX0(NP)
    if kind == "A":
        a("s_load_dwordx4 s[4:7], s[0:1], 32")
    else:
        a("s_load_dwordx4 s[4:7], s[0:1], 96")
    st()
    xcd_remap(a, 3, 12)
    a("""v_lshrrev_b32 v1, 6, v0
v_and_b32 v2, 63, v0
v_lshlrev_b32 v3, 6, v0
v_lshlrev_b32 v14, 4, v0
v_readfirstlane_b32 s14, v1
s_lshr_b32 s13, s3, 2
s_lshl_b32 s13, s13, 15
s_and_b32 s12, s3, 3
s_lshl_b32 s12, s12, 2
s_add_u32 s13, s13, s12
s_lshl_b32 s15, s3, 2
s_waitcnt lgkmcnt(0)""")
    srd(a, 28, 10, WSBYTES)
    src = {"A": KVT, "B1": X1, "B2": X3}[kind]
    a(f"""s_lshl_b32 s13, s3, 13
s_add_u32 s32, s13, {src}
buffer_load_dwordx4 v[4:7], v14, s[28:31], s32 offen""")
    if kind == "A":
        srd(a, 16, 4, MB2)
        a("s_lshl_b32 s35, s3, 13")
        a("buffer_load_dwordx4 v[48:51], v14, s[16:19], s35 offen")
        if FUSE_X1:
            a(f"s_add_u32 s34, s13, {QH}")
            a("buffer_load_dwordx4 v[8:11], v14, s[28:31], s34 offen")
            a(f"s_add_u32 s34, s13, {X0T}")
            a("buffer_load_dwordx4 v[100:103], v14, s[28:31], s34 offen")
        a("s_add_u32 s6, s6, s15")
        a("s_addc_u32 s7, s7, 0")
        a("s_load_dword s33, s[6:7], 0")
    else:
        stt = {"B1": ST1, "B2": ST3}[kind]
        a(f"s_mov_b32 s34, {stt}")
        a("buffer_load_dwordx4 v[48:51], v14, s[28:31], s34 offen")
        a(f"s_lshl_b32 s35, s3, {12 + NP}")
        a(f"s_add_u32 s35, s35, {KW}")
        if NP == 2:
            a("v_lshlrev_b32 v60, 5, v0")
            a("buffer_load_dwordx4 v[52:55], v60, s[28:31], s35 offen")
            a("buffer_load_dwordx4 v[56:59], v60, s[28:31], s35 offen offset:16")
        else:
            a("buffer_load_dwordx4 v[52:55], v14, s[28:31], s35 offen")
        a("s_add_u32 s4, s4, s15")
        a("s_addc_u32 s5, s5, 0")
        a("s_load_dword s33, s[4:5], 0")
        if kind == "B2":
            srd(a, 20, 6, MB2)
    na = 8 * NP
    a(f"""v_mov_b32 v64, 0
v_mov_b32 v65, 0
v_mov_b32 v66, 0
v_mov_b32 v67, 0
v_lshrrev_b32 v61, 3, v0
v_mul_u32_u24 v61, {WAS}, v61
v_and_b32 v62, 7, v0
v_lshl_add_u32 v61, v62, 4, v61
v_cmp_gt_u32 vcc, {na*8}, v0
s_and_saveexec_b64 s[36:37], vcc
ds_write_b128 v61, v[64:67] offset:{WL0}
s_mov_b64 exec, s[36:37]
v_lshrrev_b32 v61, 1, v0
v_mul_u32_u24 v61, {XLS}, v61
v_and_b32 v62, 1, v0
v_lshl_add_u32 v61, v62, 4, v61
v_cmp_gt_u32 vcc, 16, v0
s_and_saveexec_b64 s[36:37], vcc
ds_write_b128 v61, v[64:67]
s_mov_b64 exec, s[36:37]
v_cmp_eq_u32 vcc, 0, v0
s_and_saveexec_b64 s[36:37], vcc""")
    for ch in range(2):
        b = ch * 4 * XLS
        a(f"ds_write_b16 v64, v64 offset:{b + 1*XLS + 32}")
        a(f"ds_write_b32 v64, v64 offset:{b + 2*XLS + 32}")
        a(f"ds_write_b32 v64, v64 offset:{b + 3*XLS + 32}")
        a(f"ds_write_b16 v64, v64 offset:{b + 3*XLS + 36}")
    a("""s_mov_b64 exec, s[36:37]
s_mov_b32 s38, 0x05040100
s_mov_b32 s39, 0x07060302""")
    a(f"""s_lshr_b32 s40, s14, 2
s_bfe_u32 s41, s14, 0x10001
s_lshl_b32 s41, s41, 1
s_lshl_b32 s42, s40, 2
s_add_u32 s42, s42, s41
s_mul_i32 s42, s42, {XLS}
s_add_u32 s42, s42, 32
s_mul_i32 s43, s40, {NP*4}
s_add_u32 s43, s43, s41
s_mul_i32 s43, s43, {WAS}
s_add_u32 s43, s43, {WL0 + 56}
v_lshrrev_b32 v70, 4, v2
v_and_b32 v71, 3, v2
v_bfe_u32 v72, v2, 2, 2
v_sub_u32 v71, v71, v72
v_lshlrev_b32 v71, 3, v71
v_lshl_add_u32 v71, v70, 6, v71
v_add_u32 v12, s42, v71
v_and_b32 v71, 15, v2
v_lshlrev_b32 v71, 3, v71
v_lshlrev_b32 v72, 4, v70
v_sub_u32 v71, v71, v72
v_add_u32 v13, s43, v71""")
    VXA, VWB, ACC = 12, 13, 16
    for i in range(16): a(f"v_mov_b32 v{ACC+i}, 0")
    if kind == "A":
        a(f"""v_lshrrev_b32 v61, 8, v0
v_mul_u32_u24 v61, {4*WAS}, v61
v_and_b32 v62, 255, v0
v_lshl_add_u32 v61, v62, 2, v61
s_waitcnt vmcnt({2 if FUSE_X1 else 0})""")
        st()
        XS = 4
        a(f"""v_perm_b32 v64, v50, v48, s38
v_perm_b32 v65, v50, v48, s39
v_perm_b32 v66, v51, v49, s38
v_perm_b32 v67, v51, v49, s39
ds_write_b32 v61, v64 offset:{WL0+128}
ds_write_b32 v61, v65 offset:{WL0+128+WAS}
ds_write_b32 v61, v66 offset:{WL0+128+2*WAS}
ds_write_b32 v61, v67 offset:{WL0+128+3*WAS}""")
    else:
        if NP == 2:
            a(f"""v_lshrrev_b32 v61, 5, v0
v_mul_u32_u24 v61, {WAS}, v61
v_and_b32 v62, 31, v0
v_lshl_add_u32 v61, v62, 5, v61
s_waitcnt vmcnt(2)""")
        else:
            a(f"""v_mul_u32_u24 v61, {WAS}, v1
v_lshl_add_u32 v61, v2, 4, v61
s_waitcnt vmcnt(1)""")
        st()
        for r in range(4):
            lo(a, 72, 48 + r); hi(a, 73, 48 + r)
            a("v_rcp_f32 v74, v73")
            lo(a, 75, 4 + r); hi(a, 76, 4 + r)
            a("v_sub_f32 v75, v75, v72")
            a("v_sub_f32 v76, v76, v72")
            a("v_cvt_pk_bf16_f32 v77, v75, v76")
            lo(a, 75, 77); hi(a, 76, 77)
            for x in (75, 76):
                a(f"v_mul_f32 v78, v{x}, v74")
                a(f"v_fma_f32 v79, -v78, v73, v{x}")
                a(f"v_fma_f32 v{x}, v79, v74, v78")
            a(f"v_cvt_pk_bf16_f32 v{8+r}, v75, v76")
        XS = 8
    a("v_lshlrev_b32 v62, 3, v0")
    for ch in range(2):
        sel = "s38" if ch == 0 else "s39"
        b = ch * 4 * XLS + 32
        e0, e1, o1 = 64 + 4 * ch, 65 + 4 * ch, 66 + 4 * ch
        a(f"""v_perm_b32 v{e0}, v{XS+1}, v{XS}, {sel}
v_perm_b32 v{e1}, v{XS+3}, v{XS+2}, {sel}
v_perm_b32 v{o1}, v{XS+2}, v{XS+1}, {sel}
ds_write_b64 v62, v[{e0}:{e1}] offset:{b}
ds_write_b16 v62, v{e0} offset:{b + XLS + 2}
ds_write_b32 v62, v{o1} offset:{b + XLS + 4}
ds_write_b16_d16_hi v62, v{e1} offset:{b + XLS + 8}
ds_write_b32 v62, v{e0} offset:{b + 2*XLS + 4}
ds_write_b32 v62, v{e1} offset:{b + 2*XLS + 8}
ds_write_b16 v62, v{e0} offset:{b + 3*XLS + 6}
ds_write_b32 v62, v{o1} offset:{b + 3*XLS + 8}
ds_write_b16_d16_hi v62, v{e1} offset:{b + 3*XLS + 12}""")
    if kind != "A":
        a(f"""s_waitcnt vmcnt(0)
ds_write_b128 v61, v[52:55] offset:{WL0+128}""")
        if NP == 2:
            a(f"ds_write_b128 v61, v[56:59] offset:{WL0+128+16}")
    a("""s_waitcnt lgkmcnt(0)
s_barrier""")
    st()
    a(f"""s_bitcmp1_b32 s14, 0
s_cbranch_scc1 {E}_S1""")
    F0 = 32
    FSZ = 32 + 32 * NP
    for S in range(2):
        if S == 1: a(f"{E}_S1:")
        q = LdsQ(a)
        tiles = SSETS[S]
        pairs = [(aa, c - aa, ti) for aa in range(8) for ti, c in enumerate(tiles) if c >= aa]
        steps = [(dl, rho) for dl in range(2) for rho in range(2)]
        def regA(si, aa): return F0 + (FSZ * (si & 1) if dbuf else 0) + 4 * aa
        def regB(si, e, p): return F0 + (FSZ * (si & 1) if dbuf else 0) + 32 + 32 * p + 4 * e
        def rdA(si, aa):
            dl, rho = steps[si]
            return [(f"ds_read_b64_tr_b16 v[{regA(si,aa)+2*hh}:{regA(si,aa)+2*hh+1}], v{VXA} offset:{512*aa + 256*rho + 32*hh + dl*XLS}",
                     [regA(si, aa) + 2 * hh, regA(si, aa) + 2 * hh + 1]) for hh in range(2)]
        def rdB(si, e, p):
            dl, rho = steps[si]
            return [(f"ds_read_b64 v[{regB(si,e,p)+2*hh}:{regB(si,e,p)+2*hh+1}], v{VWB} offset:{128*e + 64*(1-rho) + 8*(1-hh) + (p*4+dl)*WAS}",
                     [regB(si, e, p) + 2 * hh, regB(si, e, p) + 2 * hh + 1]) for hh in range(2)]
        def order(si):
            return pairs
        def frag_first_use(ordr):
            seen, out = set(), []
            for (aa, e, ti) in ordr:
                for f in (("A", aa), ("B", e)):
                    if f not in seen: seen.add(f); out.append(f)
            return out
        def reads_for(si, f):
            if f[0] == "A": return rdA(si, f[1])
            r = []
            for p in range(NP): r += rdB(si, f[1], p)
            return r
        ordrs = [pairs]
        for si in range(3):
            if dbuf:
                ordrs.append(pairs); continue
            lu = {}
            for k, (aa, e, ti) in enumerate(ordrs[si]):
                lu[("A", aa)] = k; lu[("B", e)] = k
            ordrs.append(sorted(pairs, key=lambda p: max(lu[("A", p[0])], lu[("B", p[1])])))
        for f in frag_first_use(ordrs[0]):
            for t, d in reads_for(0, f): q.issue(t, d)
        for si in range(4):
            o = ordrs[si]
            pend = frag_first_use(ordrs[si + 1]) if si < 3 else []
            lastuse = {}
            for k, (aa, e, ti) in enumerate(o):
                lastuse[("A", aa)] = k; lastuse[("B", e)] = k
            for k, (aa, e, ti) in enumerate(o):
                for p in range(NP):
                    A = regA(si, aa); B = regB(si, e, p); D = ACC + 4 * ti
                    q.need(list(range(A, A + 4)) + list(range(B, B + 4)))
                    a(f"v_mfma_f32_16x16x32_bf16 v[{D}:{D+3}], v[{A}:{A+3}], v[{B}:{B+3}], v[{D}:{D+3}]")
                if dbuf:
                    if pend:
                        f = pend.pop(0)
                        for t, d in reads_for(si + 1, f): q.issue(t, d)
                else:
                    for f in [f for f in pend if lastuse[f] <= k]:
                        pend.remove(f)
                        for t, d in reads_for(si + 1, f): q.issue(t, d)
            for f in pend:
                for t, d in reads_for(si + 1, f): q.issue(t, d)
        a(f"""v_and_b32 v32, 15, v2
v_lshrrev_b32 v33, 4, v2
v_lshlrev_b32 v34, 2, v33
v_xor_b32 v32, v32, v34
v_lshl_add_u32 v32, v33, 4, v32
v_lshlrev_b32 v32, 4, v32
s_lshr_b32 s44, s14, 1
s_lshl_b32 s44, s44, 13
v_add_u32 v32, s44, v32""")
        for ti, c in enumerate(tiles):
            a(f"ds_write_b128 v32, v[{ACC+4*ti}:{ACC+4*ti+3}] offset:{ex0 + c*1024}")
        if S == 0: a(f"s_branch {E}_J")
    a(f"{E}_J:")
    a(f"""v_lshrrev_b32 v32, 2, v2
v_and_b32 v33, 3, v2
v_lshlrev_b32 v34, 2, v33
v_xor_b32 v32, v32, v34
v_lshl_add_u32 v32, v33, 4, v32
v_lshlrev_b32 v32, 4, v32
s_lshl_b32 s44, s14, 10
s_add_u32 s44, s44, {ex0}
v_add_u32 v32, s44, v32
s_lshl_b32 s46, s33, 16
s_and_b32 s47, s33, 0xffff0000
s_waitcnt lgkmcnt(0)""")
    st()
    a("s_barrier")
    st()
    for k in range(4):
        a(f"ds_read_b128 v[{36+4*k}:{39+4*k}], v32 offset:{k*8192}")
    a("s_waitcnt lgkmcnt(0)")
    for r in range(4):
        a(f"v_add_f32 v52, v{36+r}, v{40+r}")
        a(f"v_add_f32 v53, v{44+r}, v{48+r}")
        a("v_cvt_pk_bf16_f32 v60, v52, v53")
        lo(a, 61, 60); hi(a, 62, 60)
        lo(a, 63, XS + r); hi(a, 64, XS + r)
        a("v_mul_f32 v63, s46, v63")
        a("v_mul_f32 v64, s47, v64")
        a("v_cvt_pk_bf16_f32 v60, v63, v64")
        lo(a, 63, 60); hi(a, 64, 60)
        a("v_add_f32 v61, v61, v63")
        a("v_add_f32 v62, v62, v64")
        if kind == "A":
            a(f"v_cvt_pk_bf16_f32 v{68+r}, v61, v62")
            if FUSE_X1:
                if r == 0: a("s_waitcnt vmcnt(0)")
                lo(a, 61, 68 + r); hi(a, 62, 68 + r)
                lo(a, 63, 8 + r); hi(a, 64, 8 + r)
                a("v_mul_f32 v61, v61, v63")
                a("v_mul_f32 v62, v62, v64")
                a("v_cvt_pk_bf16_f32 v60, v61, v62")
                lo(a, 61, 60); hi(a, 62, 60)
                lo(a, 63, 100 + r); hi(a, 64, 100 + r)
                a("v_add_f32 v61, v61, v63")
                a("v_add_f32 v62, v62, v64")
                a(f"v_cvt_pk_bf16_f32 v{72+r}, v61, v62")
                if r == 3:
                    a(f"s_add_u32 s34, s13, {X1}")
                    a("buffer_store_dwordx4 v[72:75], v14, s[28:31], s34 offen")
        else:
            a("v_cvt_pk_bf16_f32 v60, v61, v62")
            lo(a, 61, 60); hi(a, 62, 60)
            lo(a, 63, 4 + r); hi(a, 64, 4 + r)
            a("v_add_f32 v61, v61, v63")
            a("v_add_f32 v62, v62, v64")
            a(f"v_cvt_pk_bf16_f32 v{68+r}, v61, v62")
        if kind in ("A", "B1"):
            if r == 3:
                dst = YA if kind == "A" else X2
                a("s_lshl_b32 s32, s3, 13")
                a(f"s_add_u32 s32, s32, {dst}")
                a("buffer_store_dwordx4 v[68:71], v14, s[28:31], s32 offen")
        else:
            if r == 0: a("v_lshlrev_b32 v59, 12, v0")
            a(f"buffer_store_dword v{68+r}, v59, s[20:23], s15 offen offset:{1024*r}")
    st()
    st.finish(28)
    return max(F0 + FSZ * (2 if dbuf else 1), 104)

PXLS = 4160
PWL0 = 2 * PXLS
def PCO(NP): return 8 * NP * WAS + 128 - (8 * NP * WAS) % 256
def PEX0(NP): return (PWL0 + PCO(NP) + 8 * NP * WAS + 16 + 255) // 256 * 256
PWSTR = 8192 + 16
def PCONV_LDS(NP): return PEX0(NP) + 8 * PWSTR

def sw_barrier(a, cnt_addr, target, vA, vB, sT, lbl):
    a(f"""s_waitcnt lgkmcnt(0)
v_mov_b32 v{vA}, {cnt_addr}
v_mov_b32 v{vB}, 1
s_mov_b64 exec, 1
ds_add_u32 v{vA}, v{vB}
s_mov_b64 exec, -1
{lbl}:
ds_read_b32 v{vB}, v{vA}
s_waitcnt lgkmcnt(0)
v_readfirstlane_b32 s{sT}, v{vB}
s_cmp_ge_u32 s{sT}, {target}
s_cbranch_scc1 {lbl}_done
s_sleep 1
s_branch {lbl}
{lbl}_done:""")

def conv_body_p(a, kind, NP, st, E, sbuf=False, swbar=None, cbase=0):
    ex0 = PEX0(NP) + cbase; CO = PCO(NP)
    PWL0 = globals()['PWL0'] + cbase
    F0 = 48
    FSZ = 32 + 32 * NP
    XR = F0 + (1 if sbuf else 2) * FSZ
    VW, VC, VP, VC2, VP2 = XR, XR + 1, XR + 2, XR + 3, XR + 4
    TD, XU = XR + (6 if sbuf else 8), XR + 16
    if kind == "A":
        a("s_load_dwordx4 s[4:7], s[0:1], 32")
    else:
        a("s_load_dwordx4 s[4:7], s[0:1], 96")
    st()
    xcd_remap(a, 3, 12)
    a("""v_lshrrev_b32 v1, 6, v0
v_and_b32 v2, 63, v0
v_lshlrev_b32 v14, 4, v0
v_readfirstlane_b32 s14, v1
s_lshl_b32 s13, s3, 13
s_lshl_b32 s15, s3, 2
s_waitcnt lgkmcnt(0)""")
    srd(a, 28, 10, WSBYTES)
    src = {"A": KVT, "B1": X1, "B2": X3}[kind]
    a(f"s_add_u32 s32, s13, {src}")
    a("buffer_load_dwordx4 v[4:7], v14, s[28:31], s32 offen")
    if kind == "A":
        srd(a, 16, 4, MB2)
        a("buffer_load_dwordx4 v[48:51], v14, s[16:19], s13 offen")
        if FUSE_X1:
            a(f"s_add_u32 s34, s13, {QH}")
            a("buffer_load_dwordx4 v[8:11], v14, s[28:31], s34 offen")
            a(f"s_add_u32 s34, s13, {X0T}")
            a(f"buffer_load_dwordx4 v[{XR+24}:{XR+27}], v14, s[28:31], s34 offen")
        a("s_add_u32 s6, s6, s15")
        a("s_addc_u32 s7, s7, 0")
        a("s_load_dword s33, s[6:7], 0")
    else:
        stt = {"B1": ST1, "B2": ST3}[kind]
        a(f"s_mov_b32 s34, {stt}")
        a("buffer_load_dwordx4 v[48:51], v14, s[28:31], s34 offen")
        a(f"s_lshl_b32 s35, s3, {12 + NP}")
        a(f"s_add_u32 s35, s35, {KW}")
        if NP == 2:
            a("v_lshlrev_b32 v60, 5, v0")
            a("buffer_load_dwordx4 v[52:55], v60, s[28:31], s35 offen")
            a("buffer_load_dwordx4 v[56:59], v60, s[28:31], s35 offen offset:16")
        else:
            a("buffer_load_dwordx4 v[52:55], v14, s[28:31], s35 offen")
        a("s_add_u32 s4, s4, s15")
        a("s_addc_u32 s5, s5, 0")
        a("s_load_dword s33, s[4:5], 0")
        if kind == "B2":
            srd(a, 20, 6, MB2)
    na = 8 * NP
    a(f"""v_mov_b32 v64, 0
v_mov_b32 v65, 0
v_mov_b32 v66, 0
v_mov_b32 v67, 0
v_lshrrev_b32 v61, 4, v0
v_mul_u32_u24 v61, {WAS}, v61
v_and_b32 v62, 15, v0
v_lshl_add_u32 v61, v62, 3, v61
v_cmp_gt_u32 vcc, {na*16}, v0
s_and_saveexec_b64 s[36:37], vcc
ds_write_b64 v61, v[64:65] offset:{PWL0}
ds_write_b64 v61, v[64:65] offset:{PWL0 + CO + 8}
s_mov_b64 exec, s[36:37]
v_lshrrev_b32 v61, 1, v0
v_mul_u32_u24 v61, {PXLS}, v61
v_and_b32 v62, 1, v0
v_lshl_add_u32 v61, v62, 4, v61
v_cmp_gt_u32 vcc, 4, v0
s_and_saveexec_b64 s[36:37], vcc
ds_write_b128 v61, v[64:67] offset:{cbase}
s_mov_b64 exec, s[36:37]
s_mov_b32 s38, 0x05040100
s_mov_b32 s39, 0x07060302""")
    a(f"""s_lshr_b32 s40, s14, 2
s_and_b32 s41, s14, 3
s_mul_i32 s42, s40, {PXLS}
s_add_u32 s42, s42, {32 + cbase}
s_mul_i32 s43, s40, {NP*4}
s_add_u32 s43, s43, s41
s_mul_i32 s43, s43, {WAS}
s_add_u32 s43, s43, {PWL0 + 56}
v_lshrrev_b32 v70, 4, v2
v_and_b32 v71, 3, v2
v_bfe_u32 v72, v2, 2, 2
v_sub_u32 v71, v71, v72
v_lshlrev_b32 v71, 3, v71
v_lshl_add_u32 v71, v70, 6, v71
v_add_u32 v12, s42, v71
v_and_b32 v71, 15, v2
v_lshlrev_b32 v71, 3, v71
v_lshlrev_b32 v72, 4, v70
v_sub_u32 v71, v71, v72
v_add_u32 v13, s43, v71
v_and_b32 v71, 1, v2
v_xor_b32 v71, 1, v71
v_mul_u32_u24 v71, {CO + 8}, v71
v_add_u32 v13, v13, v71""")
    VXA, VWB, ACC = 12, 13, 16
    for i in range(32): a(f"v_mov_b32 v{ACC+i}, 0")
    a(f"""v_and_b32 v70, 15, v2
v_lshrrev_b32 v71, 4, v2
v_lshlrev_b32 v72, 2, v71
v_xor_b32 v70, v70, v72
v_lshl_add_u32 v70, v71, 4, v70
v_lshlrev_b32 v70, 4, v70
s_mul_i32 s44, s14, {PWSTR}
s_add_u32 s44, s44, {ex0}
v_add_u32 v{VW}, s44, v70
v_mov_b32 v70, s44
s_mov_b64 exec, 1
ds_write_b128 v70, v[64:67] offset:8192
s_mov_b64 exec, -1
v_lshrrev_b32 v70, 2, v2
v_and_b32 v71, 3, v2
v_lshlrev_b32 v72, 2, v71
v_xor_b32 v70, v70, v72
v_lshl_add_u32 v70, v71, 4, v70
v_lshlrev_b32 v70, 4, v70
s_lshl_b32 s44, s14, 10
s_add_u32 s44, s44, {ex0}
v_add_u32 v{VC}, s44, v70
v_subrev_u32 v73, 1, v2
v_lshrrev_b32 v71, 2, v73
v_and_b32 v73, 3, v73
v_lshlrev_b32 v72, 2, v73
v_xor_b32 v71, v71, v72
v_lshl_add_u32 v71, v73, 4, v71
v_lshlrev_b32 v71, 4, v71
v_add_u32 v71, s44, v71
s_sub_u32 s45, s44, {1024 - 51*16}
s_cmp_eq_u32 s14, 0
s_cselect_b32 s45, {ex0 + 8192}, s45
v_mov_b32 v72, s45
v_cmp_eq_u32 vcc, 0, v2
v_cndmask_b32 v{VP}, v71, v72, vcc
v_add_u32 v{VC2}, {4*PWSTR}, v{VC}
v_add_u32 v{VP2}, {4*PWSTR}, v{VP}
v_lshlrev_b32 v62, 3, v0""")
    if kind == "A":
        a(f"""v_lshrrev_b32 v61, 8, v0
v_mul_u32_u24 v61, {4*WAS}, v61
v_and_b32 v63, 255, v0
v_lshl_add_u32 v61, v63, 2, v61
s_waitcnt vmcnt({3 if FUSE_X1 else 1})""")
        st()
        XS = 4
    else:
        if NP == 2:
            a(f"""v_lshrrev_b32 v61, 5, v0
v_mul_u32_u24 v61, {WAS}, v61
v_and_b32 v63, 31, v0
v_lshl_add_u32 v61, v63, 5, v61
s_waitcnt vmcnt(2)""")
        else:
            a(f"""v_mul_u32_u24 v61, {WAS}, v1
v_lshl_add_u32 v61, v2, 4, v61
s_waitcnt vmcnt(1)""")
        st()
        for r in range(4):
            T = 72 + 8 * r
            lo(a, T, 48 + r); hi(a, T + 1, 48 + r)
            a(f"v_rcp_f32 v{T+2}, v{T+1}")
            lo(a, XU + 2 * r, 4 + r); hi(a, XU + 2 * r + 1, 4 + r)
        for r in range(4):
            T = 72 + 8 * r
            a(f"v_sub_f32 v{T+3}, v{XU+2*r}, v{T}")
            a(f"v_sub_f32 v{T+4}, v{XU+2*r+1}, v{T}")
            a(f"v_cvt_pk_bf16_f32 v{T+5}, v{T+3}, v{T+4}")
            lo(a, T + 3, T + 5); hi(a, T + 4, T + 5)
            for x in (T + 3, T + 4):
                a(f"v_mul_f32 v{T+6}, v{x}, v{T+2}")
                a(f"v_fma_f32 v{T+7}, -v{T+6}, v{T+1}, v{x}")
                a(f"v_fma_f32 v{x}, v{T+7}, v{T+2}, v{T+6}")
            a(f"v_cvt_pk_bf16_f32 v{8+r}, v{T+3}, v{T+4}")
        XS = 8
    a(f"""v_perm_b32 v64, v{XS+1}, v{XS}, s38
v_perm_b32 v65, v{XS+3}, v{XS+2}, s38
v_perm_b32 v66, v{XS+1}, v{XS}, s39
v_perm_b32 v67, v{XS+3}, v{XS+2}, s39
ds_write_b64 v62, v[64:65] offset:{32 + cbase}
ds_write_b64 v62, v[66:67] offset:{PXLS+32+cbase}
s_waitcnt vmcnt({2 if (kind == "A" and FUSE_X1) else 0})""")
    if kind == "A":
        a("""v_perm_b32 v68, v50, v48, s38
v_perm_b32 v69, v50, v48, s39
v_perm_b32 v70, v51, v49, s38
v_perm_b32 v71, v51, v49, s39""")
        for f in range(4):
            a(f"ds_write_b32 v61, v{68+f} offset:{PWL0+128+f*WAS}")
            a(f"ds_write_b32 v61, v{68+f} offset:{PWL0+128+f*WAS+CO+8}")
    else:
        for h in range(NP):
            b = 52 + 4 * h
            a(f"ds_write_b128 v61, v[{b}:{b+3}] offset:{PWL0+128+16*h}")
            a(f"ds_write_b64 v61, v[{b}:{b+1}] offset:{PWL0+128+16*h+CO+8}")
            a(f"ds_write_b64 v61, v[{b+2}:{b+3}] offset:{PWL0+128+16*h+CO+16}")
    if kind == "A" and PFQ_CONV:
        a("s_load_dwordx2 s[50:51], s[0:1], 0")
    a("""s_waitcnt lgkmcnt(0)
s_lshl_b32 s46, s33, 16
s_and_b32 s47, s33, 0xffff0000""")
    if kind == "A" and PFQ_CONV:
        srd(a, 52, 50, MB2)
        a(f"""v_and_b32 v15, 7, v0
v_lshl_add_u32 v15, v1, 3, v15
v_lshlrev_b32 v15, 7, v15
s_mov_b64 exec, 0xff
buffer_load_dword v{XR+5}, v15, s[52:55], s13 offen
s_mov_b64 exec, -1""")
    if swbar is None: a("s_barrier")
    else: sw_barrier(a, swbar, 8, 64, 65, 48, f"{E}_sb1")
    st()
    FA = [F0, F0 + (0 if sbuf else FSZ)]
    FB = [F0 + 32, F0 + (0 if sbuf else FSZ) + 32]
    q = LdsQ(a)
    def rdA(rho, aa):
        return [(f"ds_read_b64_tr_b16 v[{FA[rho]+4*aa+2*hh}:{FA[rho]+4*aa+2*hh+1}], v{VXA} offset:{512*aa + 256*rho + 32*(1-hh)}",
                 [FA[rho] + 4 * aa + 2 * hh, FA[rho] + 4 * aa + 2 * hh + 1]) for hh in range(2)]
    def rdB(rho, e, p):
        d = FB[rho] + 32 * p + 4 * e
        return [(f"ds_read_b128 v[{d}:{d+3}], v{VWB} offset:{128*e + 64*(1-rho) + p*4*WAS}", list(range(d, d + 4)))]
    order = [(aa, c - aa, c) for c in range(8) for aa in range(c + 1)]
    def reads(rho):
        seen, r = set(), []
        for (aa, e, c) in order:
            if ("A", aa) not in seen: seen.add(("A", aa)); r += rdA(rho, aa)
            if ("B", e) not in seen:
                seen.add(("B", e))
                for p in range(NP): r += rdB(rho, e, p)
        return r
    def mf(rho, aa, e, c, p):
        A = FA[rho] + 4 * aa; B = FB[rho] + 32 * p + 4 * e; D = ACC + 4 * c
        q.need(list(range(A, A + 4)) + list(range(B, B + 4)))
        a(f"v_mfma_f32_16x16x32_bf16 v[{D}:{D+3}], v[{A}:{A+3}], v[{B}:{B+3}], v[{D}:{D+3}]")
    fill = []
    for r in range(4):
        fill += [f"v_lshlrev_b32 v{TD+2*r}, 16, v{XS+r}", f"v_and_b32 v{TD+2*r+1}, 0xffff0000, v{XS+r}",
                 f"v_mul_f32 v{TD+2*r}, s46, v{TD+2*r}", f"v_mul_f32 v{TD+2*r+1}, s47, v{TD+2*r+1}",
                 f"v_cvt_pk_bf16_f32 v15, v{TD+2*r}, v{TD+2*r+1}",
                 f"v_lshlrev_b32 v{TD+2*r}, 16, v15", f"v_and_b32 v{TD+2*r+1}, 0xffff0000, v15"]
    if kind == "B2": fill.append("v_lshlrev_b32 v3, 12, v0")
    QU = XR + 28
    if kind == "A" and FUSE_X1:
        fill.append("s_waitcnt vmcnt(0)")
        for r in range(4):
            fill += [f"v_lshlrev_b32 v{QU+2*r}, 16, v{8+r}", f"v_and_b32 v{QU+2*r+1}, 0xffff0000, v{8+r}",
                     f"v_lshlrev_b32 v{XU+2*r}, 16, v{XR+24+r}", f"v_and_b32 v{XU+2*r+1}, 0xffff0000, v{XR+24+r}"]
    if not sbuf:
        for t, d in reads(0): q.issue(t, d)
        r1 = reads(1)
        for (aa, e, c) in order:
            for p in range(NP):
                mf(0, aa, e, c, p)
                if r1:
                    tt, dd = r1.pop(0); q.issue(tt, dd)
                elif fill: a(fill.pop(0))
        for tt, dd in r1: q.issue(tt, dd)
    else:
        order0 = sorted(order, key=lambda x: (min(x[0], x[1]), x[2]))
        def frs(o):
            seen, out = set(), []
            for (aa, e, c) in o:
                for f in (("A", aa), ("B", e)):
                    if f not in seen: seen.add(f); out.append(f)
            return out
        def rds(rho, f):
            if f[0] == "A": return rdA(rho, f[1])
            r = []
            for p in range(NP): r += rdB(rho, f[1], p)
            return r
        for f in frs(order0):
            for t, d in rds(0, f): q.issue(t, d)
        lastuse = {}
        for k, (aa, e, c) in enumerate(order0):
            lastuse[("A", aa)] = k; lastuse[("B", e)] = k
        pend = frs(order)
        for k, (aa, e, c) in enumerate(order0):
            for p in range(NP): mf(0, aa, e, c, p)
            dead = [f for f in pend if lastuse[f] <= k]
            for f in dead:
                pend.remove(f)
                for t, d in rds(1, f): q.issue(t, d)
            if not dead and fill: a(fill.pop(0))
        assert not pend
    pendw = []
    for (aa, e, c) in order:
        for p in range(NP):
            mf(1, aa, e, c, p)
            if fill: a(fill.pop(0))
            pendw = [(cc, n - 1) for cc, n in pendw]
            for cc, n in [x for x in pendw if x[1] <= 0]:
                q.issue(f"ds_write_b128 v{VW}, v[{ACC+4*cc}:{ACC+4*cc+3}] offset:{cc*1024}", [])
            pendw = [x for x in pendw if x[1] > 0]
        if aa == c: pendw.append((c, 5))
    for f in fill: a(f)
    for cc, n in pendw:
        q.issue(f"ds_write_b128 v{VW}, v[{ACC+4*cc}:{ACC+4*cc+3}] offset:{cc*1024}", [])
    a("s_waitcnt lgkmcnt(0)")
    st()
    if swbar is None: a("s_barrier")
    else: sw_barrier(a, swbar + 4, 8, 48, 49, 48, f"{E}_sb2")
    st()
    for w in range(8):
        b = VC if w < 4 else VC2
        a(f"ds_read_b128 v[{48+4*w}:{51+4*w}], v{b} offset:{(w&3)*PWSTR}")
        if w & 3:
            b = VP if w < 4 else VP2
            a(f"ds_read_b128 v[{80+4*w}:{83+4*w}], v{b} offset:{(w&3)*PWSTR}")
    for ch in range(2):
        a(f"s_waitcnt lgkmcnt({7 if ch == 0 else 0})")
        cur = lambda d, i: 48 + 4 * (4 * ch + d) + i
        prv = lambda d, i: 80 + 4 * (4 * ch + d) + i
        for r in range(4):
            t = [cur(0, r)]
            for d in range(1, 4):
                t.append(cur(d, r - d) if r - d >= 0 else prv(d, 4 + r - d))
            y = 16 + 4 * ch + r
            a(f"v_add_f32 v{y}, v{t[0]}, v{t[1]}")
            a(f"v_add_f32 v{24+r}, v{t[2]}, v{t[3]}")
            a(f"v_add_f32 v{y}, v{y}, v{24+r}")
    for r in range(4):
        T = 28 + 4 * r
        a(f"v_cvt_pk_bf16_f32 v{T}, v{16+r}, v{20+r}")
        lo(a, T + 1, T); hi(a, T + 2, T)
        a(f"v_add_f32 v{T+1}, v{T+1}, v{TD+2*r}")
        a(f"v_add_f32 v{T+2}, v{T+2}, v{TD+2*r+1}")
        if kind == "A":
            a(f"v_cvt_pk_bf16_f32 v{44+r}, v{T+1}, v{T+2}")
            if FUSE_X1:
                lo(a, T + 1, 44 + r); hi(a, T + 2, 44 + r)
                a(f"v_mul_f32 v{T+1}, v{T+1}, v{QU+2*r}")
                a(f"v_mul_f32 v{T+2}, v{T+2}, v{QU+2*r+1}")
                a(f"v_cvt_pk_bf16_f32 v{T}, v{T+1}, v{T+2}")
                lo(a, T + 1, T); hi(a, T + 2, T)
                a(f"v_add_f32 v{T+1}, v{T+1}, v{XU+2*r}")
                a(f"v_add_f32 v{T+2}, v{T+2}, v{XU+2*r+1}")
                a(f"v_cvt_pk_bf16_f32 v{48+r}, v{T+1}, v{T+2}")
                if r == 3:
                    a(f"s_add_u32 s34, s13, {X1}")
                    a("buffer_store_dwordx4 v[48:51], v14, s[28:31], s34 offen")
        else:
            a(f"v_cvt_pk_bf16_f32 v{T}, v{T+1}, v{T+2}")
            lo(a, T + 1, T); hi(a, T + 2, T)
            a(f"v_add_f32 v{T+1}, v{T+1}, v{XU+2*r}")
            a(f"v_add_f32 v{T+2}, v{T+2}, v{XU+2*r+1}")
            a(f"v_cvt_pk_bf16_f32 v{44+r}, v{T+1}, v{T+2}")
        if kind in ("A", "B1"):
            if r == 3:
                dst = YA if kind == "A" else X2
                a(f"s_add_u32 s32, s13, {dst}")
                a("buffer_store_dwordx4 v[44:47], v14, s[28:31], s32 offen")
        else:
            a(f"buffer_store_dword v{44+r}, v3, s[20:23], s15 offen offset:{1024*r}")
    st()
    st.finish(28)
    return (XR + 14) if sbuf else (XR + 36)

def k_conv(kind, NP, dbuf=True, optp=False):
    name = {"A": "convA_kernel", "B1": "convB1_kernel", "B2": "convB2_kernel"}[kind]
    if kind == "A": NP = 1
    a = Asm()
    E = f"L_{name}"
    a(f"""s_cmp_ge_u32 s2, 256
s_cbranch_scc1 {E}_end
s_load_dwordx2 s[10:11], s[0:1], 120""")
    st = Stamps(a, {"A": 2, "B1": 4, "B2": 6}[kind])
    nv = conv_body_p(a, kind, NP, st, E) if optp else conv_body(a, kind, NP, st, E, dbuf)
    a(f"""{E}_end:
s_endpgm""")
    return kernel_text(name, a.text(), nv, SG(64))

def row_reduce(a, S1, S2, T, waddr, ldsoff):
    a(f"""v_permlane32_swap_b32 v{S1}, v{S2}
v_add_f32 v{S1}, v{S1}, v{S2}
v_mov_b32 v{T}, v{S1}
v_permlane16_swap_b32 v{S1}, v{T}
v_add_f32 v{S1}, v{S1}, v{T}
v_add_f32_dpp v{S1}, v{S1}, v{S1} row_ror:8 row_mask:0xf bank_mask:0xf
s_mov_b64 exec, s[48:49]
ds_write_b32 v{waddr}, v{S1} offset:{ldsoff}
s_mov_b64 exec, -1
s_waitcnt lgkmcnt(0)
s_barrier""")

def row_stats(a, raddr, ldsoff, piv, T, o_mean, o_m, o_den):
    a(f"""ds_read_b128 v[{T}:{T+3}], v{raddr} offset:{ldsoff}
ds_read_b128 v[{T+4}:{T+7}], v{raddr} offset:{ldsoff+16}
ds_read_b128 v[{T+8}:{T+11}], v{raddr} offset:{ldsoff+256}
ds_read_b128 v[{T+12}:{T+15}], v{raddr} offset:{ldsoff+272}
s_waitcnt lgkmcnt(2)""")
    for b in (0, 8):
        if b == 8: a("s_waitcnt lgkmcnt(0)")
        a(f"""v_add_f32 v{T+b}, v{T+b}, v{T+b+1}
v_add_f32 v{T+b+2}, v{T+b+2}, v{T+b+3}
v_add_f32 v{T+b+4}, v{T+b+4}, v{T+b+5}
v_add_f32 v{T+b+6}, v{T+b+6}, v{T+b+7}
v_add_f32 v{T+b}, v{T+b}, v{T+b+2}
v_add_f32 v{T+b+4}, v{T+b+4}, v{T+b+6}
v_add_f32 v{T+b}, v{T+b}, v{T+b+4}""")
    a(f"""v_mul_f32 v{T}, 0x3b000000, v{T}
v_mul_f32 v{T+1}, 0x3b000000, v{T+8}
v_add_f32 v{o_mean}, v{piv}, v{T}
v_fma_f32 v{T+1}, -v{T}, v{T}, v{T+1}
v_max_f32 v{T+1}, 0, v{T+1}
v_cvt_pk_bf16_f32 v{T+2}, v{o_mean}, v{T+1}
v_lshlrev_b32 v{o_m}, 16, v{T+2}
v_and_b32 v{T+1}, 0xffff0000, v{T+2}
v_add_f32 v{T+1}, 0x3727c5ac, v{T+1}
v_cvt_pk_bf16_f32 v{T+1}, v{T+1}, v{T+1}
v_and_b32 v{T+1}, 0xffff0000, v{T+1}
v_sqrt_f32 v{T+1}, v{T+1}
v_cvt_pk_bf16_f32 v{T+1}, v{T+1}, v{T+1}
v_and_b32 v{o_den}, 0xffff0000, v{T+1}""")

def row_partial(a, P):
    for k in range(8):
        a(f"v_sub_f32 v{48+k}, v{24+k}, v{P}")
    a("v_add_f32 v40, v48, v49")
    a("v_mul_f32 v41, v48, v48")
    a("v_mul_f32 v42, v49, v49")
    for k in range(2, 8, 2):
        a(f"v_add_f32 v43, v{48+k}, v{49+k}")
        a(f"v_fmac_f32 v41, v{48+k}, v{48+k}")
        a(f"v_fmac_f32 v42, v{49+k}, v{49+k}")
        a("v_add_f32 v40, v40, v43")
    a("v_add_f32 v41, v41, v42")

def row_setup(a, rb_sgpr):
    a(f"""v_and_b32 v1, 7, v0
v_lshrrev_b32 v2, 3, v0
s_lshl_b32 s13, s{rb_sgpr}, 3
v_add_u32 v3, s13, v1
v_lshlrev_b32 v9, 15, v2
v_lshl_add_u32 v8, v3, 2, v9
s_mov_b32 s48, 0xff
s_mov_b32 s49, 0xff
v_lshlrev_b32 v11, 5, v1
v_bfe_u32 v10, v0, 5, 1
v_lshl_add_u32 v10, v10, 8, v11
v_lshrrev_b32 v5, 6, v0
v_lshl_add_u32 v10, v5, 2, v10""")

def ln0_compute(a):
    row_setup(a, 3)
    a("v_lshlrev_b32 v20, 16, v74")
    for k in range(4):
        lo(a, 24 + 2 * k, 70 + k); hi(a, 25 + 2 * k, 70 + k)
    row_partial(a, 20)
    row_reduce(a, 40, 41, 42, 10, 0)
    row_stats(a, 11, 0, 20, 48, 21, 22, 23)
    a("v_rcp_f32 v36, v23")
    for k in range(4):
        x0, x1 = 24 + 2 * k, 25 + 2 * k
        a(f"v_sub_f32 v51, v{x0}, v22")
        a(f"v_sub_f32 v52, v{x1}, v22")
        a("v_cvt_pk_bf16_f32 v53, v51, v52")
        lo(a, 51, 53); hi(a, 52, 53)
        for x in (51, 52):
            a(f"v_mul_f32 v54, v{x}, v36")
            a(f"v_fma_f32 v55, -v54, v23, v{x}")
            a(f"v_fma_f32 v{x}, v55, v36, v54")
        a(f"v_cvt_pk_bf16_f32 v{56+k}, v51, v52")
        a(f"s_mov_b32 s34, {QH + 8192*k}")
        a(f"buffer_store_dword v{56+k}, v8, s[28:31], s34 offen")

def k_stat1():
    name = "row1_kernel"
    E = f"L_{name}_end"
    a = Asm()
    a(f"""s_cmp_ge_u32 s2, 256
s_cbranch_scc1 {E}
s_load_dwordx2 s[10:11], s[0:1], 120""")
    st = Stamps(a, 3); st()
    xcd_remap(a, 3, 12)
    row_setup(a, 3)
    a("s_waitcnt lgkmcnt(0)")
    srd(a, 28, 10, WSBYTES)
    a(f"""s_mov_b32 s33, {X1}
v_lshlrev_b32 v7, 2, v3""")
    for k in range(4):
        a(f"s_add_u32 s34, s33, {8192*k}")
        a(f"buffer_load_dword v{16+k}, v8, s[28:31], s34 offen")
    a("""buffer_load_dword v20, v7, s[28:31], s33 offen
s_waitcnt vmcnt(0)
v_lshlrev_b32 v20, 16, v20""")
    st()
    for k in range(4):
        lo(a, 24 + 2 * k, 16 + k); hi(a, 25 + 2 * k, 16 + k)
    row_partial(a, 20)
    row_reduce(a, 40, 41, 42, 10, 0)
    a(f"""v_cmp_gt_u32 vcc, 8, v0
s_and_saveexec_b64 s[36:37], vcc
s_cbranch_execz {E}""")
    row_stats(a, 11, 0, 20, 64, 60, 61, 62)
    a(f"""v_lshrrev_b32 v61, 16, v61
v_or_b32 v61, v61, v62
s_mov_b32 s35, {ST1}
buffer_store_dword v61, v7, s[28:31], s35 offen""")
    st.finish(28)
    a(f"""{E}:
s_endpgm""")
    return kernel_text(name, a.text(), 80, SG(56))

def k_row(kind, NP=1, nk=0, ch0=0):
    name = {"R1": "row1_kernel", "R2": "row2_kernel"}[kind]
    E = f"L_{name}_end"
    a = Asm()
    if nk:
        a(f"""s_add_u32 s60, s2, 256
s_sub_u32 s61, s2, {nk}
s_cmp_lt_u32 s2, {nk}
s_cselect_b32 s61, s60, s61
s_cmp_lt_u32 s2, {nk+256}
s_cselect_b32 s2, s61, s2""")
    a(f"""s_cmp_ge_u32 s2, 256
s_cbranch_scc1 {E}_kgen
s_setprio 3
s_load_dwordx2 s[10:11], s[0:1], 120
s_load_dwordx2 s[4:5], s[0:1], 0""")
    st = Stamps(a, {"R1": 3, "R2": 5}[kind]); st()
    xcd_remap(a, 3, 12)
    a("""v_and_b32 v1, 7, v0
v_lshrrev_b32 v2, 3, v0
s_lshl_b32 s13, s3, 3
v_add_u32 v3, s13, v1
v_lshlrev_b32 v9, 15, v2
v_lshl_add_u32 v8, v3, 2, v9
v_lshl_add_u32 v9, v3, 4, v9
s_waitcnt lgkmcnt(0)""")
    srd(a, 28, 10, WSBYTES)
    a(f"s_mov_b32 s32, {YA}")
    if kind == "R1":
        srd(a, 16, 4, MB2)
        a("""v_lshlrev_b32 v7, 10, v3
v_lshl_add_u32 v4, v2, 4, v7
buffer_load_dwordx4 v[16:19], v4, s[16:19], 0 offen
buffer_load_dword v20, v7, s[16:19], 0 offen""")
    else:
        a(f"""s_mov_b32 s33, {X2}
v_lshlrev_b32 v7, 2, v3""")
        for k in range(4):
            a(f"s_add_u32 s34, s33, {8192*k}")
            a(f"buffer_load_dword v{16+k}, v8, s[28:31], s34 offen")
        a("buffer_load_dword v20, v7, s[28:31], s33 offen")
    for k in range(4):
        a(f"s_add_u32 s34, s32, {8192*k}")
        a(f"buffer_load_dword v{12+k}, v8, s[28:31], s34 offen")
    if PF_OUT and kind == "R2":
        a("""s_load_dwordx2 s[50:51], s[0:1], 104
s_lshr_b32 s44, s2, 3
s_lshl_b32 s44, s44, 16
s_and_b32 s45, s2, 7
s_lshl_b32 s45, s45, 7
s_add_u32 s44, s44, s45
v_lshrrev_b32 v22, 6, v0
v_lshl_add_u32 v22, v22, 3, v1
v_lshlrev_b32 v22, 10, v22
s_waitcnt lgkmcnt(0)""")
        srd(a, 52, 50, MB2)
        a("""s_mov_b64 exec, 0xff
buffer_load_dword v38, v22, s[52:55], s44 offen
s_mov_b64 exec, -1""")
    if PF_K:
        a(f"""s_lshl_b32 s44, s3, {12+NP}
s_add_u32 s44, s44, {KW}
v_lshrrev_b32 v22, 6, v0
v_lshl_add_u32 v22, v22, 3, v1
v_lshlrev_b32 v22, 7, v22
s_mov_b64 exec, 0xff
buffer_load_dword v38, v22, s[28:31], s44 offen
s_mov_b64 exec, -1""")
    a("""s_mov_b32 s48, 0xff
s_mov_b32 s49, 0xff
v_lshlrev_b32 v11, 5, v1
v_bfe_u32 v10, v0, 5, 1
v_lshl_add_u32 v10, v10, 8, v11
v_lshrrev_b32 v5, 6, v0
v_lshl_add_u32 v10, v5, 2, v10
""" + f"s_waitcnt vmcnt({5 if (PF_K or (PF_OUT and kind == 'R2')) else 4})" + """
v_lshlrev_b32 v20, 16, v20""")
    st()
    for k in range(4):
        lo(a, 24 + 2 * k, 16 + k); hi(a, 25 + 2 * k, 16 + k)
    def partial(P):
        for k in range(8):
            a(f"v_sub_f32 v{48+k}, v{24+k}, v{P}")
        a("v_add_f32 v40, v48, v49")
        a("v_mul_f32 v41, v48, v48")
        a("v_mul_f32 v42, v49, v49")
        for k in range(2, 8, 2):
            a(f"v_add_f32 v43, v{48+k}, v{49+k}")
            a(f"v_fmac_f32 v41, v{48+k}, v{48+k}")
            a(f"v_fmac_f32 v42, v{49+k}, v{49+k}")
            a("v_add_f32 v40, v40, v43")
        a("v_add_f32 v41, v41, v42")
    partial(20)
    row_reduce(a, 40, 41, 42, 10, 0)
    row_stats(a, 11, 0, 20, 48, 21, 22, 23)
    st()
    a("v_rcp_f32 v36, v23")
    a(f"s_waitcnt vmcnt({1 if (PF_K or (PF_OUT and kind == 'R2')) else 0})")
    for k in range(4):
        x0, x1 = 24 + 2 * k, 25 + 2 * k
        a(f"v_sub_f32 v51, v{x0}, v22")
        a(f"v_sub_f32 v52, v{x1}, v22")
        a("v_cvt_pk_bf16_f32 v53, v51, v52")
        lo(a, 51, 53); hi(a, 52, 53)
        for x in (51, 52):
            a(f"v_mul_f32 v54, v{x}, v36")
            a(f"v_fma_f32 v55, -v54, v23, v{x}")
            a(f"v_fma_f32 v{x}, v55, v36, v54")
        a("v_cvt_pk_bf16_f32 v53, v51, v52")
        lo(a, 51, 53); hi(a, 52, 53)
        lo(a, 54, 12 + k); hi(a, 55, 12 + k)
        a("v_mul_f32 v51, v51, v54")
        a("v_mul_f32 v52, v52, v55")
        a("v_cvt_pk_bf16_f32 v53, v51, v52")
        lo(a, 51, 53); hi(a, 52, 53)
        a(f"v_add_f32 v51, v51, v{x0}")
        a(f"v_add_f32 v52, v52, v{x1}")
        a(f"v_cvt_pk_bf16_f32 v{56+k}, v51, v52")
        lo(a, x0, 56 + k); hi(a, x1, 56 + k)
    dst = X1 if kind == "R1" else X3
    if ROW_OUT_T2:
        for k in range(4):
            a(f"s_mov_b32 s34, {dst + 8192*k}")
            a(f"buffer_store_dword v{56+k}, v8, s[28:31], s34 offen")
    else:
        a(f"s_mov_b32 s34, {dst}")
        a("buffer_store_dwordx4 v[56:59], v9, s[28:31], s34 offen")
    st()
    partial(21)
    row_reduce(a, 40, 41, 42, 10, 512)
    stt = ST1 if kind == "R1" else ST3
    a(f"""v_cmp_gt_u32 vcc, 8, v0
s_and_saveexec_b64 s[36:37], vcc
s_cbranch_execz {E}""")
    row_stats(a, 11, 512, 21, 64, 60, 61, 62)
    a(f"""v_lshrrev_b32 v61, 16, v61
v_or_b32 v61, v61, v62
v_lshlrev_b32 v7, 2, v3
s_mov_b32 s35, {stt}
buffer_store_dword v61, v7, s[28:31], s35 offen""")
    st.finish(28)
    a(f"""s_endpgm
{E}_kgen:
s_cmp_ge_u32 s2, {256+nk}
s_cbranch_scc1 {E}""")
    nv = 80
    if nk:
        a(f"s_add_u32 s55, s2, {ch0-256}")
        st2 = Stamps(a, 3)
        nv = kgen_body(a, NP, st2, 55)
    a(f"""{E}:
s_endpgm""")
    return kernel_text(name, a.text(), nv, SG(64))

KPART = 0
KPRM = 8 * 3072
KTAB0 = KPRM + 8 * 256
KGEN_LDS = KTAB0 + 2176 * 4
def kgen_body(a, NP, st, ch_sgpr, lbase=0, swbar=None):
    KPART, KPRM, KTAB0 = globals()["KPART"] + lbase, globals()["KPRM"] + lbase, globals()["KTAB0"] + lbase
    if KG_FLUSH: a("s_setreg_imm32_b32 hwreg(HW_REG_MODE, 4, 2), 0")
    a(f"""s_load_dwordx8 s[4:11], s[0:1], 56
s_load_dwordx2 s[12:13], s[0:1], 88
s_load_dwordx2 s[14:15], s[0:1], 120
v_and_b32 v1, 15, v0
v_bfe_u32 v2, v0, 4, 2
v_lshrrev_b32 v3, 6, v0
s_lshl_b32 s3, s{ch_sgpr}, 8
v_lshlrev_b32 v4, 5, v3
v_lshl_add_u32 v4, v1, 1, v4
s_mov_b32 s50, 0x3fb8aa3b
s_mov_b32 s51, 0x32a57060
s_mov_b32 s52, 0x3f317218
s_mov_b32 s53, 0x3e22f983
s_mov_b32 s54, 0x07060302
v_readfirstlane_b32 s56, v3
s_waitcnt lgkmcnt(0)""")
    st()
    PS = [16, 24, 40, 64]
    if KG_SMEM:
        a("""s_lshl_b32 s57, s56, 5
s_add_u32 s3, s3, s57""")
        for i in range(4):
            a(f"""s_add_u32 s{4+2*i}, s{4+2*i}, s3
    s_addc_u32 s{5+2*i}, s{5+2*i}, 0
    s_load_dwordx8 s[{PS[i]}:{PS[i]+7}], s[{4+2*i}:{5+2*i}], 0""")
        srd(a, 32, 14, WSBYTES)

    else:
        for i in range(4): srd(a, 16 + 4 * i, 4 + 2 * i, 131072)
        srd(a, 32, 14, WSBYTES)
        for i in range(4):
            a(f"buffer_load_ushort v{8+i}, v4, s[{16+4*i}:{19+4*i}], s3 offen")
    a(f"""s_lshr_b32 s36, s{ch_sgpr}, 1
s_lshl_b32 s36, s36, 2
s_add_u32 s12, s12, s36
s_addc_u32 s13, s13, 0
s_load_dword s37, s[12:13], 0""")
    global _LBL
    _LBL += 1
    if KG_TAB:
        a(f"""s_getpc_b64 s[58:59]
L_ktref{_LBL}:
s_add_u32 s58, s58, L_ktab-L_ktref{_LBL}
s_addc_u32 s59, s59, 0
v_lshlrev_b32 v28, 4, v1
global_load_dwordx4 v[24:27], v28, s[58:59]""")
    else:
        a(f"""v_lshrrev_b32 v28, 3, v1
v_lshlrev_b32 v28, 7, v28
v_and_b32 v29, 7, v1
v_or_b32 v24, v28, v29
v_lshrrev_b32 v28, 2, v1
v_lshlrev_b32 v28, 7, v28
v_and_b32 v29, 3, v1
v_lshl_add_u32 v28, v29, 1, v28
v_add_u32 v28, 256, v28
v_bfe_u32 v29, v1, 1, 2
v_lshlrev_b32 v29, 7, v29
v_and_b32 v30, 1, v1
v_lshl_add_u32 v29, v30, 2, v29
v_add_u32 v29, 512, v29
v_cmp_gt_u32 vcc, 8, v1
v_cndmask_b32 v25, v29, v28, vcc
v_lshlrev_b32 v28, 7, v1
v_add_u32 v28, 1024, v28
v_min_u32 v26, 2048, v28
v_lshlrev_b32 v27, 3, v1
v_cvt_f32_u32 v24, v24
v_cvt_f32_u32 v25, v25
v_cvt_f32_u32 v26, v26
v_cvt_f32_u32 v27, v27""")
    a(f"""v_lshlrev_b32 v5, 8, v3
v_lshl_add_u32 v6, v1, 4, v5
v_lshl_add_u32 v5, v2, 6, v5
s_waitcnt lgkmcnt(0)
s_lshl_b32 s38, s37, 16
s_and_b32 s39, s37, 0xffff0000
s_bitcmp1_b32 s{ch_sgpr}, 0
s_cselect_b32 s38, s39, s38
v_mov_b32 v28, s38""")
    exp_acc(a, 29, 28, 30, 31)
    a("""v_cvt_pk_bf16_f32 v29, v29, v29
v_and_b32 v29, 0xffff0000, v29""")
    if not KG_SMEM:
        a("s_waitcnt vmcnt(0)")
        st()
        for i in range(4): lo(a, 8 + i, 8 + i)
    else:
        st()
        for i in range(4):
            for kk in range(8):
                a(f"v_writelane_b32 v{8+i}, s{PS[i]+kk}, {kk}")
        a("""v_lshrrev_b32 v16, 1, v1
v_lshlrev_b32 v16, 2, v16
v_and_b32 v17, 1, v1
v_xor_b32 v17, 1, v17
v_lshlrev_b32 v17, 4, v17""")
        for i in range(4): a(f"ds_bpermute_b32 v{8+i}, v16, v{8+i}")
        a("s_waitcnt lgkmcnt(0)")
        for i in range(4):
            a(f"v_lshlrev_b32 v{8+i}, v17, v{8+i}")
            a(f"v_and_b32 v{8+i}, 0xffff0000, v{8+i}")
    exp_acc(a, 12, 8, 30, 31)
    a(f"""v_cvt_pk_bf16_f32 v12, v12, v12
v_and_b32 v12, 0xffff0000, v12
v_mul_f32 v12, v12, v29
v_mul_f32 v12, 0xbfb8aa3b, v12
v_mul_f32 v13, v9, v29
v_mul_f32 v13, s53, v13
v_mul_f32 v14, v10, v29
v_mul_f32 v15, v11, v29
v_add_f32 v14, v14, v14
v_add_f32 v15, v15, v15
ds_write_b128 v6, v[12:15] offset:{KPRM}
s_waitcnt lgkmcnt(0)""")
    a("s_waitcnt vmcnt(0)")
    st()
    a("v_mov_b32 v7, 0x07060302")
    tmp = list(range(16, 24)) + list(range(28, 44))
    XS_ = [44, 45, 46, 47]
    for bt in range(2):
        for mm in range(2):
            a(f"ds_read_b128 v[{8+4*mm}:{11+4*mm}], v5 offset:{KPRM + 16*(2*bt+mm)}")
        a("s_waitcnt lgkmcnt(0)")
        items = [(mm, T) for mm in range(2) for T in range(4)]
        Er = {it: tmp[3 * k] for k, it in enumerate(items)}
        Sr = {it: tmp[3 * k + 1] for k, it in enumerate(items)}
        Cr = {it: tmp[3 * k + 2] for k, it in enumerate(items)}
        for it in items: a(f"v_mul_f32 v{Sr[it]}, v{9+4*it[0]}, v{24+it[1]}")
        for it in items: a(f"v_mul_f32 v{Er[it]}, v{8+4*it[0]}, v{24+it[1]}")
        for it in items: a(f"v_fract_f32 v{Sr[it]}, v{Sr[it]}")
        for it in items: a(f"v_exp_f32 v{Er[it]}, v{Er[it]}")
        for it in items: a(f"v_cos_f32 v{Cr[it]}, v{Sr[it]}")
        for it in items: a(f"v_sin_f32 v{Sr[it]}, v{Sr[it]}")
        for it in items:
            if it[1] < 3:
                a(f"v_mul_f32 v{Cr[it]}, v{Cr[it]}, v{Er[it]}")
                a(f"v_mul_f32 v{Sr[it]}, v{Sr[it]}, v{Er[it]}")
        cols = [it for it in items if it[1] == 3]
        for n, it in enumerate(cols):
            a(f"v_mul_f32 v{XS_[2*n]}, v{10+4*it[0]}, v{Er[it]}")
            a(f"v_mul_f32 v{Er[it]}, v{11+4*it[0]}, v{Er[it]}")
        for n, it in enumerate(cols):
            a(f"v_mul_f32 v{XS_[2*n+1]}, v{Er[it]}, v{Sr[it]}")
            a(f"v_mul_f32 v{Er[it]}, v{Er[it]}, v{Cr[it]}")
        for n, it in enumerate(cols):
            a(f"v_fma_f32 v{Cr[it]}, v{XS_[2*n]}, v{Cr[it]}, -v{XS_[2*n+1]}")
            a(f"v_fma_f32 v{Sr[it]}, -v{XS_[2*n]}, v{Sr[it]}, -v{Er[it]}")
        def HL(it):
            m = 2 * bt + it[0]
            return (48 + 4 * it[1] + m, 60 + 4 * it[1] + m) if it[1] < 3 else (72 + m, 76 + m)
        for it in items: a(f"v_perm_b32 v{HL(it)[0]}, v{Sr[it]}, v{Cr[it]}, v7")
        for it in items: a(f"v_and_b32 v{Er[it]}, 0xffff0000, v{Cr[it]}")
        for it in items: a(f"v_sub_f32 v{Cr[it]}, v{Cr[it]}, v{Er[it]}")
        for it in items: a(f"v_and_b32 v{Er[it]}, 0xffff0000, v{Sr[it]}")
        for it in items: a(f"v_sub_f32 v{Sr[it]}, v{Sr[it]}, v{Er[it]}")
        for it in items: a(f"v_cvt_pk_bf16_f32 v{HL(it)[1]}, v{Cr[it]}, v{Sr[it]}")
    st()
    if KG_TAB:
        a("""v_lshlrev_b32 v16, 4, v0
global_load_dwordx4 v[8:11], v16, s[58:59] offset:256""")
    for T in range(3):
        D = 32 + 4 * T
        a(f"v_mfma_f32_16x16x32_bf16 v[{D}:{D+3}], v[{60+4*T}:{63+4*T}], v[72:75], 0")
        a(f"v_mfma_f32_16x16x32_bf16 v[{D}:{D+3}], v[{48+4*T}:{51+4*T}], v[76:79], v[{D}:{D+3}]")
        a(f"v_mfma_f32_16x16x32_bf16 v[{D}:{D+3}], v[{48+4*T}:{51+4*T}], v[72:75], v[{D}:{D+3}]")
    a("""v_and_b32 v30, 63, v0
v_lshlrev_b32 v30, 4, v30
v_mul_u32_u24 v31, 3072, v3
v_add_u32 v31, v31, v30""")
    a("""v_and_b32 v7, 3, v0
v_lshrrev_b32 v5, 2, v0""")
    if not KG_TAB:
        a("v_lshl_add_u32 v4, v5, 3, v7")
        for it in range(2):
            a(f"v_add_u32 v{8+2*it}, {1024*it}, v4")
            a(f"v_add_u32 v{9+2*it}, {1024*it+4}, v4")
        for k in range(4): a(f"v_cvt_f32_u32 v{8+k}, v{8+k}")
        for k in range(0, 4, 2):
            a(f"v_cvt_pk_bf16_f32 v17, v{8+k}, v{9+k}")
            lo(a, 8 + k, 17); hi(a, 9 + k, 17)
        for k in range(4):
            a(f"v_cvt_u32_f32 v{8+k}, v{8+k}")
            a(f"v_lshlrev_b32 v{8+k}, 2, v{8+k}")
    a(f"""s_lshl_b32 s42, s{ch_sgpr}, {11+NP}
s_add_u32 s42, s42, {KW}
v_lshlrev_b32 v4, 10, v7
v_lshl_add_u32 v4, v5, 2, v4""")
    for T in range(3):
        a(f"ds_write_b128 v31, v[{32+4*T}:{35+4*T}] offset:{KPART + 1024*T}")
    st()
    _LBL += 1
    L = f"L_kg{_LBL}"
    if swbar is None:
        a("""s_waitcnt lgkmcnt(0)
s_barrier""")
    else: sw_barrier(a, swbar, 8, 64, 65, 58, f"{L}_sb1")
    st()
    a(f"""s_cmp_ge_u32 s56, 3
s_cbranch_scc1 {L}_skip
s_lshl_b32 s57, s56, 10
v_add_u32 v30, s57, v30""")
    for w in range(8):
        a(f"ds_read_b128 v[{32+4*w}:{35+4*w}], v30 offset:{KPART + 3072*w}")
    a("v_lshlrev_b32 v65, 5, v1")
    a("s_waitcnt lgkmcnt(0)")
    for r in range(4):
        a(f"""v_add_f32 v{32+r}, v{32+r}, v{36+r}
v_add_f32 v{40+r}, v{40+r}, v{44+r}
v_add_f32 v{48+r}, v{48+r}, v{52+r}
v_add_f32 v{56+r}, v{56+r}, v{60+r}
v_add_f32 v{32+r}, v{32+r}, v{40+r}
v_add_f32 v{48+r}, v{48+r}, v{56+r}
v_add_f32 v{32+r}, v{32+r}, v{48+r}""")
    a(f"""s_cmp_eq_u32 s56, 1
s_cbranch_scc1 {L}_t1
s_cmp_eq_u32 s56, 2
s_cbranch_scc1 {L}_t2
v_lshrrev_b32 v64, 1, v2
v_lshlrev_b32 v64, 9, v64
v_and_b32 v66, 1, v2
v_lshl_add_u32 v64, v66, 4, v64
v_add_u32 v64, v65, v64
ds_write_b128 v64, v[32:35] offset:{KTAB0}
s_branch {L}_skip
{L}_t1:
v_lshlrev_b32 v64, 9, v2
v_add_u32 v64, 1024, v64
v_lshlrev_b32 v66, 10, v2
v_cmp_gt_u32 vcc, 2, v2
v_cndmask_b32 v64, v66, v64, vcc
v_add_u32 v64, v65, v64
ds_write_b32 v64, v32 offset:{KTAB0}
v_mov_b32 v67, 16
v_cndmask_b32 v66, v67, 8, vcc
v_add_u32 v66, v64, v66
ds_write_b32 v66, v33 offset:{KTAB0}
v_mov_b32 v67, 512
v_cndmask_b32 v66, v67, 16, vcc
v_add_u32 v66, v64, v66
ds_write_b32 v66, v34 offset:{KTAB0}
v_mov_b32 v67, 528
v_cndmask_b32 v66, v67, 24, vcc
v_add_u32 v66, v64, v66
ds_write_b32 v66, v35 offset:{KTAB0}
s_branch {L}_skip
{L}_t2:
v_lshlrev_b32 v64, 11, v2
v_add_u32 v64, v65, v64
v_cmp_gt_u32 vcc, 3, v2
s_and_saveexec_b64 s[40:41], vcc
ds_write_b32 v64, v32 offset:{KTAB0+4096}
s_mov_b64 exec, s[40:41]
v_cmp_gt_u32 vcc, 2, v2
s_and_saveexec_b64 s[40:41], vcc
ds_write_b32 v64, v33 offset:{KTAB0+4608}
ds_write_b32 v64, v34 offset:{KTAB0+5120}
ds_write_b32 v64, v35 offset:{KTAB0+5632}
s_mov_b64 exec, s[40:41]
{L}_skip:""")
    if swbar is None:
        a("""s_waitcnt lgkmcnt(0)
s_barrier""")
    else: sw_barrier(a, swbar + 4, 8, 64, 65, 58, f"{L}_sb2")
    st()
    if KG_TAB: a("s_waitcnt vmcnt(0)")
    for k in range(4):
        a(f"ds_read_b32 v{20+k}, v{8+k} offset:{KTAB0}")
    a("s_waitcnt lgkmcnt(0)")
    for it in range(2):
        a(f"v_cvt_pk_bf16_f32 v{16+it}, v{20+2*it}, v{21+2*it}")
        a(f"buffer_store_dword v{16+it}, v4, s[32:35], s42 offen offset:{512*it}")
        if NP == 2:
            lo(a, 24, 16 + it); hi(a, 25, 16 + it)
            a(f"v_sub_f32 v24, v{20+2*it}, v24")
            a(f"v_sub_f32 v25, v{21+2*it}, v25")
            a(f"v_cvt_pk_bf16_f32 v{18+it}, v24, v25")
    if NP == 2:
        a("s_add_u32 s42, s42, 4096")
        for it in range(2):
            a(f"buffer_store_dword v{18+it}, v4, s[32:35], s42 offen offset:{512*it}")
    st.finish(32)
    return 80

def k_front(NP, nk=256, ch0=256, kfirst=False):
    name = "front_kernel"
    a = Asm()
    E = f"L_{name}"
    if kfirst and nk:
        a(f"""s_add_u32 s60, s2, 256
s_sub_u32 s61, s2, {nk}
s_cmp_lt_u32 s2, {nk}
s_cselect_b32 s61, s60, s61
s_cmp_lt_u32 s2, {nk+256}
s_cselect_b32 s2, s61, s2""")
    a(f"""s_cmp_ge_u32 s2, 256
s_cbranch_scc1 {E}_kgen
s_setprio 3
s_load_dwordx2 s[10:11], s[0:1], 120""")
    st = Stamps(a, 2)
    nv1 = conv_body(a, "A", 1, st, E, False)
    a(f"""s_endpgm
{E}_kgen:
s_cmp_ge_u32 s2, {256+nk}
s_cbranch_scc1 {E}_end
s_add_u32 s55, s2, {ch0-256}""")
    st2 = Stamps(a, 1)
    nv2 = kgen_body(a, NP, st2, 55)
    a(f"""{E}_end:
s_endpgm""")
    return kernel_text(name, a.text(), max(nv1, nv2), SG(64))

def SLDS(): return PCONV_LDS(1) + KGEN_LDS + 64
def k_convA_kgen(NP, ch0):
    name = "convA_kernel"
    a = Asm()
    E = f"L_{name}"
    cnt = PCONV_LDS(1) + KGEN_LDS
    a(f"""s_cmp_ge_u32 s2, 256
s_cbranch_scc1 {E}_end
v_mov_b32 v1, {cnt}
v_mov_b32 v2, 0
v_mov_b32 v3, 0
v_mov_b32 v4, 0
v_mov_b32 v5, 0
v_cmp_eq_u32 vcc, 0, v0
s_and_saveexec_b64 s[4:5], vcc
ds_write_b128 v1, v[2:5]
s_mov_b64 exec, s[4:5]
v_lshrrev_b32 v1, 9, v0
s_nop 0
v_readfirstlane_b32 s6, v1
s_waitcnt lgkmcnt(0)
s_barrier
s_cmp_eq_u32 s6, 1
s_cbranch_scc1 {E}_kgen
s_setprio 3
s_load_dwordx2 s[10:11], s[0:1], 120""")
    st = Stamps(a, 2)
    nv1 = conv_body_p(a, "A", 1, st, E, sbuf=True, swbar=cnt, cbase=KGEN_LDS)
    a(f"""s_endpgm
{E}_kgen:
v_and_b32 v0, 511, v0
s_add_u32 s55, s2, {ch0}""")
    st2 = Stamps(a, 1)
    nv2 = kgen_body(a, NP, st2, 55, lbase=0, swbar=cnt + 8)
    a(f"""{E}_end:
s_endpgm""")
    assert max(nv1, nv2) <= 128, (nv1, nv2)
    return kernel_text(name, a.text(), max(nv1, nv2), SG(64))

def ktab_text():
    import struct, numpy as np
    out = [".p2align 8", "L_ktab:"]
    f2u = lambda x: struct.unpack("<I", struct.pack("<f", float(x)))[0]
    for i in range(16):
        p0 = ((i >> 3) << 7) | (i & 7)
        p1 = 256 + ((i >> 2) << 7) + ((i & 3) << 1) if i < 8 else 512 + (((i >> 1) & 3) << 7) + ((i & 1) << 2)
        p2 = min(1024 + 128 * i, 2048)
        out.append(".long " + ", ".join(hex(f2u(x)) for x in (p0, p1, p2, 8 * i)))
    def rne(l):
        u = f2u(l); u = (u + 0x7FFF + ((u >> 16) & 1)) & 0xFFFF0000
        return int(struct.unpack("<f", struct.pack("<I", u))[0])
    for t in range(512):
        f, n2 = t & 3, t >> 2
        ls = [8 * n2 + f, 8 * n2 + f + 4, 8 * n2 + f + 1024, 8 * n2 + f + 1028]
        out.append(".long " + ", ".join(str(4 * rne(l)) for l in ls))
    return "\n".join(out)
```

```python
from asmlib import *
import kern
from kern import srd, lo, hi, xcd_remap, Stamps, LdsQ, exp_acc, MB2, WSBYTES

KVT, YA, X1, X2, X3, ST1, ST3, KW = 0x0, 0x200000, 0x400000, 0x600000, 0x800000, 0xA00000, 0xA10000, 0xC00000
ROW_OUT_T2 = True
_LBL = 0
KV_T2 = False
QH, X0T = 0x1400000, 0x1600000
FUSE_X1 = False
def SG(n): return 102 if kern.DIAG else max(n, 72)

KV_PRIO = True
CODE_PREFETCH = 0
EARLY_PF = False
PF_OUT = False
PFQ_CONV = False
KG_TAB = False
KV_WFIRST = False
KG_SMEM = False
PF_LATE = False
KG_FLUSH = False
PF_D = False
PF_K = False
TLB_WARM = False
DATA_PREFETCH = False
def k_kv(NP=1, nk=0, kfirst=False):
    a = Asm()
    if CODE_PREFETCH == 1:
        a(f"""s_cmp_ge_u32 s2, 8
s_cbranch_scc1 L_kv_nopf
s_getpc_b64 s[58:59]
L_pf_base:
v_lshlrev_b32 v1, 7, v0
v_cmp_gt_u32 vcc, L_code_end-L_pf_base-4, v1
s_and_saveexec_b64 s[60:61], vcc
s_cbranch_execz L_kv_pfdone
global_load_dword v40, v1, s[58:59]
L_kv_pfdone:
s_mov_b64 exec, s[60:61]""")
        if TLB_WARM:
            a("""s_load_dwordx4 s[4:7], s[0:1], 96
s_load_dwordx2 s[8:9], s[0:1], 120
s_load_dwordx2 s[10:11], s[0:1], 40
v_lshlrev_b32 v1, 15, v0
v_lshlrev_b32 v2, 12, v0
v_mov_b32 v3, 0
s_waitcnt lgkmcnt(0)
global_load_dword v41, v1, s[8:9]
global_load_dword v42, v2, s[6:7]
global_load_dword v43, v3, s[4:5]
global_load_dword v44, v3, s[10:11]""")
        a("L_kv_nopf:")
    if kfirst and nk:
        a(f"""s_add_u32 s60, s2, 256
s_sub_u32 s61, s2, {nk}
s_cmp_lt_u32 s2, {nk}
s_cselect_b32 s61, s60, s61
s_cmp_lt_u32 s2, {nk+256}
s_cselect_b32 s2, s61, s2""")
    a("""s_cmp_ge_u32 s2, 256
s_cbranch_scc1 L_kv_kgen
""" + ("s_setprio 3" if KV_PRIO else "") + """
s_load_dwordx4 s[4:7], s[0:1], 8
s_load_dwordx2 s[8:9], s[0:1], 24
s_load_dwordx2 s[10:11], s[0:1], 120
s_load_dwordx2 s[32:33], s[0:1], 0
s_load_dwordx2 s[34:35], s[0:1], 32
s_load_dwordx2 s[50:51], s[0:1], 40
s_load_dwordx2 s[52:53], s[0:1], 96""")
    st = Stamps(a, 0); st()
    xcd_remap(a, 3, 12)
    a("""v_and_b32 v1, 255, v0
v_lshrrev_b32 v2, 8, v0
s_lshl_b32 s13, s3, 3
v_lshl_add_u32 v3, v2, 2, s13
v_lshlrev_b32 v4, 10, v3
v_lshl_add_u32 v4, v1, 2, v4
v_subrev_u32 v5, 3072, v4
v_subrev_u32 v6, 2048, v4
v_subrev_u32 v7, 1024, v4
v_lshlrev_b32 v8, 4, v1
v_lshrrev_b32 v9, 2, v1
v_lshlrev_b32 v9, 15, v9
v_lshl_add_u32 v9, v3, 4, v9
v_and_b32 v21, 3, v1
v_lshl_add_u32 v9, v21, 2, v9
s_waitcnt lgkmcnt(0)""")
    srd(a, 16, 4, MB2); srd(a, 20, 6, MB2); srd(a, 24, 8, 4096); srd(a, 28, 10, WSBYTES)
    a("buffer_load_dwordx4 v[24:27], v8, s[24:27], 0 offen")
    if KV_WFIRST:
        a("s_waitcnt vmcnt(0)")
        for ch in range(2):
            lo(a, 28 + 4 * ch + 0, 24 + 2 * ch); hi(a, 28 + 4 * ch + 1, 24 + 2 * ch)
            lo(a, 28 + 4 * ch + 2, 25 + 2 * ch); hi(a, 28 + 4 * ch + 3, 25 + 2 * ch)
    a("""buffer_load_dword v10, v5, s[16:19], 0 offen
buffer_load_dword v11, v6, s[16:19], 0 offen
buffer_load_dword v12, v7, s[16:19], 0 offen
buffer_load_dword v13, v4, s[16:19], 0 offen
buffer_load_dword v14, v4, s[16:19], 0 offen offset:1024
buffer_load_dword v15, v4, s[16:19], 0 offen offset:2048
buffer_load_dword v16, v4, s[16:19], 0 offen offset:3072
buffer_load_dword v17, v4, s[20:23], 0 offen
buffer_load_dword v18, v4, s[20:23], 0 offen offset:1024
buffer_load_dword v19, v4, s[20:23], 0 offen offset:2048
buffer_load_dword v20, v4, s[20:23], 0 offen offset:3072""")
    npf = 0
    if FUSE_X1:
        srd(a, 36, 32, MB2); srd(a, 40, 34, MB2)
        for r in range(4):
            a(f"buffer_load_dword v{64+r}, v4, s[36:39], 0 offen offset:{1024*r}")
        a("""s_lshl_b32 s44, s3, 13
v_lshrrev_b32 v22, 6, v0
v_and_b32 v23, 7, v0
v_lshl_add_u32 v22, v22, 3, v23
v_lshlrev_b32 v22, 7, v22
s_mov_b64 exec, 0xff
buffer_load_dword v68, v22, s[40:43], s44 offen
s_mov_b64 exec, -1
v_and_b32 v75, 7, v0
v_add_u32 v75, s13, v75
v_lshlrev_b32 v75, 10, v75
v_lshrrev_b32 v76, 3, v0
v_lshl_add_u32 v76, v76, 4, v75
buffer_load_dwordx4 v[70:73], v76, s[36:39], 0 offen
buffer_load_dword v74, v75, s[36:39], 0 offen""")
        npf = 7
    elif DATA_PREFETCH and not PF_LATE:
        srd(a, 36, 32, MB2); srd(a, 40, 34, MB2)
        a("""s_lshl_b32 s44, s3, 13
v_lshrrev_b32 v22, 6, v0
v_and_b32 v23, 7, v0
v_lshl_add_u32 v22, v22, 3, v23
v_lshlrev_b32 v22, 7, v22
s_mov_b64 exec, 0xff
buffer_load_dword v64, v22, s[40:43], s44 offen
buffer_load_dword v65, v22, s[36:39], s44 offen
s_mov_b64 exec, -1""")
        npf = 2
        if PF_D:
            a("""s_lshl_b32 s45, s3, 2
s_add_u32 s50, s50, s45
s_addc_u32 s51, s51, 0
s_add_u32 s52, s52, s45
s_addc_u32 s53, s53, 0
s_load_dword s54, s[50:51], 0
s_load_dword s55, s[52:53], 0""")
    if not KV_WFIRST:
        a(f"s_waitcnt vmcnt({11+npf})")
        for ch in range(2):
            lo(a, 28 + 4 * ch + 0, 24 + 2 * ch); hi(a, 28 + 4 * ch + 1, 24 + 2 * ch)
            lo(a, 28 + 4 * ch + 2, 25 + 2 * ch); hi(a, 28 + 4 * ch + 3, 25 + 2 * ch)
    a(f"s_waitcnt vmcnt({4+npf})")
    for i in range(7):
        lo(a, 36 + i, 10 + i); hi(a, 44 + i, 10 + i)
    a(f"s_waitcnt vmcnt({npf})")
    if CODE_PREFETCH == 2:
        a("""s_cmp_ge_u32 s2, 8
s_cbranch_scc1 L_kv_nopf2
s_getpc_b64 s[58:59]
L_pf_base:
s_sub_u32 s58, s58, L_pf_base-kv_kernel
s_subb_u32 s59, s59, 0
v_lshlrev_b32 v22, 7, v0
v_min_u32 v22, L_code_end-kv_kernel-4, v22
global_load_dword v69, v22, s[58:59]""")
        if TLB_WARM:
            a("""s_load_dwordx2 s[48:49], s[0:1], 104
v_lshlrev_b32 v22, 15, v0
v_lshlrev_b32 v23, 12, v0
s_waitcnt lgkmcnt(0)
global_load_dword v67, v22, s[10:11]
global_load_dword v68, v23, s[48:49]""")
        a("L_kv_nopf2:")
    if DATA_PREFETCH and PF_LATE and not FUSE_X1:
        srd(a, 36, 32, MB2); srd(a, 40, 34, MB2)
        a("""s_lshl_b32 s44, s3, 13
v_lshrrev_b32 v22, 6, v0
v_and_b32 v23, 7, v0
v_lshl_add_u32 v22, v22, 3, v23
v_lshlrev_b32 v22, 7, v22
s_mov_b64 exec, 0xff
buffer_load_dword v64, v22, s[40:43], s44 offen""")
        if not PFQ_CONV: a("buffer_load_dword v65, v22, s[36:39], s44 offen")
        a("s_mov_b64 exec, -1")
    st()
    for r in range(4):
        for t in range(4):
            w = 3 - t
            a(f"v_mul_f32 v54, v{36+r+t}, v{28+w}")
            a(f"v_mul_f32 v55, v{44+r+t}, v{32+w}")
            a("v_cvt_pk_bf16_f32 v56, v54, v55")
            if t == 0:
                lo(a, 52, 56); hi(a, 53, 56)
            else:
                lo(a, 54, 56); hi(a, 55, 56)
                a("v_add_f32 v52, v52, v54")
                a("v_add_f32 v53, v53, v55")
                a("v_cvt_pk_bf16_f32 v56, v52, v53")
                lo(a, 52, 56); hi(a, 53, 56)
        lo(a, 54, 17 + r); hi(a, 55, 17 + r)
        a("v_mul_f32 v52, v52, v54")
        a("v_mul_f32 v53, v53, v55")
        a(f"v_cvt_pk_bf16_f32 v{60+r}, v52, v53")
        if not KV_T2: a(f"buffer_store_dword v{60+r}, v9, s[28:31], 0 offen offset:{16*r}")
    if KV_T2:
        a("""v_lshlrev_b32 v9, 13, v1
v_lshl_add_u32 v9, v3, 2, v9
buffer_store_dwordx4 v[60:63], v9, s[28:31], 0 offen""")
        if FUSE_X1:
            a(f"""s_mov_b32 s45, {X0T}
s_waitcnt vmcnt(4)
buffer_store_dwordx4 v[64:67], v9, s[28:31], s45 offen
s_waitcnt vmcnt(2)""")
            ln0_compute(a)
    st.finish(28)
    a(f"""s_endpgm
L_kv_kgen:
s_cmp_ge_u32 s2, {256+nk}
s_cbranch_scc1 L_kv_ln0""")
    nv = 72
    if nk:
        a("s_sub_u32 s55, s2, 256")
        st2 = Stamps(a, 0)
        nv = kgen_body(a, NP, st2, 55)
    a("""s_endpgm
L_kv_ln0:""")
    a("""L_kv_end:
s_endpgm""")
    return kernel_text("kv_kernel", a.text(), max(nv, 80), SG(64))

XLS = 4160
WL0 = 8 * XLS
WAS = 1152
def EX0(NP): return WL0 + 8 * NP * WAS
def CONV_LDS(NP): return EX0(NP) + 32768
SSETS = [[7, 4, 3, 0], [6, 5, 2, 1]]

def conv_body(a, kind, NP, st, E, dbuf):
    ex0 = EX0(NP)
    if kind == "A":
        a("s_load_dwordx4 s[4:7], s[0:1], 32")
    else:
        a("s_load_dwordx4 s[4:7], s[0:1], 96")
    st()
    xcd_remap(a, 3, 12)
    a("""v_lshrrev_b32 v1, 6, v0
v_and_b32 v2, 63, v0
v_lshlrev_b32 v3, 6, v0
v_lshlrev_b32 v14, 4, v0
v_readfirstlane_b32 s14, v1
s_lshr_b32 s13, s3, 2
s_lshl_b32 s13, s13, 15
s_and_b32 s12, s3, 3
s_lshl_b32 s12, s12, 2
s_add_u32 s13, s13, s12
s_lshl_b32 s15, s3, 2
s_waitcnt lgkmcnt(0)""")
    srd(a, 28, 10, WSBYTES)
    src = {"A": KVT, "B1": X1, "B2": X3}[kind]
    a(f"""s_lshl_b32 s13, s3, 13
s_add_u32 s32, s13, {src}
buffer_load_dwordx4 v[4:7], v14, s[28:31], s32 offen""")
    if kind == "A":
        srd(a, 16, 4, MB2)
        a("s_lshl_b32 s35, s3, 13")
        a("buffer_load_dwordx4 v[48:51], v14, s[16:19], s35 offen")
        if FUSE_X1:
            a(f"s_add_u32 s34, s13, {QH}")
            a("buffer_load_dwordx4 v[8:11], v14, s[28:31], s34 offen")
            a(f"s_add_u32 s34, s13, {X0T}")
            a("buffer_load_dwordx4 v[100:103], v14, s[28:31], s34 offen")
        a("s_add_u32 s6, s6, s15")
        a("s_addc_u32 s7, s7, 0")
        a("s_load_dword s33, s[6:7], 0")
    else:
        stt = {"B1": ST1, "B2": ST3}[kind]
        a(f"s_mov_b32 s34, {stt}")
        a("buffer_load_dwordx4 v[48:51], v14, s[28:31], s34 offen")
        a(f"s_lshl_b32 s35, s3, {12 + NP}")
        a(f"s_add_u32 s35, s35, {KW}")
        if NP == 2:
            a("v_lshlrev_b32 v60, 5, v0")
            a("buffer_load_dwordx4 v[52:55], v60, s[28:31], s35 offen")
            a("buffer_load_dwordx4 v[56:59], v60, s[28:31], s35 offen offset:16")
        else:
            a("buffer_load_dwordx4 v[52:55], v14, s[28:31], s35 offen")
        a("s_add_u32 s4, s4, s15")
        a("s_addc_u32 s5, s5, 0")
        a("s_load_dword s33, s[4:5], 0")
        if kind == "B2":
            srd(a, 20, 6, MB2)
    na = 8 * NP
    a(f"""v_mov_b32 v64, 0
v_mov_b32 v65, 0
v_mov_b32 v66, 0
v_mov_b32 v67, 0
v_lshrrev_b32 v61, 3, v0
v_mul_u32_u24 v61, {WAS}, v61
v_and_b32 v62, 7, v0
v_lshl_add_u32 v61, v62, 4, v61
v_cmp_gt_u32 vcc, {na*8}, v0
s_and_saveexec_b64 s[36:37], vcc
ds_write_b128 v61, v[64:67] offset:{WL0}
s_mov_b64 exec, s[36:37]
v_lshrrev_b32 v61, 1, v0
v_mul_u32_u24 v61, {XLS}, v61
v_and_b32 v62, 1, v0
v_lshl_add_u32 v61, v62, 4, v61
v_cmp_gt_u32 vcc, 16, v0
s_and_saveexec_b64 s[36:37], vcc
ds_write_b128 v61, v[64:67]
s_mov_b64 exec, s[36:37]
v_cmp_eq_u32 vcc, 0, v0
s_and_saveexec_b64 s[36:37], vcc""")
    for ch in range(2):
        b = ch * 4 * XLS
        a(f"ds_write_b16 v64, v64 offset:{b + 1*XLS + 32}")
        a(f"ds_write_b32 v64, v64 offset:{b + 2*XLS + 32}")
        a(f"ds_write_b32 v64, v64 offset:{b + 3*XLS + 32}")
        a(f"ds_write_b16 v64, v64 offset:{b + 3*XLS + 36}")
    a("""s_mov_b64 exec, s[36:37]
s_mov_b32 s38, 0x05040100
s_mov_b32 s39, 0x07060302""")
    a(f"""s_lshr_b32 s40, s14, 2
s_bfe_u32 s41, s14, 0x10001
s_lshl_b32 s41, s41, 1
s_lshl_b32 s42, s40, 2
s_add_u32 s42, s42, s41
s_mul_i32 s42, s42, {XLS}
s_add_u32 s42, s42, 32
s_mul_i32 s43, s40, {NP*4}
s_add_u32 s43, s43, s41
s_mul_i32 s43, s43, {WAS}
s_add_u32 s43, s43, {WL0 + 56}
v_lshrrev_b32 v70, 4, v2
v_and_b32 v71, 3, v2
v_bfe_u32 v72, v2, 2, 2
v_sub_u32 v71, v71, v72
v_lshlrev_b32 v71, 3, v71
v_lshl_add_u32 v71, v70, 6, v71
v_add_u32 v12, s42, v71
v_and_b32 v71, 15, v2
v_lshlrev_b32 v71, 3, v71
v_lshlrev_b32 v72, 4, v70
v_sub_u32 v71, v71, v72
v_add_u32 v13, s43, v71""")
    VXA, VWB, ACC = 12, 13, 16
    for i in range(16): a(f"v_mov_b32 v{ACC+i}, 0")
    if kind == "A":
        a(f"""v_lshrrev_b32 v61, 8, v0
v_mul_u32_u24 v61, {4*WAS}, v61
v_and_b32 v62, 255, v0
v_lshl_add_u32 v61, v62, 2, v61
s_waitcnt vmcnt({2 if FUSE_X1 else 0})""")
        st()
        XS = 4
        a(f"""v_perm_b32 v64, v50, v48, s38
v_perm_b32 v65, v50, v48, s39
v_perm_b32 v66, v51, v49, s38
v_perm_b32 v67, v51, v49, s39
ds_write_b32 v61, v64 offset:{WL0+128}
ds_write_b32 v61, v65 offset:{WL0+128+WAS}
ds_write_b32 v61, v66 offset:{WL0+128+2*WAS}
ds_write_b32 v61, v67 offset:{WL0+128+3*WAS}""")
    else:
        if NP == 2:
            a(f"""v_lshrrev_b32 v61, 5, v0
v_mul_u32_u24 v61, {WAS}, v61
v_and_b32 v62, 31, v0
v_lshl_add_u32 v61, v62, 5, v61
s_waitcnt vmcnt(2)""")
        else:
            a(f"""v_mul_u32_u24 v61, {WAS}, v1
v_lshl_add_u32 v61, v2, 4, v61
s_waitcnt vmcnt(1)""")
        st()
        for r in range(4):
            lo(a, 72, 48 + r); hi(a, 73, 48 + r)
            a("v_rcp_f32 v74, v73")
            lo(a, 75, 4 + r); hi(a, 76, 4 + r)
            a("v_sub_f32 v75, v75, v72")
            a("v_sub_f32 v76, v76, v72")
            a("v_cvt_pk_bf16_f32 v77, v75, v76")
            lo(a, 75, 77); hi(a, 76, 77)
            for x in (75, 76):
                a(f"v_mul_f32 v78, v{x}, v74")
                a(f"v_fma_f32 v79, -v78, v73, v{x}")
                a(f"v_fma_f32 v{x}, v79, v74, v78")
            a(f"v_cvt_pk_bf16_f32 v{8+r}, v75, v76")
        XS = 8
    a("v_lshlrev_b32 v62, 3, v0")
    for ch in range(2):
        sel = "s38" if ch == 0 else "s39"
        b = ch * 4 * XLS + 32
        e0, e1, o1 = 64 + 4 * ch, 65 + 4 * ch, 66 + 4 * ch
        a(f"""v_perm_b32 v{e0}, v{XS+1}, v{XS}, {sel}
v_perm_b32 v{e1}, v{XS+3}, v{XS+2}, {sel}
v_perm_b32 v{o1}, v{XS+2}, v{XS+1}, {sel}
ds_write_b64 v62, v[{e0}:{e1}] offset:{b}
ds_write_b16 v62, v{e0} offset:{b + XLS + 2}
ds_write_b32 v62, v{o1} offset:{b + XLS + 4}
ds_write_b16_d16_hi v62, v{e1} offset:{b + XLS + 8}
ds_write_b32 v62, v{e0} offset:{b + 2*XLS + 4}
ds_write_b32 v62, v{e1} offset:{b + 2*XLS + 8}
ds_write_b16 v62, v{e0} offset:{b + 3*XLS + 6}
ds_write_b32 v62, v{o1} offset:{b + 3*XLS + 8}
ds_write_b16_d16_hi v62, v{e1} offset:{b + 3*XLS + 12}""")
    if kind != "A":
        a(f"""s_waitcnt vmcnt(0)
ds_write_b128 v61, v[52:55] offset:{WL0+128}""")
        if NP == 2:
            a(f"ds_write_b128 v61, v[56:59] offset:{WL0+128+16}")
    a("""s_waitcnt lgkmcnt(0)
s_barrier""")
    st()
    a(f"""s_bitcmp1_b32 s14, 0
s_cbranch_scc1 {E}_S1""")
    F0 = 32
    FSZ = 32 + 32 * NP
    for S in range(2):
        if S == 1: a(f"{E}_S1:")
        q = LdsQ(a)
        tiles = SSETS[S]
        pairs = [(aa, c - aa, ti) for aa in range(8) for ti, c in enumerate(tiles) if c >= aa]
        steps = [(dl, rho) for dl in range(2) for rho in range(2)]
        def regA(si, aa): return F0 + (FSZ * (si & 1) if dbuf else 0) + 4 * aa
        def regB(si, e, p): return F0 + (FSZ * (si & 1) if dbuf else 0) + 32 + 32 * p + 4 * e
        def rdA(si, aa):
            dl, rho = steps[si]
            return [(f"ds_read_b64_tr_b16 v[{regA(si,aa)+2*hh}:{regA(si,aa)+2*hh+1}], v{VXA} offset:{512*aa + 256*rho + 32*hh + dl*XLS}",
                     [regA(si, aa) + 2 * hh, regA(si, aa) + 2 * hh + 1]) for hh in range(2)]
        def rdB(si, e, p):
            dl, rho = steps[si]
            return [(f"ds_read_b64 v[{regB(si,e,p)+2*hh}:{regB(si,e,p)+2*hh+1}], v{VWB} offset:{128*e + 64*(1-rho) + 8*(1-hh) + (p*4+dl)*WAS}",
                     [regB(si, e, p) + 2 * hh, regB(si, e, p) + 2 * hh + 1]) for hh in range(2)]
        def order(si):
            return pairs
        def frag_first_use(ordr):
            seen, out = set(), []
            for (aa, e, ti) in ordr:
                for f in (("A", aa), ("B", e)):
                    if f not in seen: seen.add(f); out.append(f)
            return out
        def reads_for(si, f):
            if f[0] == "A": return rdA(si, f[1])
            r = []
            for p in range(NP): r += rdB(si, f[1], p)
            return r
        ordrs = [pairs]
        for si in range(3):
            if dbuf:
                ordrs.append(pairs); continue
            lu = {}
            for k, (aa, e, ti) in enumerate(ordrs[si]):
                lu[("A", aa)] = k; lu[("B", e)] = k
            ordrs.append(sorted(pairs, key=lambda p: max(lu[("A", p[0])], lu[("B", p[1])])))
        for f in frag_first_use(ordrs[0]):
            for t, d in reads_for(0, f): q.issue(t, d)
        for si in range(4):
            o = ordrs[si]
            pend = frag_first_use(ordrs[si + 1]) if si < 3 else []
            lastuse = {}
            for k, (aa, e, ti) in enumerate(o):
                lastuse[("A", aa)] = k; lastuse[("B", e)] = k
            for k, (aa, e, ti) in enumerate(o):
                for p in range(NP):
                    A = regA(si, aa); B = regB(si, e, p); D = ACC + 4 * ti
                    q.need(list(range(A, A + 4)) + list(range(B, B + 4)))
                    a(f"v_mfma_f32_16x16x32_bf16 v[{D}:{D+3}], v[{A}:{A+3}], v[{B}:{B+3}], v[{D}:{D+3}]")
                if dbuf:
                    if pend:
                        f = pend.pop(0)
                        for t, d in reads_for(si + 1, f): q.issue(t, d)
                else:
                    for f in [f for f in pend if lastuse[f] <= k]:
                        pend.remove(f)
                        for t, d in reads_for(si + 1, f): q.issue(t, d)
            for f in pend:
                for t, d in reads_for(si + 1, f): q.issue(t, d)
        a(f"""v_and_b32 v32, 15, v2
v_lshrrev_b32 v33, 4, v2
v_lshlrev_b32 v34, 2, v33
v_xor_b32 v32, v32, v34
v_lshl_add_u32 v32, v33, 4, v32
v_lshlrev_b32 v32, 4, v32
s_lshr_b32 s44, s14, 1
s_lshl_b32 s44, s44, 13
v_add_u32 v32, s44, v32""")
        for ti, c in enumerate(tiles):
            a(f"ds_write_b128 v32, v[{ACC+4*ti}:{ACC+4*ti+3}] offset:{ex0 + c*1024}")
        if S == 0: a(f"s_branch {E}_J")
    a(f"{E}_J:")
    a(f"""v_lshrrev_b32 v32, 2, v2
v_and_b32 v33, 3, v2
v_lshlrev_b32 v34, 2, v33
v_xor_b32 v32, v32, v34
v_lshl_add_u32 v32, v33, 4, v32
v_lshlrev_b32 v32, 4, v32
s_lshl_b32 s44, s14, 10
s_add_u32 s44, s44, {ex0}
v_add_u32 v32, s44, v32
s_lshl_b32 s46, s33, 16
s_and_b32 s47, s33, 0xffff0000
s_waitcnt lgkmcnt(0)""")
    st()
    a("s_barrier")
    st()
    for k in range(4):
        a(f"ds_read_b128 v[{36+4*k}:{39+4*k}], v32 offset:{k*8192}")
    a("s_waitcnt lgkmcnt(0)")
    for r in range(4):
        a(f"v_add_f32 v52, v{36+r}, v{40+r}")
        a(f"v_add_f32 v53, v{44+r}, v{48+r}")
        a("v_cvt_pk_bf16_f32 v60, v52, v53")
        lo(a, 61, 60); hi(a, 62, 60)
        lo(a, 63, XS + r); hi(a, 64, XS + r)
        a("v_mul_f32 v63, s46, v63")
        a("v_mul_f32 v64, s47, v64")
        a("v_cvt_pk_bf16_f32 v60, v63, v64")
        lo(a, 63, 60); hi(a, 64, 60)
        a("v_add_f32 v61, v61, v63")
        a("v_add_f32 v62, v62, v64")
        if kind == "A":
            a(f"v_cvt_pk_bf16_f32 v{68+r}, v61, v62")
            if FUSE_X1:
                if r == 0: a("s_waitcnt vmcnt(0)")
                lo(a, 61, 68 + r); hi(a, 62, 68 + r)
                lo(a, 63, 8 + r); hi(a, 64, 8 + r)
                a("v_mul_f32 v61, v61, v63")
                a("v_mul_f32 v62, v62, v64")
                a("v_cvt_pk_bf16_f32 v60, v61, v62")
                lo(a, 61, 60); hi(a, 62, 60)
                lo(a, 63, 100 + r); hi(a, 64, 100 + r)
                a("v_add_f32 v61, v61, v63")
                a("v_add_f32 v62, v62, v64")
                a(f"v_cvt_pk_bf16_f32 v{72+r}, v61, v62")
                if r == 3:
                    a(f"s_add_u32 s34, s13, {X1}")
                    a("buffer_store_dwordx4 v[72:75], v14, s[28:31], s34 offen")
        else:
            a("v_cvt_pk_bf16_f32 v60, v61, v62")
            lo(a, 61, 60); hi(a, 62, 60)
            lo(a, 63, 4 + r); hi(a, 64, 4 + r)
            a("v_add_f32 v61, v61, v63")
            a("v_add_f32 v62, v62, v64")
            a(f"v_cvt_pk_bf16_f32 v{68+r}, v61, v62")
        if kind in ("A", "B1"):
            if r == 3:
                dst = YA if kind == "A" else X2
                a("s_lshl_b32 s32, s3, 13")
                a(f"s_add_u32 s32, s32, {dst}")
                a("buffer_store_dwordx4 v[68:71], v14, s[28:31], s32 offen")
        else:
            if r == 0: a("v_lshlrev_b32 v59, 12, v0")
            a(f"buffer_store_dword v{68+r}, v59, s[20:23], s15 offen offset:{1024*r}")
    st()
    st.finish(28)
    return max(F0 + FSZ * (2 if dbuf else 1), 104)

PXLS = 4160
PWL0 = 2 * PXLS
def PCO(NP): return 8 * NP * WAS + 128 - (8 * NP * WAS) % 256
def PEX0(NP): return (PWL0 + PCO(NP) + 8 * NP * WAS + 16 + 255) // 256 * 256
PWSTR = 8192 + 16
def PCONV_LDS(NP): return PEX0(NP) + 8 * PWSTR

def sw_barrier(a, cnt_addr, target, vA, vB, sT, lbl):
    a(f"""s_waitcnt lgkmcnt(0)
v_mov_b32 v{vA}, {cnt_addr}
v_mov_b32 v{vB}, 1
s_mov_b64 exec, 1
ds_add_u32 v{vA}, v{vB}
s_mov_b64 exec, -1
{lbl}:
ds_read_b32 v{vB}, v{vA}
s_waitcnt lgkmcnt(0)
v_readfirstlane_b32 s{sT}, v{vB}
s_cmp_ge_u32 s{sT}, {target}
s_cbranch_scc1 {lbl}_done
s_sleep 1
s_branch {lbl}
{lbl}_done:""")

def conv_body_p(a, kind, NP, st, E, sbuf=False, swbar=None, cbase=0):
    ex0 = PEX0(NP) + cbase; CO = PCO(NP)
    PWL0 = globals()['PWL0'] + cbase
    F0 = 48
    FSZ = 32 + 32 * NP
    XR = F0 + (1 if sbuf else 2) * FSZ
    VW, VC, VP, VC2, VP2 = XR, XR + 1, XR + 2, XR + 3, XR + 4
    TD, XU = XR + (6 if sbuf else 8), XR + 16
    if kind == "A":
        a("s_load_dwordx4 s[4:7], s[0:1], 32")
    else:
        a("s_load_dwordx4 s[4:7], s[0:1], 96")
    st()
    xcd_remap(a, 3, 12)
    a("""v_lshrrev_b32 v1, 6, v0
v_and_b32 v2, 63, v0
v_lshlrev_b32 v14, 4, v0
v_readfirstlane_b32 s14, v1
s_lshl_b32 s13, s3, 13
s_lshl_b32 s15, s3, 2
s_waitcnt lgkmcnt(0)""")
    srd(a, 28, 10, WSBYTES)
    src = {"A": KVT, "B1": X1, "B2": X3}[kind]
    a(f"s_add_u32 s32, s13, {src}")
    a("buffer_load_dwordx4 v[4:7], v14, s[28:31], s32 offen")
    if kind == "A":
        srd(a, 16, 4, MB2)
        a("buffer_load_dwordx4 v[48:51], v14, s[16:19], s13 offen")
        if FUSE_X1:
            a(f"s_add_u32 s34, s13, {QH}")
            a("buffer_load_dwordx4 v[8:11], v14, s[28:31], s34 offen")
            a(f"s_add_u32 s34, s13, {X0T}")
            a(f"buffer_load_dwordx4 v[{XR+24}:{XR+27}], v14, s[28:31], s34 offen")
        a("s_add_u32 s6, s6, s15")
        a("s_addc_u32 s7, s7, 0")
        a("s_load_dword s33, s[6:7], 0")
    else:
        stt = {"B1": ST1, "B2": ST3}[kind]
        a(f"s_mov_b32 s34, {stt}")
        a("buffer_load_dwordx4 v[48:51], v14, s[28:31], s34 offen")
        a(f"s_lshl_b32 s35, s3, {12 + NP}")
        a(f"s_add_u32 s35, s35, {KW}")
        if NP == 2:
            a("v_lshlrev_b32 v60, 5, v0")
            a("buffer_load_dwordx4 v[52:55], v60, s[28:31], s35 offen")
            a("buffer_load_dwordx4 v[56:59], v60, s[28:31], s35 offen offset:16")
        else:
            a("buffer_load_dwordx4 v[52:55], v14, s[28:31], s35 offen")
        a("s_add_u32 s4, s4, s15")
        a("s_addc_u32 s5, s5, 0")
        a("s_load_dword s33, s[4:5], 0")
        if kind == "B2":
            srd(a, 20, 6, MB2)
    na = 8 * NP
    a(f"""v_mov_b32 v64, 0
v_mov_b32 v65, 0
v_mov_b32 v66, 0
v_mov_b32 v67, 0
v_lshrrev_b32 v61, 4, v0
v_mul_u32_u24 v61, {WAS}, v61
v_and_b32 v62, 15, v0
v_lshl_add_u32 v61, v62, 3, v61
v_cmp_gt_u32 vcc, {na*16}, v0
s_and_saveexec_b64 s[36:37], vcc
ds_write_b64 v61, v[64:65] offset:{PWL0}
ds_write_b64 v61, v[64:65] offset:{PWL0 + CO + 8}
s_mov_b64 exec, s[36:37]
v_lshrrev_b32 v61, 1, v0
v_mul_u32_u24 v61, {PXLS}, v61
v_and_b32 v62, 1, v0
v_lshl_add_u32 v61, v62, 4, v61
v_cmp_gt_u32 vcc, 4, v0
s_and_saveexec_b64 s[36:37], vcc
ds_write_b128 v61, v[64:67] offset:{cbase}
s_mov_b64 exec, s[36:37]
s_mov_b32 s38, 0x05040100
s_mov_b32 s39, 0x07060302""")
    a(f"""s_lshr_b32 s40, s14, 2
s_and_b32 s41, s14, 3
s_mul_i32 s42, s40, {PXLS}
s_add_u32 s42, s42, {32 + cbase}
s_mul_i32 s43, s40, {NP*4}
s_add_u32 s43, s43, s41
s_mul_i32 s43, s43, {WAS}
s_add_u32 s43, s43, {PWL0 + 56}
v_lshrrev_b32 v70, 4, v2
v_and_b32 v71, 3, v2
v_bfe_u32 v72, v2, 2, 2
v_sub_u32 v71, v71, v72
v_lshlrev_b32 v71, 3, v71
v_lshl_add_u32 v71, v70, 6, v71
v_add_u32 v12, s42, v71
v_and_b32 v71, 15, v2
v_lshlrev_b32 v71, 3, v71
v_lshlrev_b32 v72, 4, v70
v_sub_u32 v71, v71, v72
v_add_u32 v13, s43, v71
v_and_b32 v71, 1, v2
v_xor_b32 v71, 1, v71
v_mul_u32_u24 v71, {CO + 8}, v71
v_add_u32 v13, v13, v71""")
    VXA, VWB, ACC = 12, 13, 16
    for i in range(32): a(f"v_mov_b32 v{ACC+i}, 0")
    a(f"""v_and_b32 v70, 15, v2
v_lshrrev_b32 v71, 4, v2
v_lshlrev_b32 v72, 2, v71
v_xor_b32 v70, v70, v72
v_lshl_add_u32 v70, v71, 4, v70
v_lshlrev_b32 v70, 4, v70
s_mul_i32 s44, s14, {PWSTR}
s_add_u32 s44, s44, {ex0}
v_add_u32 v{VW}, s44, v70
v_mov_b32 v70, s44
s_mov_b64 exec, 1
ds_write_b128 v70, v[64:67] offset:8192
s_mov_b64 exec, -1
v_lshrrev_b32 v70, 2, v2
v_and_b32 v71, 3, v2
v_lshlrev_b32 v72, 2, v71
v_xor_b32 v70, v70, v72
v_lshl_add_u32 v70, v71, 4, v70
v_lshlrev_b32 v70, 4, v70
s_lshl_b32 s44, s14, 10
s_add_u32 s44, s44, {ex0}
v_add_u32 v{VC}, s44, v70
v_subrev_u32 v73, 1, v2
v_lshrrev_b32 v71, 2, v73
v_and_b32 v73, 3, v73
v_lshlrev_b32 v72, 2, v73
v_xor_b32 v71, v71, v72
v_lshl_add_u32 v71, v73, 4, v71
v_lshlrev_b32 v71, 4, v71
v_add_u32 v71, s44, v71
s_sub_u32 s45, s44, {1024 - 51*16}
s_cmp_eq_u32 s14, 0
s_cselect_b32 s45, {ex0 + 8192}, s45
v_mov_b32 v72, s45
v_cmp_eq_u32 vcc, 0, v2
v_cndmask_b32 v{VP}, v71, v72, vcc
v_add_u32 v{VC2}, {4*PWSTR}, v{VC}
v_add_u32 v{VP2}, {4*PWSTR}, v{VP}
v_lshlrev_b32 v62, 3, v0""")
    if kind == "A":
        a(f"""v_lshrrev_b32 v61, 8, v0
v_mul_u32_u24 v61, {4*WAS}, v61
v_and_b32 v63, 255, v0
v_lshl_add_u32 v61, v63, 2, v61
s_waitcnt vmcnt({3 if FUSE_X1 else 1})""")
        st()
        XS = 4
    else:
        if NP == 2:
            a(f"""v_lshrrev_b32 v61, 5, v0
v_mul_u32_u24 v61, {WAS}, v61
v_and_b32 v63, 31, v0
v_lshl_add_u32 v61, v63, 5, v61
s_waitcnt vmcnt(2)""")
        else:
            a(f"""v_mul_u32_u24 v61, {WAS}, v1
v_lshl_add_u32 v61, v2, 4, v61
s_waitcnt vmcnt(1)""")
        st()
        for r in range(4):
            T = 72 + 8 * r
            lo(a, T, 48 + r); hi(a, T + 1, 48 + r)
            a(f"v_rcp_f32 v{T+2}, v{T+1}")
            lo(a, XU + 2 * r, 4 + r); hi(a, XU + 2 * r + 1, 4 + r)
        for r in range(4):
            T = 72 + 8 * r
            a(f"v_sub_f32 v{T+3}, v{XU+2*r}, v{T}")
            a(f"v_sub_f32 v{T+4}, v{XU+2*r+1}, v{T}")
            a(f"v_cvt_pk_bf16_f32 v{T+5}, v{T+3}, v{T+4}")
            lo(a, T + 3, T + 5); hi(a, T + 4, T + 5)
            for x in (T + 3, T + 4):
                a(f"v_mul_f32 v{T+6}, v{x}, v{T+2}")
                a(f"v_fma_f32 v{T+7}, -v{T+6}, v{T+1}, v{x}")
                a(f"v_fma_f32 v{x}, v{T+7}, v{T+2}, v{T+6}")
            a(f"v_cvt_pk_bf16_f32 v{8+r}, v{T+3}, v{T+4}")
        XS = 8
    a(f"""v_perm_b32 v64, v{XS+1}, v{XS}, s38
v_perm_b32 v65, v{XS+3}, v{XS+2}, s38
v_perm_b32 v66, v{XS+1}, v{XS}, s39
v_perm_b32 v67, v{XS+3}, v{XS+2}, s39
ds_write_b64 v62, v[64:65] offset:{32 + cbase}
ds_write_b64 v62, v[66:67] offset:{PXLS+32+cbase}
s_waitcnt vmcnt({2 if (kind == "A" and FUSE_X1) else 0})""")
    if kind == "A":
        a("""v_perm_b32 v68, v50, v48, s38
v_perm_b32 v69, v50, v48, s39
v_perm_b32 v70, v51, v49, s38
v_perm_b32 v71, v51, v49, s39""")
        for f in range(4):
            a(f"ds_write_b32 v61, v{68+f} offset:{PWL0+128+f*WAS}")
            a(f"ds_write_b32 v61, v{68+f} offset:{PWL0+128+f*WAS+CO+8}")
    else:
        for h in range(NP):
            b = 52 + 4 * h
            a(f"ds_write_b128 v61, v[{b}:{b+3}] offset:{PWL0+128+16*h}")
            a(f"ds_write_b64 v61, v[{b}:{b+1}] offset:{PWL0+128+16*h+CO+8}")
            a(f"ds_write_b64 v61, v[{b+2}:{b+3}] offset:{PWL0+128+16*h+CO+16}")
    if kind == "A" and PFQ_CONV:
        a("s_load_dwordx2 s[50:51], s[0:1], 0")
    a("""s_waitcnt lgkmcnt(0)
s_lshl_b32 s46, s33, 16
s_and_b32 s47, s33, 0xffff0000""")
    if kind == "A" and PFQ_CONV:
        srd(a, 52, 50, MB2)
        a(f"""v_and_b32 v15, 7, v0
v_lshl_add_u32 v15, v1, 3, v15
v_lshlrev_b32 v15, 7, v15
s_mov_b64 exec, 0xff
buffer_load_dword v{XR+5}, v15, s[52:55], s13 offen
s_mov_b64 exec, -1""")
    if swbar is None: a("s_barrier")
    else: sw_barrier(a, swbar, 8, 64, 65, 48, f"{E}_sb1")
    st()
    FA = [F0, F0 + (0 if sbuf else FSZ)]
    FB = [F0 + 32, F0 + (0 if sbuf else FSZ) + 32]
    q = LdsQ(a)
    def rdA(rho, aa):
        return [(f"ds_read_b64_tr_b16 v[{FA[rho]+4*aa+2*hh}:{FA[rho]+4*aa+2*hh+1}], v{VXA} offset:{512*aa + 256*rho + 32*(1-hh)}",
                 [FA[rho] + 4 * aa + 2 * hh, FA[rho] + 4 * aa + 2 * hh + 1]) for hh in range(2)]
    def rdB(rho, e, p):
        d = FB[rho] + 32 * p + 4 * e
        return [(f"ds_read_b128 v[{d}:{d+3}], v{VWB} offset:{128*e + 64*(1-rho) + p*4*WAS}", list(range(d, d + 4)))]
    order = [(aa, c - aa, c) for c in range(8) for aa in range(c + 1)]
    def reads(rho):
        seen, r = set(), []
        for (aa, e, c) in order:
            if ("A", aa) not in seen: seen.add(("A", aa)); r += rdA(rho, aa)
            if ("B", e) not in seen:
                seen.add(("B", e))
                for p in range(NP): r += rdB(rho, e, p)
        return r
    def mf(rho, aa, e, c, p):
        A = FA[rho] + 4 * aa; B = FB[rho] + 32 * p + 4 * e; D = ACC + 4 * c
        q.need(list(range(A, A + 4)) + list(range(B, B + 4)))
        a(f"v_mfma_f32_16x16x32_bf16 v[{D}:{D+3}], v[{A}:{A+3}], v[{B}:{B+3}], v[{D}:{D+3}]")
    fill = []
    for r in range(4):
        fill += [f"v_lshlrev_b32 v{TD+2*r}, 16, v{XS+r}", f"v_and_b32 v{TD+2*r+1}, 0xffff0000, v{XS+r}",
                 f"v_mul_f32 v{TD+2*r}, s46, v{TD+2*r}", f"v_mul_f32 v{TD+2*r+1}, s47, v{TD+2*r+1}",
                 f"v_cvt_pk_bf16_f32 v15, v{TD+2*r}, v{TD+2*r+1}",
                 f"v_lshlrev_b32 v{TD+2*r}, 16, v15", f"v_and_b32 v{TD+2*r+1}, 0xffff0000, v15"]
    if kind == "B2": fill.append("v_lshlrev_b32 v3, 12, v0")
    QU = XR + 28
    if kind == "A" and FUSE_X1:
        fill.append("s_waitcnt vmcnt(0)")
        for r in range(4):
            fill += [f"v_lshlrev_b32 v{QU+2*r}, 16, v{8+r}", f"v_and_b32 v{QU+2*r+1}, 0xffff0000, v{8+r}",
                     f"v_lshlrev_b32 v{XU+2*r}, 16, v{XR+24+r}", f"v_and_b32 v{XU+2*r+1}, 0xffff0000, v{XR+24+r}"]
    if not sbuf:
        for t, d in reads(0): q.issue(t, d)
        r1 = reads(1)
        for (aa, e, c) in order:
            for p in range(NP):
                mf(0, aa, e, c, p)
                if r1:
                    tt, dd = r1.pop(0); q.issue(tt, dd)
                elif fill: a(fill.pop(0))
        for tt, dd in r1: q.issue(tt, dd)
    else:
        order0 = sorted(order, key=lambda x: (min(x[0], x[1]), x[2]))
        def frs(o):
            seen, out = set(), []
            for (aa, e, c) in o:
                for f in (("A", aa), ("B", e)):
                    if f not in seen: seen.add(f); out.append(f)
            return out
        def rds(rho, f):
            if f[0] == "A": return rdA(rho, f[1])
            r = []
            for p in range(NP): r += rdB(rho, f[1], p)
            return r
        for f in frs(order0):
            for t, d in rds(0, f): q.issue(t, d)
        lastuse = {}
        for k, (aa, e, c) in enumerate(order0):
            lastuse[("A", aa)] = k; lastuse[("B", e)] = k
        pend = frs(order)
        for k, (aa, e, c) in enumerate(order0):
            for p in range(NP): mf(0, aa, e, c, p)
            dead = [f for f in pend if lastuse[f] <= k]
            for f in dead:
                pend.remove(f)
                for t, d in rds(1, f): q.issue(t, d)
            if not dead and fill: a(fill.pop(0))
        assert not pend
    pendw = []
    for (aa, e, c) in order:
        for p in range(NP):
            mf(1, aa, e, c, p)
            if fill: a(fill.pop(0))
            pendw = [(cc, n - 1) for cc, n in pendw]
            for cc, n in [x for x in pendw if x[1] <= 0]:
                q.issue(f"ds_write_b128 v{VW}, v[{ACC+4*cc}:{ACC+4*cc+3}] offset:{cc*1024}", [])
            pendw = [x for x in pendw if x[1] > 0]
        if aa == c: pendw.append((c, 5))
    for f in fill: a(f)
    for cc, n in pendw:
        q.issue(f"ds_write_b128 v{VW}, v[{ACC+4*cc}:{ACC+4*cc+3}] offset:{cc*1024}", [])
    a("s_waitcnt lgkmcnt(0)")
    st()
    if swbar is None: a("s_barrier")
    else: sw_barrier(a, swbar + 4, 8, 48, 49, 48, f"{E}_sb2")
    st()
    for w in range(8):
        b = VC if w < 4 else VC2
        a(f"ds_read_b128 v[{48+4*w}:{51+4*w}], v{b} offset:{(w&3)*PWSTR}")
        if w & 3:
            b = VP if w < 4 else VP2
            a(f"ds_read_b128 v[{80+4*w}:{83+4*w}], v{b} offset:{(w&3)*PWSTR}")
    for ch in range(2):
        a(f"s_waitcnt lgkmcnt({7 if ch == 0 else 0})")
        cur = lambda d, i: 48 + 4 * (4 * ch + d) + i
        prv = lambda d, i: 80 + 4 * (4 * ch + d) + i
        for r in range(4):
            t = [cur(0, r)]
            for d in range(1, 4):
                t.append(cur(d, r - d) if r - d >= 0 else prv(d, 4 + r - d))
            y = 16 + 4 * ch + r
            a(f"v_add_f32 v{y}, v{t[0]}, v{t[1]}")
            a(f"v_add_f32 v{24+r}, v{t[2]}, v{t[3]}")
            a(f"v_add_f32 v{y}, v{y}, v{24+r}")
    for r in range(4):
        T = 28 + 4 * r
        a(f"v_cvt_pk_bf16_f32 v{T}, v{16+r}, v{20+r}")
        lo(a, T + 1, T); hi(a, T + 2, T)
        a(f"v_add_f32 v{T+1}, v{T+1}, v{TD+2*r}")
        a(f"v_add_f32 v{T+2}, v{T+2}, v{TD+2*r+1}")
        if kind == "A":
            a(f"v_cvt_pk_bf16_f32 v{44+r}, v{T+1}, v{T+2}")
            if FUSE_X1:
                lo(a, T + 1, 44 + r); hi(a, T + 2, 44 + r)
                a(f"v_mul_f32 v{T+1}, v{T+1}, v{QU+2*r}")
                a(f"v_mul_f32 v{T+2}, v{T+2}, v{QU+2*r+1}")
                a(f"v_cvt_pk_bf16_f32 v{T}, v{T+1}, v{T+2}")
                lo(a, T + 1, T); hi(a, T + 2, T)
                a(f"v_add_f32 v{T+1}, v{T+1}, v{XU+2*r}")
                a(f"v_add_f32 v{T+2}, v{T+2}, v{XU+2*r+1}")
                a(f"v_cvt_pk_bf16_f32 v{48+r}, v{T+1}, v{T+2}")
                if r == 3:
                    a(f"s_add_u32 s34, s13, {X1}")
                    a("buffer_store_dwordx4 v[48:51], v14, s[28:31], s34 offen")
        else:
            a(f"v_cvt_pk_bf16_f32 v{T}, v{T+1}, v{T+2}")
            lo(a, T + 1, T); hi(a, T + 2, T)
            a(f"v_add_f32 v{T+1}, v{T+1}, v{XU+2*r}")
            a(f"v_add_f32 v{T+2}, v{T+2}, v{XU+2*r+1}")
            a(f"v_cvt_pk_bf16_f32 v{44+r}, v{T+1}, v{T+2}")
        if kind in ("A", "B1"):
            if r == 3:
                dst = YA if kind == "A" else X2
                a(f"s_add_u32 s32, s13, {dst}")
                a("buffer_store_dwordx4 v[44:47], v14, s[28:31], s32 offen")
        else:
            a(f"buffer_store_dword v{44+r}, v3, s[20:23], s15 offen offset:{1024*r}")
    st()
    st.finish(28)
    return (XR + 14) if sbuf else (XR + 36)

def k_conv(kind, NP, dbuf=True, optp=False):
    name = {"A": "convA_kernel", "B1": "convB1_kernel", "B2": "convB2_kernel"}[kind]
    if kind == "A": NP = 1
    a = Asm()
    E = f"L_{name}"
    a(f"""s_cmp_ge_u32 s2, 256
s_cbranch_scc1 {E}_end
s_load_dwordx2 s[10:11], s[0:1], 120""")
    st = Stamps(a, {"A": 2, "B1": 4, "B2": 6}[kind])
    nv = conv_body_p(a, kind, NP, st, E) if optp else conv_body(a, kind, NP, st, E, dbuf)
    a(f"""{E}_end:
s_endpgm""")
    return kernel_text(name, a.text(), nv, SG(64))

def row_reduce(a, S1, S2, T, waddr, ldsoff):
    a(f"""v_permlane32_swap_b32 v{S1}, v{S2}
v_add_f32 v{S1}, v{S1}, v{S2}
v_mov_b32 v{T}, v{S1}
v_permlane16_swap_b32 v{S1}, v{T}
v_add_f32 v{S1}, v{S1}, v{T}
v_add_f32_dpp v{S1}, v{S1}, v{S1} row_ror:8 row_mask:0xf bank_mask:0xf
s_mov_b64 exec, s[48:49]
ds_write_b32 v{waddr}, v{S1} offset:{ldsoff}
s_mov_b64 exec, -1
s_waitcnt lgkmcnt(0)
s_barrier""")

def row_stats(a, raddr, ldsoff, piv, T, o_mean, o_m, o_den):
    a(f"""ds_read_b128 v[{T}:{T+3}], v{raddr} offset:{ldsoff}
ds_read_b128 v[{T+4}:{T+7}], v{raddr} offset:{ldsoff+16}
ds_read_b128 v[{T+8}:{T+11}], v{raddr} offset:{ldsoff+256}
ds_read_b128 v[{T+12}:{T+15}], v{raddr} offset:{ldsoff+272}
s_waitcnt lgkmcnt(2)""")
    for b in (0, 8):
        if b == 8: a("s_waitcnt lgkmcnt(0)")
        a(f"""v_add_f32 v{T+b}, v{T+b}, v{T+b+1}
v_add_f32 v{T+b+2}, v{T+b+2}, v{T+b+3}
v_add_f32 v{T+b+4}, v{T+b+4}, v{T+b+5}
v_add_f32 v{T+b+6}, v{T+b+6}, v{T+b+7}
v_add_f32 v{T+b}, v{T+b}, v{T+b+2}
v_add_f32 v{T+b+4}, v{T+b+4}, v{T+b+6}
v_add_f32 v{T+b}, v{T+b}, v{T+b+4}""")
    a(f"""v_mul_f32 v{T}, 0x3b000000, v{T}
v_mul_f32 v{T+1}, 0x3b000000, v{T+8}
v_add_f32 v{o_mean}, v{piv}, v{T}
v_fma_f32 v{T+1}, -v{T}, v{T}, v{T+1}
v_max_f32 v{T+1}, 0, v{T+1}
v_cvt_pk_bf16_f32 v{T+2}, v{o_mean}, v{T+1}
v_lshlrev_b32 v{o_m}, 16, v{T+2}
v_and_b32 v{T+1}, 0xffff0000, v{T+2}
v_add_f32 v{T+1}, 0x3727c5ac, v{T+1}
v_cvt_pk_bf16_f32 v{T+1}, v{T+1}, v{T+1}
v_and_b32 v{T+1}, 0xffff0000, v{T+1}
v_sqrt_f32 v{T+1}, v{T+1}
v_cvt_pk_bf16_f32 v{T+1}, v{T+1}, v{T+1}
v_and_b32 v{o_den}, 0xffff0000, v{T+1}""")

def row_partial(a, P):
    for k in range(8):
        a(f"v_sub_f32 v{48+k}, v{24+k}, v{P}")
    a("v_add_f32 v40, v48, v49")
    a("v_mul_f32 v41, v48, v48")
    a("v_mul_f32 v42, v49, v49")
    for k in range(2, 8, 2):
        a(f"v_add_f32 v43, v{48+k}, v{49+k}")
        a(f"v_fmac_f32 v41, v{48+k}, v{48+k}")
        a(f"v_fmac_f32 v42, v{49+k}, v{49+k}")
        a("v_add_f32 v40, v40, v43")
    a("v_add_f32 v41, v41, v42")

def row_setup(a, rb_sgpr):
    a(f"""v_and_b32 v1, 7, v0
v_lshrrev_b32 v2, 3, v0
s_lshl_b32 s13, s{rb_sgpr}, 3
v_add_u32 v3, s13, v1
v_lshlrev_b32 v9, 15, v2
v_lshl_add_u32 v8, v3, 2, v9
s_mov_b32 s48, 0xff
s_mov_b32 s49, 0xff
v_lshlrev_b32 v11, 5, v1
v_bfe_u32 v10, v0, 5, 1
v_lshl_add_u32 v10, v10, 8, v11
v_lshrrev_b32 v5, 6, v0
v_lshl_add_u32 v10, v5, 2, v10""")

def ln0_compute(a):
    row_setup(a, 3)
    a("v_lshlrev_b32 v20, 16, v74")
    for k in range(4):
        lo(a, 24 + 2 * k, 70 + k); hi(a, 25 + 2 * k, 70 + k)
    row_partial(a, 20)
    row_reduce(a, 40, 41, 42, 10, 0)
    row_stats(a, 11, 0, 20, 48, 21, 22, 23)
    a("v_rcp_f32 v36, v23")
    for k in range(4):
        x0, x1 = 24 + 2 * k, 25 + 2 * k
        a(f"v_sub_f32 v51, v{x0}, v22")
        a(f"v_sub_f32 v52, v{x1}, v22")
        a("v_cvt_pk_bf16_f32 v53, v51, v52")
        lo(a, 51, 53); hi(a, 52, 53)
        for x in (51, 52):
            a(f"v_mul_f32 v54, v{x}, v36")
            a(f"v_fma_f32 v55, -v54, v23, v{x}")
            a(f"v_fma_f32 v{x}, v55, v36, v54")
        a(f"v_cvt_pk_bf16_f32 v{56+k}, v51, v52")
        a(f"s_mov_b32 s34, {QH + 8192*k}")
        a(f"buffer_store_dword v{56+k}, v8, s[28:31], s34 offen")

def k_stat1():
    name = "row1_kernel"
    E = f"L_{name}_end"
    a = Asm()
    a(f"""s_cmp_ge_u32 s2, 256
s_cbranch_scc1 {E}
s_load_dwordx2 s[10:11], s[0:1], 120""")
    st = Stamps(a, 3); st()
    xcd_remap(a, 3, 12)
    row_setup(a, 3)
    a("s_waitcnt lgkmcnt(0)")
    srd(a, 28, 10, WSBYTES)
    a(f"""s_mov_b32 s33, {X1}
v_lshlrev_b32 v7, 2, v3""")
    for k in range(4):
        a(f"s_add_u32 s34, s33, {8192*k}")
        a(f"buffer_load_dword v{16+k}, v8, s[28:31], s34 offen")
    a("""buffer_load_dword v20, v7, s[28:31], s33 offen
s_waitcnt vmcnt(0)
v_lshlrev_b32 v20, 16, v20""")
    st()
    for k in range(4):
        lo(a, 24 + 2 * k, 16 + k); hi(a, 25 + 2 * k, 16 + k)
    row_partial(a, 20)
    row_reduce(a, 40, 41, 42, 10, 0)
    a(f"""v_cmp_gt_u32 vcc, 8, v0
s_and_saveexec_b64 s[36:37], vcc
s_cbranch_execz {E}""")
    row_stats(a, 11, 0, 20, 64, 60, 61, 62)
    a(f"""v_lshrrev_b32 v61, 16, v61
v_or_b32 v61, v61, v62
s_mov_b32 s35, {ST1}
buffer_store_dword v61, v7, s[28:31], s35 offen""")
    st.finish(28)
    a(f"""{E}:
s_endpgm""")
    return kernel_text(name, a.text(), 80, SG(56))

def k_row(kind, NP=1, nk=0, ch0=0):
    name = {"R1": "row1_kernel", "R2": "row2_kernel"}[kind]
    E = f"L_{name}_end"
    a = Asm()
    if nk:
        a(f"""s_add_u32 s60, s2, 256
s_sub_u32 s61, s2, {nk}
s_cmp_lt_u32 s2, {nk}
s_cselect_b32 s61, s60, s61
s_cmp_lt_u32 s2, {nk+256}
s_cselect_b32 s2, s61, s2""")
    a(f"""s_cmp_ge_u32 s2, 256
s_cbranch_scc1 {E}_kgen
s_setprio 3
s_load_dwordx2 s[10:11], s[0:1], 120
s_load_dwordx2 s[4:5], s[0:1], 0""")
    st = Stamps(a, {"R1": 3, "R2": 5}[kind]); st()
    xcd_remap(a, 3, 12)
    a("""v_and_b32 v1, 7, v0
v_lshrrev_b32 v2, 3, v0
s_lshl_b32 s13, s3, 3
v_add_u32 v3, s13, v1
v_lshlrev_b32 v9, 15, v2
v_lshl_add_u32 v8, v3, 2, v9
v_lshl_add_u32 v9, v3, 4, v9
s_waitcnt lgkmcnt(0)""")
    srd(a, 28, 10, WSBYTES)
    a(f"s_mov_b32 s32, {YA}")
    if kind == "R1":
        srd(a, 16, 4, MB2)
        a("""v_lshlrev_b32 v7, 10, v3
v_lshl_add_u32 v4, v2, 4, v7
buffer_load_dwordx4 v[16:19], v4, s[16:19], 0 offen
buffer_load_dword v20, v7, s[16:19], 0 offen""")
    else:
        a(f"""s_mov_b32 s33, {X2}
v_lshlrev_b32 v7, 2, v3""")
        for k in range(4):
            a(f"s_add_u32 s34, s33, {8192*k}")
            a(f"buffer_load_dword v{16+k}, v8, s[28:31], s34 offen")
        a("buffer_load_dword v20, v7, s[28:31], s33 offen")
    for k in range(4):
        a(f"s_add_u32 s34, s32, {8192*k}")
        a(f"buffer_load_dword v{12+k}, v8, s[28:31], s34 offen")
    if PF_OUT and kind == "R2":
        a("""s_load_dwordx2 s[50:51], s[0:1], 104
s_lshr_b32 s44, s2, 3
s_lshl_b32 s44, s44, 16
s_and_b32 s45, s2, 7
s_lshl_b32 s45, s45, 7
s_add_u32 s44, s44, s45
v_lshrrev_b32 v22, 6, v0
v_lshl_add_u32 v22, v22, 3, v1
v_lshlrev_b32 v22, 10, v22
s_waitcnt lgkmcnt(0)""")
        srd(a, 52, 50, MB2)
        a("""s_mov_b64 exec, 0xff
buffer_load_dword v38, v22, s[52:55], s44 offen
s_mov_b64 exec, -1""")
    if PF_K:
        a(f"""s_lshl_b32 s44, s3, {12+NP}
s_add_u32 s44, s44, {KW}
v_lshrrev_b32 v22, 6, v0
v_lshl_add_u32 v22, v22, 3, v1
v_lshlrev_b32 v22, 7, v22
s_mov_b64 exec, 0xff
buffer_load_dword v38, v22, s[28:31], s44 offen
s_mov_b64 exec, -1""")
    a("""s_mov_b32 s48, 0xff
s_mov_b32 s49, 0xff
v_lshlrev_b32 v11, 5, v1
v_bfe_u32 v10, v0, 5, 1
v_lshl_add_u32 v10, v10, 8, v11
v_lshrrev_b32 v5, 6, v0
v_lshl_add_u32 v10, v5, 2, v10
""" + f"s_waitcnt vmcnt({5 if (PF_K or (PF_OUT and kind == 'R2')) else 4})" + """
v_lshlrev_b32 v20, 16, v20""")
    st()
    for k in range(4):
        lo(a, 24 + 2 * k, 16 + k); hi(a, 25 + 2 * k, 16 + k)
    def partial(P):
        for k in range(8):
            a(f"v_sub_f32 v{48+k}, v{24+k}, v{P}")
        a("v_add_f32 v40, v48, v49")
        a("v_mul_f32 v41, v48, v48")
        a("v_mul_f32 v42, v49, v49")
        for k in range(2, 8, 2):
            a(f"v_add_f32 v43, v{48+k}, v{49+k}")
            a(f"v_fmac_f32 v41, v{48+k}, v{48+k}")
            a(f"v_fmac_f32 v42, v{49+k}, v{49+k}")
            a("v_add_f32 v40, v40, v43")
        a("v_add_f32 v41, v41, v42")
    partial(20)
    row_reduce(a, 40, 41, 42, 10, 0)
    row_stats(a, 11, 0, 20, 48, 21, 22, 23)
    st()
    a("v_rcp_f32 v36, v23")
    a(f"s_waitcnt vmcnt({1 if (PF_K or (PF_OUT and kind == 'R2')) else 0})")
    for k in range(4):
        x0, x1 = 24 + 2 * k, 25 + 2 * k
        a(f"v_sub_f32 v51, v{x0}, v22")
        a(f"v_sub_f32 v52, v{x1}, v22")
        a("v_cvt_pk_bf16_f32 v53, v51, v52")
        lo(a, 51, 53); hi(a, 52, 53)
        for x in (51, 52):
            a(f"v_mul_f32 v54, v{x}, v36")
            a(f"v_fma_f32 v55, -v54, v23, v{x}")
            a(f"v_fma_f32 v{x}, v55, v36, v54")
        a("v_cvt_pk_bf16_f32 v53, v51, v52")
        lo(a, 51, 53); hi(a, 52, 53)
        lo(a, 54, 12 + k); hi(a, 55, 12 + k)
        a("v_mul_f32 v51, v51, v54")
        a("v_mul_f32 v52, v52, v55")
        a("v_cvt_pk_bf16_f32 v53, v51, v52")
        lo(a, 51, 53); hi(a, 52, 53)
        a(f"v_add_f32 v51, v51, v{x0}")
        a(f"v_add_f32 v52, v52, v{x1}")
        a(f"v_cvt_pk_bf16_f32 v{56+k}, v51, v52")
        lo(a, x0, 56 + k); hi(a, x1, 56 + k)
    dst = X1 if kind == "R1" else X3
    if ROW_OUT_T2:
        for k in range(4):
            a(f"s_mov_b32 s34, {dst + 8192*k}")
            a(f"buffer_store_dword v{56+k}, v8, s[28:31], s34 offen")
    else:
        a(f"s_mov_b32 s34, {dst}")
        a("buffer_store_dwordx4 v[56:59], v9, s[28:31], s34 offen")
    st()
    partial(21)
    row_reduce(a, 40, 41, 42, 10, 512)
    stt = ST1 if kind == "R1" else ST3
    a(f"""v_cmp_gt_u32 vcc, 8, v0
s_and_saveexec_b64 s[36:37], vcc
s_cbranch_execz {E}""")
    row_stats(a, 11, 512, 21, 64, 60, 61, 62)
    a(f"""v_lshrrev_b32 v61, 16, v61
v_or_b32 v61, v61, v62
v_lshlrev_b32 v7, 2, v3
s_mov_b32 s35, {stt}
buffer_store_dword v61, v7, s[28:31], s35 offen""")
    st.finish(28)
    a(f"""s_endpgm
{E}_kgen:
s_cmp_ge_u32 s2, {256+nk}
s_cbranch_scc1 {E}""")
    nv = 80
    if nk:
        a(f"s_add_u32 s55, s2, {ch0-256}")
        st2 = Stamps(a, 3)
        nv = kgen_body(a, NP, st2, 55)
    a(f"""{E}:
s_endpgm""")
    return kernel_text(name, a.text(), nv, SG(64))

KPART = 0
KPRM = 8 * 3072
KTAB0 = KPRM + 8 * 256
KGEN_LDS = KTAB0 + 2176 * 4
def kgen_body(a, NP, st, ch_sgpr, lbase=0, swbar=None):
    KPART, KPRM, KTAB0 = globals()["KPART"] + lbase, globals()["KPRM"] + lbase, globals()["KTAB0"] + lbase
    if KG_FLUSH: a("s_setreg_imm32_b32 hwreg(HW_REG_MODE, 4, 2), 0")
    a(f"""s_load_dwordx8 s[4:11], s[0:1], 56
s_load_dwordx2 s[12:13], s[0:1], 88
s_load_dwordx2 s[14:15], s[0:1], 120
v_and_b32 v1, 15, v0
v_bfe_u32 v2, v0, 4, 2
v_lshrrev_b32 v3, 6, v0
s_lshl_b32 s3, s{ch_sgpr}, 8
v_lshlrev_b32 v4, 5, v3
v_lshl_add_u32 v4, v1, 1, v4
s_mov_b32 s50, 0x3fb8aa3b
s_mov_b32 s51, 0x32a57060
s_mov_b32 s52, 0x3f317218
s_mov_b32 s53, 0x3e22f983
s_mov_b32 s54, 0x07060302
v_readfirstlane_b32 s56, v3
s_waitcnt lgkmcnt(0)""")
    st()
    PS = [16, 24, 40, 64]
    if KG_SMEM:
        a("""s_lshl_b32 s57, s56, 5
s_add_u32 s3, s3, s57""")
        for i in range(4):
            a(f"""s_add_u32 s{4+2*i}, s{4+2*i}, s3
    s_addc_u32 s{5+2*i}, s{5+2*i}, 0
    s_load_dwordx8 s[{PS[i]}:{PS[i]+7}], s[{4+2*i}:{5+2*i}], 0""")
        srd(a, 32, 14, WSBYTES)

    else:
        for i in range(4): srd(a, 16 + 4 * i, 4 + 2 * i, 131072)
        srd(a, 32, 14, WSBYTES)
        for i in range(4):
            a(f"buffer_load_ushort v{8+i}, v4, s[{16+4*i}:{19+4*i}], s3 offen")
        if EARLY_PF:
            a(f"""s_getpc_b64 s[58:59]
L_epf_base:
s_sub_u32 s58, s58, L_epf_base-kv_kernel
s_subb_u32 s59, s59, 0
v_lshlrev_b32 v28, 7, v0
v_min_u32 v28, L_kv_end-kv_kernel, v28
s_cmp_lt_u32 s{ch_sgpr}, 8
s_cselect_b32 s60, -1, 0
v_and_b32 v28, s60, v28
global_load_dword v79, v28, s[58:59]""")
    a(f"""s_lshr_b32 s36, s{ch_sgpr}, 1
s_lshl_b32 s36, s36, 2
s_add_u32 s12, s12, s36
s_addc_u32 s13, s13, 0
s_load_dword s37, s[12:13], 0""")
    global _LBL
    _LBL += 1
    if KG_TAB:
        a(f"""s_getpc_b64 s[58:59]
L_ktref{_LBL}:
s_add_u32 s58, s58, L_ktab-L_ktref{_LBL}
s_addc_u32 s59, s59, 0
v_lshlrev_b32 v28, 4, v1
global_load_dwordx4 v[24:27], v28, s[58:59]""")
    else:
        a(f"""v_lshrrev_b32 v28, 3, v1
v_lshlrev_b32 v28, 7, v28
v_and_b32 v29, 7, v1
v_or_b32 v24, v28, v29
v_lshrrev_b32 v28, 2, v1
v_lshlrev_b32 v28, 7, v28
v_and_b32 v29, 3, v1
v_lshl_add_u32 v28, v29, 1, v28
v_add_u32 v28, 256, v28
v_bfe_u32 v29, v1, 1, 2
v_lshlrev_b32 v29, 7, v29
v_and_b32 v30, 1, v1
v_lshl_add_u32 v29, v30, 2, v29
v_add_u32 v29, 512, v29
v_cmp_gt_u32 vcc, 8, v1
v_cndmask_b32 v25, v29, v28, vcc
v_lshlrev_b32 v28, 7, v1
v_add_u32 v28, 1024, v28
v_min_u32 v26, 2048, v28
v_lshlrev_b32 v27, 3, v1
v_cvt_f32_u32 v24, v24
v_cvt_f32_u32 v25, v25
v_cvt_f32_u32 v26, v26
v_cvt_f32_u32 v27, v27""")
    a(f"""v_lshlrev_b32 v5, 8, v3
v_lshl_add_u32 v6, v1, 4, v5
v_lshl_add_u32 v5, v2, 6, v5
s_waitcnt lgkmcnt(0)
s_lshl_b32 s38, s37, 16
s_and_b32 s39, s37, 0xffff0000
s_bitcmp1_b32 s{ch_sgpr}, 0
s_cselect_b32 s38, s39, s38
v_mov_b32 v28, s38""")
    exp_acc(a, 29, 28, 30, 31)
    a("""v_cvt_pk_bf16_f32 v29, v29, v29
v_and_b32 v29, 0xffff0000, v29""")
    if not KG_SMEM:
        a(f"s_waitcnt vmcnt({1 if EARLY_PF else 0})")
        st()
        for i in range(4): lo(a, 8 + i, 8 + i)
    else:
        st()
        for i in range(4):
            for kk in range(8):
                a(f"v_writelane_b32 v{8+i}, s{PS[i]+kk}, {kk}")
        a("""v_lshrrev_b32 v16, 1, v1
v_lshlrev_b32 v16, 2, v16
v_and_b32 v17, 1, v1
v_xor_b32 v17, 1, v17
v_lshlrev_b32 v17, 4, v17""")
        for i in range(4): a(f"ds_bpermute_b32 v{8+i}, v16, v{8+i}")
        a("s_waitcnt lgkmcnt(0)")
        for i in range(4):
            a(f"v_lshlrev_b32 v{8+i}, v17, v{8+i}")
            a(f"v_and_b32 v{8+i}, 0xffff0000, v{8+i}")
    exp_acc(a, 12, 8, 30, 31)
    a(f"""v_cvt_pk_bf16_f32 v12, v12, v12
v_and_b32 v12, 0xffff0000, v12
v_mul_f32 v12, v12, v29
v_mul_f32 v12, 0xbfb8aa3b, v12
v_mul_f32 v13, v9, v29
v_mul_f32 v13, s53, v13
v_mul_f32 v14, v10, v29
v_mul_f32 v15, v11, v29
v_add_f32 v14, v14, v14
v_add_f32 v15, v15, v15
ds_write_b128 v6, v[12:15] offset:{KPRM}
s_waitcnt lgkmcnt(0)""")
    if not EARLY_PF: a("s_waitcnt vmcnt(0)")
    st()
    a("v_mov_b32 v7, 0x07060302")
    tmp = list(range(16, 24)) + list(range(28, 44))
    XS_ = [44, 45, 46, 47]
    for bt in range(2):
        for mm in range(2):
            a(f"ds_read_b128 v[{8+4*mm}:{11+4*mm}], v5 offset:{KPRM + 16*(2*bt+mm)}")
        a("s_waitcnt lgkmcnt(0)" + (" vmcnt(0)" if bt == 1 else ""))
        items = [(mm, T) for mm in range(2) for T in range(4)]
        Er = {it: tmp[3 * k] for k, it in enumerate(items)}
        Sr = {it: tmp[3 * k + 1] for k, it in enumerate(items)}
        Cr = {it: tmp[3 * k + 2] for k, it in enumerate(items)}
        for it in items: a(f"v_mul_f32 v{Sr[it]}, v{9+4*it[0]}, v{24+it[1]}")
        for it in items: a(f"v_mul_f32 v{Er[it]}, v{8+4*it[0]}, v{24+it[1]}")
        for it in items: a(f"v_fract_f32 v{Sr[it]}, v{Sr[it]}")
        for it in items: a(f"v_exp_f32 v{Er[it]}, v{Er[it]}")
        for it in items: a(f"v_cos_f32 v{Cr[it]}, v{Sr[it]}")
        for it in items: a(f"v_sin_f32 v{Sr[it]}, v{Sr[it]}")
        for it in items:
            if it[1] < 3:
                a(f"v_mul_f32 v{Cr[it]}, v{Cr[it]}, v{Er[it]}")
                a(f"v_mul_f32 v{Sr[it]}, v{Sr[it]}, v{Er[it]}")
        cols = [it for it in items if it[1] == 3]
        for n, it in enumerate(cols):
            a(f"v_mul_f32 v{XS_[2*n]}, v{10+4*it[0]}, v{Er[it]}")
            a(f"v_mul_f32 v{Er[it]}, v{11+4*it[0]}, v{Er[it]}")
        for n, it in enumerate(cols):
            a(f"v_mul_f32 v{XS_[2*n+1]}, v{Er[it]}, v{Sr[it]}")
            a(f"v_mul_f32 v{Er[it]}, v{Er[it]}, v{Cr[it]}")
        for n, it in enumerate(cols):
            a(f"v_fma_f32 v{Cr[it]}, v{XS_[2*n]}, v{Cr[it]}, -v{XS_[2*n+1]}")
            a(f"v_fma_f32 v{Sr[it]}, -v{XS_[2*n]}, v{Sr[it]}, -v{Er[it]}")
        def HL(it):
            m = 2 * bt + it[0]
            return (48 + 4 * it[1] + m, 60 + 4 * it[1] + m) if it[1] < 3 else (72 + m, 76 + m)
        for it in items: a(f"v_perm_b32 v{HL(it)[0]}, v{Sr[it]}, v{Cr[it]}, v7")
        for it in items: a(f"v_and_b32 v{Er[it]}, 0xffff0000, v{Cr[it]}")
        for it in items: a(f"v_sub_f32 v{Cr[it]}, v{Cr[it]}, v{Er[it]}")
        for it in items: a(f"v_and_b32 v{Er[it]}, 0xffff0000, v{Sr[it]}")
        for it in items: a(f"v_sub_f32 v{Sr[it]}, v{Sr[it]}, v{Er[it]}")
        for it in items: a(f"v_cvt_pk_bf16_f32 v{HL(it)[1]}, v{Cr[it]}, v{Sr[it]}")
    st()
    if KG_TAB:
        a("""v_lshlrev_b32 v16, 4, v0
global_load_dwordx4 v[8:11], v16, s[58:59] offset:256""")
    for T in range(3):
        D = 32 + 4 * T
        a(f"v_mfma_f32_16x16x32_bf16 v[{D}:{D+3}], v[{60+4*T}:{63+4*T}], v[72:75], 0")
        a(f"v_mfma_f32_16x16x32_bf16 v[{D}:{D+3}], v[{48+4*T}:{51+4*T}], v[76:79], v[{D}:{D+3}]")
        a(f"v_mfma_f32_16x16x32_bf16 v[{D}:{D+3}], v[{48+4*T}:{51+4*T}], v[72:75], v[{D}:{D+3}]")
    a("""v_and_b32 v30, 63, v0
v_lshlrev_b32 v30, 4, v30
v_mul_u32_u24 v31, 3072, v3
v_add_u32 v31, v31, v30""")
    a("""v_and_b32 v7, 3, v0
v_lshrrev_b32 v5, 2, v0""")
    if not KG_TAB:
        a("v_lshl_add_u32 v4, v5, 3, v7")
        for it in range(2):
            a(f"v_add_u32 v{8+2*it}, {1024*it}, v4")
            a(f"v_add_u32 v{9+2*it}, {1024*it+4}, v4")
        for k in range(4): a(f"v_cvt_f32_u32 v{8+k}, v{8+k}")
        for k in range(0, 4, 2):
            a(f"v_cvt_pk_bf16_f32 v17, v{8+k}, v{9+k}")
            lo(a, 8 + k, 17); hi(a, 9 + k, 17)
        for k in range(4):
            a(f"v_cvt_u32_f32 v{8+k}, v{8+k}")
            a(f"v_lshlrev_b32 v{8+k}, 2, v{8+k}")
    a(f"""s_lshl_b32 s42, s{ch_sgpr}, {11+NP}
s_add_u32 s42, s42, {KW}
v_lshlrev_b32 v4, 10, v7
v_lshl_add_u32 v4, v5, 2, v4""")
    for T in range(3):
        a(f"ds_write_b128 v31, v[{32+4*T}:{35+4*T}] offset:{KPART + 1024*T}")
    st()
    _LBL += 1
    L = f"L_kg{_LBL}"
    if swbar is None:
        a("""s_waitcnt lgkmcnt(0)
s_barrier""")
    else: sw_barrier(a, swbar, 8, 64, 65, 58, f"{L}_sb1")
    st()
    a(f"""s_cmp_ge_u32 s56, 3
s_cbranch_scc1 {L}_skip
s_lshl_b32 s57, s56, 10
v_add_u32 v30, s57, v30""")
    for w in range(8):
        a(f"ds_read_b128 v[{32+4*w}:{35+4*w}], v30 offset:{KPART + 3072*w}")
    a("v_lshlrev_b32 v65, 5, v1")
    a("s_waitcnt lgkmcnt(0)")
    for r in range(4):
        a(f"""v_add_f32 v{32+r}, v{32+r}, v{36+r}
v_add_f32 v{40+r}, v{40+r}, v{44+r}
v_add_f32 v{48+r}, v{48+r}, v{52+r}
v_add_f32 v{56+r}, v{56+r}, v{60+r}
v_add_f32 v{32+r}, v{32+r}, v{40+r}
v_add_f32 v{48+r}, v{48+r}, v{56+r}
v_add_f32 v{32+r}, v{32+r}, v{48+r}""")
    a(f"""s_cmp_eq_u32 s56, 1
s_cbranch_scc1 {L}_t1
s_cmp_eq_u32 s56, 2
s_cbranch_scc1 {L}_t2
v_lshrrev_b32 v64, 1, v2
v_lshlrev_b32 v64, 9, v64
v_and_b32 v66, 1, v2
v_lshl_add_u32 v64, v66, 4, v64
v_add_u32 v64, v65, v64
ds_write_b128 v64, v[32:35] offset:{KTAB0}
s_branch {L}_skip
{L}_t1:
v_lshlrev_b32 v64, 9, v2
v_add_u32 v64, 1024, v64
v_lshlrev_b32 v66, 10, v2
v_cmp_gt_u32 vcc, 2, v2
v_cndmask_b32 v64, v66, v64, vcc
v_add_u32 v64, v65, v64
ds_write_b32 v64, v32 offset:{KTAB0}
v_mov_b32 v67, 16
v_cndmask_b32 v66, v67, 8, vcc
v_add_u32 v66, v64, v66
ds_write_b32 v66, v33 offset:{KTAB0}
v_mov_b32 v67, 512
v_cndmask_b32 v66, v67, 16, vcc
v_add_u32 v66, v64, v66
ds_write_b32 v66, v34 offset:{KTAB0}
v_mov_b32 v67, 528
v_cndmask_b32 v66, v67, 24, vcc
v_add_u32 v66, v64, v66
ds_write_b32 v66, v35 offset:{KTAB0}
s_branch {L}_skip
{L}_t2:
v_lshlrev_b32 v64, 11, v2
v_add_u32 v64, v65, v64
v_cmp_gt_u32 vcc, 3, v2
s_and_saveexec_b64 s[40:41], vcc
ds_write_b32 v64, v32 offset:{KTAB0+4096}
s_mov_b64 exec, s[40:41]
v_cmp_gt_u32 vcc, 2, v2
s_and_saveexec_b64 s[40:41], vcc
ds_write_b32 v64, v33 offset:{KTAB0+4608}
ds_write_b32 v64, v34 offset:{KTAB0+5120}
ds_write_b32 v64, v35 offset:{KTAB0+5632}
s_mov_b64 exec, s[40:41]
{L}_skip:""")
    if swbar is None:
        a("""s_waitcnt lgkmcnt(0)
s_barrier""")
    else: sw_barrier(a, swbar + 4, 8, 64, 65, 58, f"{L}_sb2")
    st()
    if KG_TAB: a("s_waitcnt vmcnt(0)")
    for k in range(4):
        a(f"ds_read_b32 v{20+k}, v{8+k} offset:{KTAB0}")
    a("s_waitcnt lgkmcnt(0)")
    for it in range(2):
        a(f"v_cvt_pk_bf16_f32 v{16+it}, v{20+2*it}, v{21+2*it}")
        a(f"buffer_store_dword v{16+it}, v4, s[32:35], s42 offen offset:{512*it}")
        if NP == 2:
            lo(a, 24, 16 + it); hi(a, 25, 16 + it)
            a(f"v_sub_f32 v24, v{20+2*it}, v24")
            a(f"v_sub_f32 v25, v{21+2*it}, v25")
            a(f"v_cvt_pk_bf16_f32 v{18+it}, v24, v25")
    if NP == 2:
        a("s_add_u32 s42, s42, 4096")
        for it in range(2):
            a(f"buffer_store_dword v{18+it}, v4, s[32:35], s42 offen offset:{512*it}")
    st.finish(32)
    return 80

def k_front(NP, nk=256, ch0=256, kfirst=False):
    name = "front_kernel"
    a = Asm()
    E = f"L_{name}"
    if kfirst and nk:
        a(f"""s_add_u32 s60, s2, 256
s_sub_u32 s61, s2, {nk}
s_cmp_lt_u32 s2, {nk}
s_cselect_b32 s61, s60, s61
s_cmp_lt_u32 s2, {nk+256}
s_cselect_b32 s2, s61, s2""")
    a(f"""s_cmp_ge_u32 s2, 256
s_cbranch_scc1 {E}_kgen
s_setprio 3
s_load_dwordx2 s[10:11], s[0:1], 120""")
    st = Stamps(a, 2)
    nv1 = conv_body(a, "A", 1, st, E, False)
    a(f"""s_endpgm
{E}_kgen:
s_cmp_ge_u32 s2, {256+nk}
s_cbranch_scc1 {E}_end
s_add_u32 s55, s2, {ch0-256}""")
    st2 = Stamps(a, 1)
    nv2 = kgen_body(a, NP, st2, 55)
    a(f"""{E}_end:
s_endpgm""")
    return kernel_text(name, a.text(), max(nv1, nv2), SG(64))

def SLDS(): return PCONV_LDS(1) + KGEN_LDS + 64
def k_convA_kgen(NP, ch0):
    name = "convA_kernel"
    a = Asm()
    E = f"L_{name}"
    cnt = PCONV_LDS(1) + KGEN_LDS
    a(f"""s_cmp_ge_u32 s2, 256
s_cbranch_scc1 {E}_end
v_mov_b32 v1, {cnt}
v_mov_b32 v2, 0
v_mov_b32 v3, 0
v_mov_b32 v4, 0
v_mov_b32 v5, 0
v_cmp_eq_u32 vcc, 0, v0
s_and_saveexec_b64 s[4:5], vcc
ds_write_b128 v1, v[2:5]
s_mov_b64 exec, s[4:5]
v_lshrrev_b32 v1, 9, v0
s_nop 0
v_readfirstlane_b32 s6, v1
s_waitcnt lgkmcnt(0)
s_barrier
s_cmp_eq_u32 s6, 1
s_cbranch_scc1 {E}_kgen
s_setprio 3
s_load_dwordx2 s[10:11], s[0:1], 120""")
    st = Stamps(a, 2)
    nv1 = conv_body_p(a, "A", 1, st, E, sbuf=True, swbar=cnt, cbase=KGEN_LDS)
    a(f"""s_endpgm
{E}_kgen:
v_and_b32 v0, 511, v0
s_add_u32 s55, s2, {ch0}""")
    st2 = Stamps(a, 1)
    nv2 = kgen_body(a, NP, st2, 55, lbase=0, swbar=cnt + 8)
    a(f"""{E}_end:
s_endpgm""")
    assert max(nv1, nv2) <= 128, (nv1, nv2)
    return kernel_text(name, a.text(), max(nv1, nv2), SG(64))

def ktab_text():
    import struct, numpy as np
    out = [".p2align 8", "L_ktab:"]
    f2u = lambda x: struct.unpack("<I", struct.pack("<f", float(x)))[0]
    for i in range(16):
        p0 = ((i >> 3) << 7) | (i & 7)
        p1 = 256 + ((i >> 2) << 7) + ((i & 3) << 1) if i < 8 else 512 + (((i >> 1) & 3) << 7) + ((i & 1) << 2)
        p2 = min(1024 + 128 * i, 2048)
        out.append(".long " + ", ".join(hex(f2u(x)) for x in (p0, p1, p2, 8 * i)))
    def rne(l):
        u = f2u(l); u = (u + 0x7FFF + ((u >> 16) & 1)) & 0xFFFF0000
        return int(struct.unpack("<f", struct.pack("<I", u))[0])
    for t in range(512):
        f, n2 = t & 3, t >> 2
        ls = [8 * n2 + f, 8 * n2 + f + 4, 8 * n2 + f + 1024, 8 * n2 + f + 1028]
        out.append(".long " + ", ".join(str(4 * rne(l)) for l in ls))
    return "\n".join(out)
```
